```python
import torch

def _softmax(x, axis=-1):
    return torch.softmax(x, dim=axis)

def _gelu(x):
    return torch.nn.functional.gelu(x, approximate='tanh')

def _silu(x):
    return torch.nn.functional.silu(x)

def _sigmoid(x):
    return torch.sigmoid(x)

def _layernorm(x, axis=-1, eps=1e-05):
    m = x.mean(dim=axis, keepdim=True)
    v = x.var(dim=axis, keepdim=True, unbiased=False)
    return (x - m) / torch.sqrt(v + eps)

def _scatter_add(tgt, idx, src, axis=0):
    return tgt.clone().index_add_(axis, idx, src)

def _segment_sum(src, seg, n):
    out = torch.zeros((n,) + src.shape[1:], dtype=src.dtype)
    return out.index_add_(0, seg, src)

def _pad(x, pw):
    flat = tuple((v for pair in reversed(pw) for v in pair))
    return torch.nn.functional.pad(x, flat)
kernel_name = 'gated_mix__memory_aug_recurrent_mem_tr__linear_attn_block__prompt'

def setup_inputs():

    _w = lambda a: (lambda t: t.to(torch.bfloat16) if t.is_floating_point() else t)(torch.as_tensor(a))

    def _A_setup():
        B, S, Dm = (1, 2048, 576)
        H, Dh = (32, 128)
        M, seg = (8, 32)
        seg = min(seg, S)
        S = S // seg * seg
        return {'x': _w((lambda *s: torch.randn(*s, dtype=torch.bfloat16) * 0.05)(B, S, Dm)), 'mem0': _w((lambda *s: torch.randn(*s, dtype=torch.bfloat16) * 0.8)(B, M, Dm)), 'Wq': _w((lambda *s: torch.randn(*s, dtype=torch.bfloat16) * 3.2)(Dm, H, Dh) * Dm ** (-0.5)), 'Wk': _w((lambda *s: torch.randn(*s, dtype=torch.bfloat16) * 3.2)(Dm, H, Dh) * Dm ** (-0.5)), 'Wv': _w((lambda *s: torch.randn(*s, dtype=torch.bfloat16) * 0.8)(Dm, H, Dh) * Dm ** (-0.5)), 'Wo': _w((lambda *s: torch.randn(*s, dtype=torch.bfloat16) * 0.8)(H, Dh, Dm) * (H * Dh) ** (-0.5)), 'seg_len': seg}
    _A_in = _A_setup()

    def _B_setup():
        B, S, D = (1, 2048, 576)
        return {'x': _w((lambda *s: torch.randn(*s, dtype=torch.bfloat16) * 0.05)(B, S, D)), 'wqkv': _w((lambda *s: torch.randn(*s, dtype=torch.bfloat16) * 0.8)(D, 3 * D)), 'wo': _w((lambda *s: torch.randn(*s, dtype=torch.bfloat16) * 0.2)(D, D))}
    _B_in = _B_setup()
    return {'A_x': _A_in['x'], 'A_mem0': _A_in['mem0'], 'A_Wq': _A_in['Wq'], 'A_Wk': _A_in['Wk'], 'A_Wv': _A_in['Wv'], 'A_Wo': _A_in['Wo'], 'A_seg_len': _A_in['seg_len'], 'B_x': _B_in['x'], 'B_wqkv': _B_in['wqkv'], 'B_wo': _B_in['wo'], 'gate_w': _w((lambda *s: torch.randn(*s, dtype=torch.bfloat16) * 0.05)(576) * 16.0)}

def reference(A_x, A_mem0, A_Wq, A_Wk, A_Wv, A_Wo, A_seg_len, B_x, B_wqkv, B_wo, gate_w):

    def _A_ref(x, mem0, Wq, Wk, Wv, Wo, seg_len):
        B, S, Dm = x.shape
        H, Dh = (Wq.shape[1], Wq.shape[2])
        M = mem0.shape[1]
        scale = Dh ** (-0.5)
        n_seg = S // seg_len
        L = M + seg_len
        idx = torch.arange(L)
        mask = (idx[:, None] < M) | (idx[:, None] >= idx[None, :])
        mem = mem0
        outs = []
        for s in range(n_seg):
            xs = x[:, s * seg_len:(s + 1) * seg_len, :].clone()
            h = torch.concatenate([mem, xs], axis=1)
            q = torch.einsum('btd,dhe->bhte', h, Wq)
            k = torch.einsum('btd,dhe->bhte', h, Wk)
            v = torch.einsum('btd,dhe->bhte', h, Wv)
            scores = torch.einsum('bhqe,bhke->bhqk', q, k) * scale
            scores = torch.where(mask[None, None], scores, -1000000000.0)
            p = _softmax(scores, axis=-1)
            o = torch.einsum('bhqk,bhke->bhqe', p, v)
            o = torch.einsum('bhte,hed->btd', o, Wo)
            mem = o[:, :M, :].clone()
            outs.append(o[:, M:, :])
        return torch.concatenate(outs, axis=1)

    def _B_ref(x, wqkv, wo):
        B, S, D = x.shape
        H = 32
        Dh = D // H
        qkv = (lambda x, *d: x.permute(*d))((x @ wqkv).reshape(B, S, 3, H, Dh), 2, 0, 3, 1, 4)
        q, k, v = (qkv[0], qkv[1], qkv[2])
        phi = lambda t: torch.where(t > 0, t + 1, torch.exp(t)) + 1e-06
        pq, pk = (phi(q), phi(k))
        kv = torch.einsum('bhsd,bhse->bhde', pk, v)
        z = torch.einsum('bhsd->bhd', pk)
        num = torch.einsum('bhqd,bhde->bhqe', pq, kv)
        den = torch.einsum('bhqd,bhd->bhq', pq, z)[..., None] + 1e-06
        o = num / den
        return (lambda x, *d: x.permute(*d))(o, 0, 2, 1, 3).reshape(B, S, D) @ wo
    x = A_x
    g = _sigmoid((x * gate_w).sum(-1, keepdims=True))
    a = _A_ref(x, A_mem0, A_Wq, A_Wk, A_Wv, A_Wo, A_seg_len)
    b = _B_ref(x, B_wqkv, B_wo)
    return g * a + (1 - g) * b
```

```python
import re

REG_RE = re.compile(r'\b([vas])(\d+)\b|\b([vas])\[(\d+):(\d+)\]|\b(vcc|exec|m0|scc)\b')

def regs_of(tok):
    out = []
    for m in REG_RE.finditer(tok):
        if m.group(1):
            out.append((m.group(1), int(m.group(2))))
        elif m.group(3):
            out += [(m.group(3), i) for i in range(int(m.group(4)), int(m.group(5)) + 1)]
        else:
            out.append((m.group(6), 0))
    return out

TRANS = ('v_exp_f32', 'v_log_f32', 'v_rcp_f32', 'v_rsq_f32', 'v_sqrt_f32', 'v_sin_f32', 'v_cos_f32', 'v_rcp_iflag_f32')

def mfma_passes(op):
    if '32x32' in op: return 8
    if '16x16' in op: return 4
    if '4x4x4' in op: return 2
    raise ValueError(op)

class Ins:
    def __init__(self, text):
        self.text = text
        t = text.split(';')[0].strip()
        self.op = t.split()[0] if t else ''
        rest = t[len(self.op):].strip()
        ops = [o.strip() for o in re.split(r',(?![^\[]*\])', rest)] if rest else []
        self.ops = ops
        op = self.op
        self.w = []; self.r = []
        self.kind = 'other'
        self.states = 1
        self.srcC = []; self.srcAB = []
        self.dpp = ('_dpp' in op) or any(k in rest for k in ('row_ror', 'row_shr', 'row_shl', 'quad_perm', 'row_mirror', 'row_half_mirror', 'row_bcast', 'row_newbcast'))
        if op.endswith(':') or op.startswith('.') or op == '':
            self.kind = 'label'; self.states = 0
            return
        if op == 's_nop':
            self.kind = 'nop'; self.states = int(ops[0], 0) + 1
            return
        if op.startswith('v_mfma') or op.startswith('v_smfmac'):
            self.kind = 'mfma'; self.passes = mfma_passes(op)
            self.w = regs_of(ops[0])
            self.srcAB = regs_of(ops[1]) + regs_of(ops[2])
            if op.startswith('v_smfmac'):
                self.srcC = regs_of(ops[0]); self.srcAB += regs_of(ops[3].split()[0])
            else:
                self.srcC = regs_of(ops[3].split()[0])
            self.r = self.srcAB + self.srcC
            return
        if op.startswith('v_'):
            self.kind = 'valu'
            if op.startswith('v_permlane') and 'swap' in op:
                self.w = regs_of(ops[0]) + regs_of(ops[1]); self.r = list(self.w); self.perm = True
                return
            if op.startswith('v_cmp'):
                self.w = regs_of(ops[0]); self.r = sum((regs_of(o) for o in ops[1:]), [])
                if op.startswith('v_cmpx'): self.w.append(('exec', 0))
                return
            self.w = regs_of(ops[0])
            srcs = ops[1:]
            if op.startswith(('v_add_co', 'v_sub_co', 'v_addc_co', 'v_subb_co', 'v_subrev_co')):
                self.w += regs_of(ops[1]); srcs = ops[2:]
            self.r = sum((regs_of(o.split()[0]) if o else [] for o in srcs), [])
            if op.startswith(('v_fmac', 'v_pk_fmac', 'v_dot2c', 'v_writelane')) or self.dpp:
                self.r += regs_of(ops[0])
            return
        if op.startswith('buffer_') or op.startswith('global_'):
            self.kind = 'vmem'
            isload = '_load' in op
            islds = re.search(r'\blds\b', rest) is not None
            allr = [regs_of(o.split()[0]) if o else [] for o in ops]
            if op.startswith('buffer_'):
                if op.startswith('buffer_inv') or op.startswith('buffer_wbl2'):
                    return
                if islds:
                    self.r = sum(allr, []) + [('m0', 0)]
                elif isload:
                    self.w = allr[0]; self.r = sum(allr[1:], [])
                    if 'd16' in op: self.r += allr[0]
                else:
                    self.r = sum(allr, [])
                    self.store_data = allr[0]
                    if 'atomic' in op and 'sc0' in rest: self.w = allr[0]
            else:
                if isload and not islds and 'load_lds' not in op:
                    self.w = allr[0]; self.r = sum(allr[1:], [])
                elif 'atomic' in op and 'sc0' in rest:
                    self.w = allr[0]; self.r = sum(allr[1:], [])
                else:
                    self.r = sum(allr, [])
                    self.store_data = allr[1] if len(allr) > 1 else []
            self.wide_store = (not isload) and ('x4' in op or 'x3' in op)
            return
        if op.startswith('ds_'):
            self.kind = 'ds'
            allr = [regs_of(o.split()[0]) if o else [] for o in ops]
            if op.startswith(('ds_read', 'ds_bpermute', 'ds_permute', 'ds_swizzle')) or '_rtn' in op:
                self.w = allr[0]; self.r = sum(allr[1:], [])
                if 'd16' in op: self.r += allr[0]
            else:
                self.r = sum(allr, [])
            return
        if op.startswith('s_'):
            self.kind = 'salu'
            if op.startswith(('s_cmp', 's_bitcmp')):
                self.r = sum((regs_of(o) for o in ops), []); self.w = [('scc', 0)]
            elif op.startswith(('s_cbranch', 's_branch', 's_waitcnt', 's_barrier', 's_endpgm', 's_sleep', 's_setprio')):
                pass
            else:
                if ops:
                    self.w = regs_of(ops[0]); self.r = sum((regs_of(o.split()[0]) if o else [] for o in ops[1:]), [])
                if 'saveexec' in op: self.w.append(('exec', 0))
            return

def need(prod, cons):
    n = 0
    pw = set(prod.w); cr = set(cons.r); cw = set(cons.w)
    if prod.kind == 'valu':
        vw = {x for x in pw if x[0] in 'va'}
        sw = {x for x in pw if x[0] == 's' or x[0] == 'vcc'}
        if cons.kind == 'mfma' and vw & cr: n = max(n, 2)
        if cons.kind == 'valu':
            if getattr(cons, 'perm', False) and vw & cr: n = max(n, 2)
            if cons.dpp and vw & cr: n = max(n, 2)
            if cons.op.startswith(('v_readlane', 'v_readfirstlane')) and vw & cr: n = max(n, 1)
            if prod.op.replace('_e32', '').replace('_e64', '') in TRANS and vw & cr and cons.op.replace('_e32', '').replace('_e64', '') not in TRANS: n = max(n, 1)
            if sw & cr: n = max(n, 4 if cons.op.startswith(('v_readlane', 'v_writelane')) else 2)
            if ('exec', 0) in pw:
                if cons.dpp: n = max(n, 5)
                if getattr(cons, 'perm', False) or cons.op.startswith(('v_readlane', 'v_readfirstlane', 'v_writelane')): n = max(n, 4)
        if cons.kind == 'vmem' and sw & cr: n = max(n, 5)
        if cons.kind == 'salu' and sw & cr: n = max(n, 1)
        if ('exec', 0) in pw and cons.kind == 'mfma': n = max(n, 4)
    if prod.kind == 'mfma':
        P = prod.passes
        tab_c_overlap = {2: 4, 4: 6, 8: 10, 16: 18}[P]
        tab_ab = {2: 5, 4: 8, 8: 12, 16: 20}[P]
        if cons.kind == 'mfma':
            c = set(cons.srcC)
            if pw & c:
                if list(prod.w) == list(cons.srcC) and cons.passes == P:
                    n = max(n, 2 if P == 2 else 0)
                else:
                    n = max(n, tab_c_overlap)
            if pw & set(cons.srcAB): n = max(n, tab_ab)
            if pw & cw and not (pw & c): n = max(n, tab_c_overlap)
        elif cons.kind in ('valu', 'vmem', 'ds'):
            if pw & (cr | cw): n = max(n, tab_ab)
        if cons.kind == 'valu' and set(prod.srcC) & cw:
            n = max(n, {2: 1, 4: 3, 8: 7, 16: 15}[P])
    if prod.kind == 'vmem' and getattr(prod, 'wide_store', False):
        if set(prod.store_data) & cw:
            n = max(n, 2 if cons.kind == 'valu' else 1)
    if prod.kind == 'salu' and ('m0', 0) in pw and ('m0', 0) in cr:
        n = max(n, 1)
    if prod.kind == 'salu' and ('exec', 0) in pw:
        pass
    return n

class Asm:
    def __init__(self):
        self.lines = []
    def __call__(self, text):
        for t in text.strip().split('\n'):
            t = t.strip()
            if not t: continue
            self.emit(t)
    def raw(self, t):
        i = Ins(''); i.text = t; self.lines.append(i)
    def emit(self, t):
        if t.startswith(';'):
            self.raw(t); return
        ins = Ins(t)
        if ins.kind not in ('label', 'nop'):
            dist = 0; req = 0
            for p in reversed(self.lines[-40:]):
                if p.kind == 'label':
                    continue
                k = need(p, ins) if p.kind != 'nop' else 0
                if k > dist: req = max(req, k - dist)
                dist += p.states
                if dist >= 20: break
            while req > 0:
                k = min(req, 16)
                self.lines.append(Ins('s_nop %d' % (k - 1)))
                req -= k
        self.lines.append(ins)
    def label(self, name):
        self.emit(name + ':')
    def text(self):
        out = []
        for i in self.lines:
            if i.kind == 'label' : out.append(i.text)
            else: out.append('    ' + i.text)
        return '\n'.join(out) + '\n'

def vr(b, n=1):
    return 'v%d' % b if n == 1 else 'v[%d:%d]' % (b, b + n - 1)
def ar(b, n=1):
    return 'a%d' % b if n == 1 else 'a[%d:%d]' % (b, b + n - 1)
def sr(b, n=1):
    return 's%d' % b if n == 1 else 's[%d:%d]' % (b, b + n - 1)
```

```python
import sys, os
from asmdsl import *
NSTEPS=int(os.environ.get('NSTEPS','64')); NOPOISON=int(os.environ.get('NOPOISON','0')); PROBE=int(os.environ.get('PROBE','0'))
NAME = 'gated_mix__memory_aug_recurrent_mem_tr__linear_attn_block__prompt'
MiB = 1 << 20
WS_KV, WS_QX, WS_PUB = 0, 32*MiB, 48*MiB
WS_PART, WS_MEM = 58*MiB, 59*MiB
PSZ = 9216
PST = 9344
L_MEMS = 0; L_XW = 9216; L_SX5 = 13312; L_OB = 14336; L_W = 16384
OOB = 0x40000000
SC = ''
sWS, sWQ, sWK, sWV, sWO, sM0, sDBG = 8, 12, 16, 20, 24, 28, 32
sH, sW, sS, sT0, sT1, sT2, sT3, sR = 36, 37, 38, 39, 40, 41, 42, 43
sMEMr, sMEMw, sMEMp, sPW, sXW, sX5, sKX, sVX, sPUB, sEP, sMW2, sL4 = 44, 45, 46, 47, 48, 49, 50, 51, 52, 53, 54, 55
sC, sSEL0, sSEL1, sSPIN = 56, 57, 58, 59
sTM = 60
sPR = 64; sOWN = 68
sRHO = 72
sTK, sXM, sRDY = 73, 74, 75
sS0M, sS1M = 100, 2
sEV = 76
sHF0, sHF1, sONE = 4, 6, 78
(vL16, vIDX, vWL, vQKW, vBQ, vAKM, vOW, vPS9, vRED, vMST, vTMP, vOA) = range(12)
PUB = 12
AF = 16; ACC = 52; ACV = 68; T = 76
LDSF = [('qk',0,0),('qk',0,1),('qk',0,2)] + [('qk',sl,3) for sl in range(1,9)] + [('v',6,1),('v',8,1),('v',3,1),('v',5,1)] + [('o8',1),('o',0,1),('o',0,3)]
assert len(LDSF) == 18
ALLF = [('qk',sl,t) for sl in range(9) for t in range(4)] + [('v',sl,t) for sl in range(9) for t in range(2)] + [('o',c,r) for c in range(4) for r in range(4)] + [('o8',0),('o8',1)]
LOC = {}
_res = [f for f in ALLF if f not in LDSF]
assert len(_res) == 54
for i, f in enumerate(_res):
    LOC[f] = ('a', i*8) if i < 32 else ('v', 80 + (53-i)*8)
for i, f in enumerate(LDSF): LOC[f] = ('l', i*2048)
BUFTOP = 80 + 15*8
def rstr(kind, b, n):
    return ar(b, n) if kind == 'a' else vr(b, n)
def srd(a, s, lo, nbytes):
    a(f's_mov_b32 s{s}, s{lo}\ns_mov_b32 s{s+1}, s{lo+1}\ns_mov_b32 s{s+2}, {nbytes}\ns_mov_b32 s{s+3}, 0x00020000')

def chain(a):
    import worker as Wk
    p = Wk.ptr
    srd(a, sM0, p(1), 9216); srd(a, sWQ, p(2), 576*8192); srd(a, sWK, p(3), 576*8192); srd(a, sWV, p(4), 576*8192)
    srd(a, sWO, p(5), 4096*1152); srd(a, sDBG, p(12), 256); srd(a, sWS, p(13), 256*MiB)
    a(f'v_readfirstlane_b32 s{sW}, v1')
    TK = 10
    a(f''' v_mov_b32 v{TK}, 0
    v_mov_b32 v{TK+1}, 1
    s_cmp_lg_u32 s{sW}, 0
    s_cbranch_scc1 L_tk
    s_mov_b64 s[80:81], exec
    s_mov_b64 exec, 1
    buffer_atomic_add v{TK+1}, v{TK}, s[{sDBG}:{sDBG+3}], 0 offen sc0
    s_waitcnt vmcnt(0)
    ds_write_b32 v{TK}, v{TK+1}
    s_waitcnt lgkmcnt(0)
    s_mov_b64 exec, s[80:81]''')
    a.label('L_tk')
    a(f''' s_barrier
    ds_read_b32 v{TK+1}, v{TK}
    s_waitcnt lgkmcnt(0)
    v_readfirstlane_b32 s{sH}, v{TK+1}
    s_nop 3
    s_barrier
    s_cmp_ge_u32 s{sH}, 32
    s_cbranch_scc1 L_end
    s_memtime s[{sTM}:{sTM+1}]
    s_lshl_b32 s{sR}, s{sH}, 2
    s_add_u32 s{sR}, s{sR}, s{sW}
    s_lshl_b32 s{sRHO}, s{sW}, 5
    s_add_u32 s{sRHO}, s{sRHO}, s{sH}
    s_mov_b32 s{sSEL0}, 0x05040100
    s_mov_b32 s{sSEL1}, 0x07060302''')
    J, G, LANE, X, Y, Z, VO = 4, 5, 6, 7, 8, 9, 10
    a(f''' v_mov_b32 v{LANE}, v0
    v_and_b32 v{J}, 15, v{LANE}
    v_lshrrev_b32 v{G}, 4, v{LANE}
    v_lshlrev_b32 v{vL16}, 4, v{LANE}
    v_lshrrev_b32 v{X}, 1, v{G}
    v_lshlrev_b32 v{X}, 4, v{X}
    v_and_b32 v{Y}, 1, v{G}
    v_lshlrev_b32 v{Y}, 2, v{Y}
    v_add_u32 v{X}, v{X}, v{Y}
    v_lshlrev_b32 v{VO}, 13, v{X}
    v_lshl_add_u32 v{VO}, v{J}, 2, v{VO}
    v_mul_u32_u24 v{Z}, 1152, v{X}
    s_mul_i32 s{sT0}, s{sW}, 36864
    s_add_u32 s{sT0}, s{sT0}, {L_W}
    v_add_u32 v{vWL}, s{sT0}, v{vL16}''')
    def slot_base(slot, dst):
        if slot < 8:
            a(f's_xor_b32 s{dst}, s{sW}, {slot>>1}\ns_lshl_b32 s{dst}, s{dst}, 1\ns_add_u32 s{dst}, s{dst}, {slot&1}\ns_lshl_b32 s{dst}, s{dst}, 19')
        else:
            a(f's_mov_b32 s{dst}, {8<<19}')
        a(f's_add_u32 s{dst}, s{dst}, s{sT3}')
    a(f's_lshl_b32 s{sT3}, s{sH}, 8\ns_lshl_b32 s{sT0}, s{sW}, 6\ns_add_u32 s{sT3}, s{sT3}, s{sT0}')
    jobs = [(m, slot) for slot in range(9) for m in (0, 1, 2)]
    NB = 3
    BUF = 80
    def issue(n):
        m, slot = jobs[n]
        buf = BUF + (n % NB)*16
        if m == 0: slot_base(slot, sT1)
        s = (sWQ, sWK, sWV)[m]
        for b in range(8):
            kh, p0, hf = b >> 2, (b >> 1) & 1, b & 1
            for u in range(2):
                ro = 32*kh + 8*hf + 2*p0 + u
                a(f's_add_u32 s{sT2}, s{sT1}, {ro*8192}')
                a(f'buffer_load_dword v{buf + 2*b + u}, v{VO}, s[{s}:{s+3}], s{sT2} offen')
    def consume(n):
        m, slot = jobs[n]
        buf = BUF + (n % NB)*16
        P = 16
        for t in range(2):
            kind, base = LOC[('qk', slot, 2*m+t)] if m < 2 else LOC[('v', slot, t)]
            dst = base if kind == 'v' else P + 8*t
            for b in range(8):
                a(f'v_perm_b32 v{dst+b}, v{buf+2*b+1}, v{buf+2*b}, s{sSEL1 if t else sSEL0}')
            if kind == 'a':
                for b in range(8): a(f'v_accvgpr_write_b32 a{base+b}, v{dst+b}')
            if kind == 'l':
                for hh in range(2): a(f'ds_write_b128 v{vWL}, {vr(dst+4*hh, 4)} offset:{base + hh*1024}')
    for n in range(NB): issue(n)
    for n in range(len(jobs)):
        rem = min(NB-1, len(jobs)-1-n)
        a(f's_waitcnt vmcnt({rem*16})')
        consume(n)
        if n + NB < len(jobs): issue(n + NB)
    a('s_waitcnt lgkmcnt(0)')
    a(f''' v_mul_u32_u24 v{Z}, {4*1152}, v{G}
    v_lshl_add_u32 v{VO}, v{J}, 4, v{Z}
    s_lshl_b32 s{sT0}, s{sW}, 8
    v_add_u32 v{VO}, s{sT0}, v{VO}
    v_lshl_add_u32 v{X}, v{J}, 1, v{Z}
    s_lshl_b32 s{sT0}, s{sW}, 5
    s_add_u32 s{sT0}, s{sT0}, 1024
    v_add_u32 v{X}, s{sT0}, v{X}
    s_mul_i32 s{sT1}, s{sH}, 147456''')
    STG = 72
    for sg in range(2):
        kind, base = LOC[('o8', sg)]
        dst = base if kind == 'v' else STG
        for b in range(8):
            kh, p0, hf = b >> 2, (b >> 1) & 1, b & 1
            ro = 32*(sg + 2*hf) + 16*kh + 2*p0
            a(f's_add_u32 s{sT2}, s{sT1}, {ro*1152}')
            a(f'buffer_load_ushort v{dst+b}, v{X}, s[{sWO}:{sWO+3}], s{sT2} offen')
            a(f'buffer_load_ushort v{16+b}, v{X}, s[{sWO}:{sWO+3}], s{sT2} offen offset:1152')
        a('s_waitcnt vmcnt(0)')
        for i in range(8):
            a(f'v_lshl_or_b32 v{dst+i}, v{16+i}, 16, v{dst+i}')
        if kind == 'l':
            for hh in range(2): a(f'ds_write_b128 v{vWL}, {vr(dst+4*hh,4)} offset:{base+hh*1024}')
            a('s_waitcnt lgkmcnt(0)')
    for rho in range(4):
        for x in range(4):
            kh, p0 = x >> 1, x & 1
            ro = 32*rho + 16*kh + 2*p0
            a(f's_add_u32 s{sT2}, s{sT1}, {ro*1152}')
            a(f'buffer_load_dwordx4 {vr(16+x*8,4)}, v{VO}, s[{sWO}:{sWO+3}], s{sT2} offen')
            a(f'buffer_load_dwordx4 {vr(16+x*8+4,4)}, v{VO}, s[{sWO}:{sWO+3}], s{sT2} offen offset:1152')
        a('s_waitcnt vmcnt(0)')
        for c in range(4):
            kind, base = LOC[('o', c, rho)]
            assert kind != 'a'
            dst = base if kind == 'v' else STG
            for x in range(4):
                kh, p0 = x >> 1, x & 1
                for hf in range(2):
                    a(f'v_perm_b32 v{dst+4*kh+2*p0+hf}, v{16+x*8+4+c}, v{16+x*8+c}, s{sSEL1 if hf else sSEL0}')
            if kind == 'l':
                for hh in range(2): a(f'ds_write_b128 v{vWL}, {vr(dst+4*hh,4)} offset:{base+hh*1024}')
                a('s_waitcnt lgkmcnt(0)')
    J, G, LANE, X, Y, RW = 60, 61, 62, 63, 64, 65
    a(f''' v_lshrrev_b32 v{LANE}, 4, v{vL16}
    v_and_b32 v{J}, 15, v{LANE}
    v_lshrrev_b32 v{G}, 4, v{LANE}
    v_and_b32 v{X}, 2, v{LANE}
    v_mov_b32 v{vIDX}, 0x00444444
    v_mov_b32 v{Y}, 0x0049EEEE
    v_cmp_ne_u32 vcc, 0, v{X}
    v_cndmask_b32 v{vIDX}, v{vIDX}, v{Y}, vcc
    s_mov_b64 s[{sHF1}:{sHF1+1}], vcc
    s_not_b64 s[{sHF0}:{sHF0+1}], vcc
    s_mov_b32 s{sONE}, 0x3f803f80
    s_mov_b32 s{sONE+1}, 0x3f803f80
    s_lshl_b32 s{sOWN}, s{sW}, 11
    s_xor_b32 s{sOWN+1}, s{sOWN}, 2048
    s_xor_b32 s{sOWN+2}, s{sOWN}, 4096
    s_xor_b32 s{sOWN+3}, s{sOWN}, 6144
    s_lshl_b32 s{sL4}, s{sW}, 8
    s_add_u32 s{sL4}, s{sL4}, 8192
    s_lshl_b32 s{sXW}, s{sW}, 10
    s_add_u32 s{sXW}, s{sXW}, {L_XW}
    s_lshl_b32 s{sX5}, s{sW}, 2
    s_add_u32 s{sX5}, s{sX5}, {L_SX5}
    v_lshlrev_b32 v{X}, 7, v{G}
    v_lshl_add_u32 v{X}, v{J}, 2, v{X}
    v_add_u32 v{vQKW}, s{sXW}, v{X}
    v_lshrrev_b32 v{X}, 2, v{J}
    v_and_b32 v{Y}, 1, v{J}
    v_lshl_add_u32 v{RW}, v{X}, 1, v{Y}
    v_lshlrev_b32 v{X}, 6, v{RW}
    v_lshl_add_u32 v{X}, v{G}, 4, v{X}
    v_add_u32 v{vBQ}, s{sXW}, v{X}
    v_lshrrev_b32 v{X}, 2, v{J}
    v_lshlrev_b32 v{X}, 7, v{X}
    v_lshl_add_u32 v{X}, v{G}, 4, v{X}
    v_add_u32 v{X}, 512, v{X}
    v_add_u32 v{vAKM}, s{sXW}, v{X}
    v_lshl_add_u32 v{X}, v{G}, 3, v{RW}
    v_lshlrev_b32 v{X}, 4, v{X}
    v_add_u32 v{vOA}, {L_OB}, v{X}
    v_lshrrev_b32 v{X}, 2, v{J}
    v_lshlrev_b32 v{X}, 3, v{X}
    v_lshl_add_u32 v{X}, v{G}, 1, v{X}
    v_lshlrev_b32 v{X}, 4, v{X}
    v_and_b32 v{Y}, 3, v{J}
    v_lshl_add_u32 v{X}, v{Y}, 2, v{X}
    s_lshl_b32 s{sT0}, s{sW}, 9
    s_add_u32 s{sT0}, s{sT0}, {L_OB}
    v_add_u32 v{vOW}, s{sT0}, v{X}
    v_lshrrev_b32 v{X}, 2, v{J}
    v_lshlrev_b32 v{X}, 1, v{X}
    v_lshl_add_u32 v{X}, v{G}, 3, v{X}
    v_and_b32 v{Y}, 1, v{J}
    v_add_u32 v{X}, v{X}, v{Y}
    v_lshlrev_b32 v{X}, 3, v{X}
    v_and_b32 v{Y}, 2, v{J}
    v_lshl_add_u32 v{X}, v{Y}, 1, v{X}
    s_mul_i32 s{sT0}, s{sW}, 1792
    s_sub_u32 s{sT0}, 8192, s{sT0}
    v_add_u32 v{vPS9}, s{sT0}, v{X}
    v_lshrrev_b32 v{X}, 3, v{J}
    v_lshl_add_u32 v{X}, v{X}, 2, v{G}
    v_mul_u32_u24 v{X}, {PST}, v{X}
    v_and_b32 v{Y}, 7, v{J}
    v_lshl_add_u32 v{Y}, v{Y}, 4, v{X}
    s_lshl_b32 s{sT0}, s{sRHO}, 7
    v_add_u32 v{vRED}, s{sT0}, v{Y}
    v_lshrrev_b32 v{Y}, 2, v{J}
    v_cmp_eq_u32 s[{sS0M}:{sS0M+1}], 0, v{Y}
    v_cmp_eq_u32 s[{sS1M}:{sS1M+1}], 1, v{Y}''')
    O, Q, SRC, T1, Q2, R2, H2 = 66, 67, 68, 69, 70, 71, 72
    a(f''' s_lshl_b32 s{sT0}, s{sRHO}, 7
    v_and_b32 v{X}, 7, v{J}
    v_lshlrev_b32 v{X}, 4, v{X}
    v_and_b32 v{Y}, 1, v{G}
    v_lshl_add_u32 v{X}, v{Y}, 3, v{X}
    v_add_u32 v{O}, s{sT0}, v{X}
    v_bfe_u32 v{X}, v{O}, 8, 2
    v_bfe_u32 v{Y}, v{O}, 3, 1
    v_lshl_add_u32 v{RW}, v{X}, 1, v{Y}
    v_lshrrev_b32 v{Q}, 11, v{O}
    v_lshlrev_b32 v{Q}, 4, v{Q}
    v_bfe_u32 v{X}, v{O}, 4, 4
    v_add_u32 v{Q}, v{Q}, v{X}
    v_bfe_u32 v{T1}, v{O}, 10, 1
    v_bfe_u32 v{X}, v{O}, 8, 2
    v_bfe_u32 v{Y}, v{O}, 5, 1
    v_lshl_add_u32 v{Q2}, v{X}, 1, v{Y}
    v_add_u32 v{Q2}, 64, v{Q2}
    v_bfe_u32 v{X}, v{O}, 6, 2
    v_bfe_u32 v{Y}, v{O}, 3, 1
    v_lshl_add_u32 v{R2}, v{X}, 1, v{Y}
    v_bfe_u32 v{H2}, v{O}, 4, 1
    v_cmp_le_u32 vcc, 0x2000, v{O}
    v_cndmask_b32 v{Q}, v{Q}, v{Q2}, vcc
    v_cndmask_b32 v{RW}, v{RW}, v{R2}, vcc
    v_cndmask_b32 v{T1}, v{T1}, v{H2}, vcc
    v_lshrrev_b32 v{X}, 1, v{RW}
    v_lshlrev_b32 v{X}, 2, v{X}
    v_and_b32 v{Y}, 1, v{Q}
    v_lshl_add_u32 v{X}, v{Y}, 1, v{X}
    v_and_b32 v{Y}, 1, v{RW}
    v_add_u32 v{X}, v{X}, v{Y}
    v_lshlrev_b32 v{X}, 4, v{X}
    v_lshrrev_b32 v{Y}, 1, v{Q}
    v_lshl_add_u32 v{X}, v{Y}, 8, v{X}
    v_lshl_add_u32 v{vMST}, v{T1}, 3, v{X}
    v_mul_u32_u24 v{SRC}, 1152, v{RW}
    v_lshl_add_u32 v{SRC}, v{Q}, 4, v{SRC}
    v_lshl_add_u32 v{SRC}, v{T1}, 3, v{SRC}
    v_cmp_gt_u32 s[80:81], 8, v{J}
    v_cmp_gt_u32 s[82:83], 2, v{G}
    s_and_b64 vcc, s[80:81], s[82:83]
    s_cmp_lt_u32 s{sRHO}, 72
    s_cselect_b64 vcc, vcc, 0
    s_cselect_b64 s[80:81], -1, 0
    v_mov_b32 v{X}, {OOB}
    v_cndmask_b32 v{vMST}, v{X}, v{vMST}, vcc
    v_cndmask_b32 v{SRC}, v{X}, v{SRC}, vcc
    v_cndmask_b32 v{vRED}, v{X}, v{vRED}, s[80:81]''')
    a(f''' v_and_b32 v{X}, 1, v{J}
    v_cmp_eq_u32 s[{sEV}:{sEV+1}], 0, v{X}
    s_mov_b32 s{sC}, 0x3e0293ee
    s_cmp_ge_u32 s{sRHO}, 64
    s_cselect_b32 s{sXM}, 1, 0
    s_mov_b32 s{sPR}, {WS_PART}
    s_mov_b32 s{sPR+1}, {WS_PART+8*PST}
    s_mov_b32 s{sPR+2}, {WS_PART+16*PST}
    s_mov_b32 s{sPR+3}, {WS_PART+24*PST}
    s_mul_i32 s{sPW}, s{sH}, {PST}
    s_add_u32 s{sPW}, s{sPW}, {WS_PART}
    s_add_u32 s{sPW}, s{sPW}, s{sOWN}
    s_lshl_b32 s{sKX}, s{sH}, 14
    s_add_u32 s{sTK}, s{sKX}, {WS_KV + (2<<19)}
    s_add_u32 s{sKX}, s{sKX}, s{sOWN}
    s_add_u32 s{sKX}, s{sKX}, {WS_KV}
    s_add_u32 s{sVX}, s{sKX}, 8192
    s_lshl_b32 s{sPUB}, s{sR}, 10
    s_add_u32 s{sPUB}, s{sPUB}, {WS_PUB}''')
    PZ = 24
    a(f'v_mov_b32 v{PZ}, -1\nv_mov_b32 v{PZ+1}, -1\nv_mov_b32 v{PZ+2}, -1\nv_mov_b32 v{PZ+3}, -1')
    a(f'buffer_load_dwordx2 v[28:29], v{SRC}, s[{sM0}:{sM0+3}], 0 offen')
    for i in range(4):
        a(f'buffer_store_dwordx4 {vr(PZ,4)}, v{vRED}, s[{sWS}:{sWS+3}], s{sPR+i} offen {SC}')
    for slot in range(1, 4):
        a(f's_mov_b32 s{sT0}, {WS_MEM + slot*PSZ}')
        a(f'buffer_store_dwordx2 {vr(PZ,2)}, v{vMST}, s[{sWS}:{sWS+3}], s{sT0} offen {SC}')
    a(f''' s_waitcnt vmcnt(0)
    s_mov_b32 s{sT0}, {WS_MEM}
    buffer_store_dwordx2 v[28:29], v{vMST}, s[{sWS}:{sWS+3}], s{sT0} offen {SC}
    s_waitcnt vmcnt(0) lgkmcnt(0)
    s_barrier
    v_mov_b32 v{X}, 4
    v_mov_b32 v{Y}, 1
    s_cmp_lg_u32 s{sW}, 0
    s_cbranch_scc1 L_bar_wait
    s_mov_b64 s[80:81], exec
    s_mov_b64 exec, 1
    buffer_atomic_add v{Y}, v{X}, s[{sDBG}:{sDBG+3}], 0 offen
    s_mov_b64 exec, s[80:81]''')
    a.label('L_bar_wait')
    a(f's_mov_b32 s{sSPIN}, 0')
    a.label('L_bar_loop')
    a(f''' buffer_load_dword v{Y}, v{X}, s[{sDBG}:{sDBG+3}], 0 offen sc1
    s_waitcnt vmcnt(0)
    v_readfirstlane_b32 s{sT0}, v{Y}
    s_add_u32 s{sSPIN}, s{sSPIN}, 1
    s_cmp_gt_u32 s{sSPIN}, 2000000
    s_cbranch_scc1 L_end
    s_cmp_lt_u32 s{sT0}, 32
    s_cbranch_scc1 L_bar_loop
    v_mov_b32 v{X}, {Wk.D_INIT*4}''')
    a.label('L_ini_loop')
    a(f''' buffer_load_dword v{Y}, v{X}, s[{sDBG}:{sDBG+3}], 0 offen sc1
    s_waitcnt vmcnt(0)
    v_readfirstlane_b32 s{sT0}, v{Y}
    s_add_u32 s{sSPIN}, s{sSPIN}, 1
    s_cmp_gt_u32 s{sSPIN}, 2000000
    s_cbranch_scc1 L_end
    s_cmp_lt_u32 s{sT0}, 224
    s_cbranch_scc1 L_ini_loop
    s_mov_b32 s{sRDY}, 0
    s_memtime s[{sTM+2}:{sTM+3}]
    s_mov_b32 s{sS}, 0
    s_mov_b32 s{sSPIN}, 0''')
    a(f"""s_waitcnt lgkmcnt(0)
    s_mov_b32 s{sMEMr}, {OOB}
    s_mov_b32 s{sMEMw}, {WS_MEM}
    s_cmp_ge_u32 s{sRHO}, 72
    s_cbranch_scc1 L_step_n""")
    step(a, True)
    a('s_branch L_fin')
    a.label('L_step_n')
    a(f'v_lshlrev_b32 v{vRED}, 3, v{vL16}')
    step(a, False)
    a.label('L_fin')
    a(f'buffer_store_dwordx4 {vr(PUB,4)}, v{vL16}, s[{sWS}:{sWS+3}], s{sPUB} offen sc1')
    a(f''' s_memtime s[84:85]
    s_waitcnt lgkmcnt(0)
    s_cmp_lg_u32 s{sR}, 0
    s_cbranch_scc1 L_end
    s_sub_u32 s{sT0}, s{sTM+2}, s{sTM}
    s_sub_u32 s{sT1}, s84, s{sTM+2}
    v_mov_b32 v30, s{sT0}
    v_mov_b32 v31, s{sT1}
    v_mov_b32 v32, s{sSPIN}
    v_mov_b32 v33, 0
    v_mov_b32 v29, 16
    s_mov_b64 exec, 1
    buffer_store_dwordx4 v[30:33], v29, s[{sDBG}:{sDBG+3}], 0 offen
    s_waitcnt vmcnt(0)''')
    a('s_branch L_end')

def smf(a, d, A, B):
    kind, b = B
    a(f'v_smfmac_f32_16x16x64_bf16 {vr(d,4)}, {vr(A,4)}, {rstr(kind,b,8)}, v{vIDX}')

STAMPS=[12,14,16,18,20,22,24,26,28,30,80,82,84,86,88,90,92,94,96,98]
nst_=[0]
def stamp(a, name):
    if not PROBE: return
    k=nst_[0]; nst_[0]+=1
    a(f's_memtime s[{STAMPS[k]}:{STAMPS[k]+1}]')
    print('stamp',k,name)
def stamp_dump(a, sfx):
    if not PROBE: return
    a(f"""s_cmp_lg_u32 s{sS}, 40
    s_cbranch_scc1 L_nodump{sfx}
    s_waitcnt lgkmcnt(0)
    v_mov_b32 v48, 0""")
    for k in range(nst_[0]): a(f'v_writelane_b32 v48, s{STAMPS[k]}, {k}')
    a(f"""s_lshl_b32 s{sT0}, s{sR}, 8
    s_add_u32 s{sT0}, s{sT0}, {200*MiB}
    v_lshrrev_b32 v49, 2, v{vL16}
    buffer_store_dword v48, v49, s[{sWS}:{sWS+3}], s{sT0} offen""")
    a.label('L_nodump'+sfx)
    nst_[0] = 0

import step8
def step(a, red):
    step8.step(a, red, globals())
```

```python
import sys
from asmdsl import *
import worker as Wk
NAME = 'gated_mix__memory_aug_recurrent_mem_tr__linear_attn_block__prompt'
def prologue(a):
    a.raw('; @launch grid=(256,1,1) block=(256,1,1) lds=163840')
    a.raw('.amdgcn_target "amdgcn-amd-amdhsa--gfx950"\n.text\n.globl %s_kernel\n.p2align 8\n.type %s_kernel,@function' % (NAME, NAME))
    a.label(NAME + '_kernel')
    a('s_cmp_ge_u32 s2, 256\ns_cbranch_scc1 L_end')
    a('''s_load_dwordx16 s[64:79], s[0:1], 0
    s_load_dwordx8 s[80:87], s[0:1], 64
    s_load_dwordx4 s[88:91], s[0:1], 96
    s_getreg_b32 s3, hwreg(HW_REG_XCC_ID)
    s_and_b32 s3, s3, 7
    v_lshrrev_b32 v1, 6, v0
    v_and_b32 v0, 63, v0
    s_waitcnt lgkmcnt(0)''')
def epilogue(a):
    a.label('L_end')
    a('s_endpgm')
    a.raw(f'''.section .rodata,"a"
.p2align 6
.amdhsa_kernel {NAME}_kernel
  .amdhsa_next_free_vgpr 512
  .amdhsa_next_free_sgpr 102
  .amdhsa_accum_offset 256
  .amdhsa_group_segment_fixed_size 0
  .amdhsa_kernarg_size 112
  .amdhsa_user_sgpr_count 2
  .amdhsa_user_sgpr_kernarg_segment_ptr 1
  .amdhsa_system_sgpr_workgroup_id_x 1
.end_amdhsa_kernel''')
def worker_entry(a):
    W = Wk
    W.srd(a, W.sDBG, W.ptr(12), 256); W.srd(a, W.sWS, W.ptr(13), 256<<20)
    a(f'''v_readfirstlane_b32 s{W.sW}, v1
    s_lshl_b32 s{W.sT0}, s3, 2
    s_add_u32 s{W.sT0}, s{W.sT0}, {W.D_TK*4}
    v_mov_b32 v10, s{W.sT0}
    v_mov_b32 v11, 1
    v_mov_b32 v12, 0
    s_cmp_lg_u32 s{W.sW}, 0
    s_cbranch_scc1 L_wtk
    s_mov_b64 exec, 1
    buffer_atomic_add v11, v10, s[{W.sDBG}:{W.sDBG+3}], 0 offen sc0
    s_waitcnt vmcnt(0)
    ds_write_b32 v12, v11
    s_waitcnt lgkmcnt(0)
    s_mov_b64 exec, -1''')
    a.label('L_wtk')
    a(f'''s_barrier
    ds_read_b32 v11, v12
    s_waitcnt lgkmcnt(0)
    v_readfirstlane_b32 s{W.sT1}, v11
    s_nop 3
    s_barrier
    s_sub_u32 s{W.sTEAM}, s3, 1
    s_lshl_b32 s{W.sI}, s{W.sTEAM}, 5
    s_add_u32 s{W.sI}, s{W.sI}, s{W.sT1}
    s_mov_b32 s92, s{W.sT1}''')
if __name__ == '__main__':
    a = Asm()
    prologue(a)
    a('s_cmp_eq_u32 s3, 0\ns_cbranch_scc1 L_end')
    a('s_memrealtime s[94:95]')
    worker_entry(a)
    Wk.worker_gemm(a)
    a(f'''s_memrealtime s[96:97]
    s_waitcnt lgkmcnt(0)
    s_sub_u32 s96, s96, s94
    v_mov_b32 v2, 20
    v_mov_b32 v3, s96
    s_mov_b64 exec, 1
    buffer_atomic_umax v3, v2, s[{Wk.sDBG}:{Wk.sDBG+3}], 0 offen
    s_waitcnt vmcnt(0)''')
    epilogue(a)
    open(sys.argv[1], 'w').write(a.text())
```

```python
import os
import worker as Wk
from asmdsl import *
def step(a, RED, g):
    globals().update({k: v for k, v in g.items() if not k.startswith('__') and k != 'step'})
    env = os.environ
    W = f's[{sWS}:{sWS+3}]'
    sfx = '_r' if RED else '_x'
    A01 = 16; AFW = [24, 28, 32]; WIN = [36, 44]
    lds = []
    def L(tag, n=1): lds.extend([tag]*n)
    def waitfor(tag):
        if tag not in lds: return
        idx = max(i for i, t in enumerate(lds) if t == tag)
        rem = len(lds) - 1 - idx
        a(f's_waitcnt lgkmcnt({min(rem,15)})')
        del lds[:idx+1]
    where = {}
    def wl(f, buf):
        base = LOC[f][1]; assert LOC[f][0] == 'l'
        a(f'ds_read_b128 {vr(buf,4)}, v{vWL} offset:{base}\nds_read_b128 {vr(buf+4,4)}, v{vWL} offset:{base+1024}')
        L(f, 2); where[f] = buf
    def mm(acc, A, f):
        if LOC[f][0] == 'l':
            waitfor(f); smf(a, acc, A, ('v', where[f]))
        else: smf(a, acc, A, LOC[f])
    def hs(X): return f'v_add_f32 v{X}, v{X}, v{X+2}\nv_add_f32 v{X+1}, v{X+1}, v{X+3}'
    def h1(X, r): return f'v_add_f32 v{X+r}, v{X+r}, v{X+r+2}'
    def z4(X): return f'v_mov_b64 {vr(X,2)}, 0\nv_mov_b64 {vr(X+2,2)}, 0'
    a.label('L_loop'+sfx)
    a(f's_add_u32 s{sT0}, s{sS}, 2\ns_cmp_ge_u32 s{sT0}, s{sRDY}\ns_cbranch_scc1 L_rdy{sfx}')
    a.label('L_rdy_done'+sfx)
    stamp(a, 'top')
    OWNA, CK = AFW[2], AFW[2]+1
    def pm_loads():
        a(f""" buffer_load_dwordx4 {vr(A01,4)}, v{vL16}, {W}, s{sMW2} offen sc1
        buffer_load_dwordx4 {vr(A01+4,4)}, v{vL16}, {W}, s{sMW2} offen offset:1024 sc1
        buffer_load_dword v{T+3}, v{vTMP}, {W}, s{sMEMw} offen sc1""")
    a(f's_add_u32 s{sMW2}, s{sMEMw}, s{sOWN}\nv_lshrrev_b32 v{vTMP}, 2, v{vL16}\nv_add_u32 v{vTMP}, s{sL4}, v{vTMP}')
    early = int(env.get('EARLY', '1'))
    if early: pm_loads()
    a(f""" s_mov_b32 s{sMEMp}, s{sMEMr}
    s_mov_b32 s{sMEMr}, s{sMEMw}
    s_and_b32 s{sEP}, s{sS}, 1""")
    wl(('qk',0,0), WIN[0]); wl(('qk',0,1), WIN[1]); wl(('qk',0,2), AFW[0])
    for i in range(0, 24, 2): a(f'v_mov_b64 {vr(ACC+i,2)}, 0')
    a(f'v_add_u32 v{OWNA}, s{sOWN}, v{vL16}')
    for p in range(3): a(f'v_add_u32 v{T+p}, s{sOWN+1+p}, v{vL16}')
    a('s_waitcnt lgkmcnt(0)'); lds.clear()
    if not early: pm_loads()
    a.label('L_pm_chk'+sfx)
    a(f""" s_waitcnt vmcnt(0)
    ds_write_b128 v{OWNA}, {vr(A01,4)}
    v_max3_u32 v{CK}, v{A01}, v{A01+1}, v{A01+2}
    v_max3_u32 v{CK+1}, v{A01+3}, v{A01+4}, v{A01+5}
    ds_write_b128 v{OWNA}, {vr(A01+4,4)} offset:1024
    v_max3_u32 v{CK}, v{CK}, v{A01+6}, v{A01+7}
    v_max3_u32 v{CK}, v{CK}, v{CK+1}, v{T+3}
    ds_write_b32 v{vTMP}, v{T+3}
    v_cmp_eq_u32 vcc, -1, v{CK}
    s_cbranch_vccnz L_pm{sfx}""")
    a.label('L_pm_done'+sfx)
    a('s_mov_b64 exec, -1')
    stamp(a, 'mem ok')
    L('mw', 3)
    Q0, Q1, K0, K1 = ACC, ACC+4, ACC+8, ACC+12
    AC = [Q0, Q1, K0, K1]
    mm(Q0, A01, ('qk',0,0)); wl(('qk',1,3), WIN[0])
    mm(Q1, A01, ('qk',0,1)); wl(('qk',2,3), WIN[1])
    mm(K0, A01, ('qk',0,2)); mm(K1, A01, ('qk',0,3))
    waitfor('mw')
    a('s_barrier')
    stamp(a, 'post B1')
    afb = {}
    def afread(slot, buf, tmp=None):
        if slot == 8: a(f'ds_read_b128 {vr(buf,4)}, v{vL16} offset:8192')
        else: a(f'ds_read_b128 {vr(buf,4)}, v{T-1+(slot>>1) if tmp is None else tmp} offset:{(slot&1)*1024}')
        L(('af', slot)); afb[slot] = buf
    for i in range(3): afread(2+i, AFW[i])
    for t in range(3): mm(AC[t], A01+4, ('qk',1,t))
    mm(ACV, A01, ('v',0,0)); mm(ACV+4, A01, ('v',0,1))
    mm(ACV, A01+4, ('v',1,0)); mm(ACV+4, A01+4, ('v',1,1))
    mm(K1, A01+4, ('qk',1,3)); wl(('qk',3,3), WIN[0])
    KX = A01
    PZ = PUB
    fill = [f'buffer_load_dwordx4 {vr(KX,4)}, v{vL16}, {W}, s{sKX} offen sc1', f's_add_u32 s{sT2}, s{sTK}, 8192', f's_add_u32 s{sT1}, s{sS}, 1',
            f'buffer_load_dwordx4 {vr(KX+4,4)}, v{vL16}, {W}, s{sKX} offen offset:1024 sc1', f's_and_b32 s{sT1}, s{sT1}, 3', f's_mul_i32 s{sMEMw}, s{sT1}, {PSZ}']
    if RED: fill += [f'v_mov_b64 {vr(PZ,2)}, -1', f'buffer_store_dwordx2 {vr(PZ,2)}, v{vMST}, {W}, s{sMEMp} offen {SC}']
    fill += [f's_add_u32 s{sMEMw}, s{sMEMw}, {WS_MEM}', f's_add_u32 s{sKX}, s{sKX}, {1<<19}']
    nvm_after_k = 1 if RED else 0
    for slot in range(2, 6):
        waitfor(('af', slot))
        for t in range(4):
            mm(AC[t], afb[slot], ('qk', slot, t))
            if t < 3 and fill: a(fill.pop(0))
        wl(('qk', slot+2, 3), WIN[(slot+1) % 2])
        afread(slot+3, afb[slot])
    assert not fill
    stamp(a, 's5 done')
    BQ0, BQ1 = WIN[0], WIN[0]+4
    VW = WIN[1]
    waitfor(('af', 6))
    mm(Q0, afb[6], ('qk',6,0)); mm(Q1, afb[6], ('qk',6,1)); mm(K1, afb[6], ('qk',6,3)); wl(('qk',8,3), WIN[1])
    waitfor(('af', 7))
    mm(Q0, afb[7], ('qk',7,0)); mm(Q1, afb[7], ('qk',7,1)); mm(K1, afb[7], ('qk',7,3))
    waitfor(('af', 8))
    mm(Q0, afb[8], ('qk',8,0)); a(f'v_mov_b64 {vr(BQ0,2)}, 0')
    mm(Q1, afb[8], ('qk',8,1)); a(f'v_mov_b64 {vr(BQ0+2,2)}, 0')
    mm(K0, afb[6], ('qk',6,2)); a(f'v_mov_b64 {vr(BQ1,2)}, 0')
    mm(K0, afb[7], ('qk',7,2)); a(f'v_mov_b64 {vr(BQ1+2,2)}, 0')
    mm(K0, afb[8], ('qk',8,2)); a(h1(Q0,0))
    mm(K1, afb[8], ('qk',8,3)); wl(('v',6,1), VW); a(h1(Q0,1))
    stamp(a, 'k done')
    vops = [(7,0),(7,1),(6,0),(8,0),(6,1),(2,0),(2,1),(8,1),(3,0),(4,0),(4,1),(3,1),(5,0),(5,1)]
    after = {1: ('af', 2, 7), 4: ('af', 3, 6), 6: ('af', 4, 7), 7: ('af', 5, 8)}
    nextl = {(6,1): (8,1), (8,1): (3,1), (3,1): (5,1)}
    bufs = dict(afb)
    st = {'i': 0}
    def vstep():
        i = st['i']
        if i >= len(vops): return
        slot, t = vops[i]
        waitfor(('af', slot))
        mm(ACV+4*t, afb[slot], ('v', slot, t))
        if (slot, t) in nextl: wl(('v',)+nextl[(slot, t)], VW)
        if i in after:
            _, sl, src = after[i]
            if sl % 2 == 0: a(f'v_add_u32 v{vTMP}, s{sOWN+(sl>>1)}, v{vL16}')
            afread(sl, bufs[src], vTMP)
        st['i'] += 1
    a(f""" {hs(Q1)}
    v_cvt_pk_bf16_f32 v{Q0+2}, v{Q0}, v{Q1}
    v_cvt_pk_bf16_f32 v{Q0+3}, v{Q0+1}, v{Q1+1}
    ds_write2_b32 v{vQKW}, v{Q0+2}, v{Q0+3} offset0:0 offset1:16
    s_mov_b64 exec, s[{sHF0}:{sHF0+1}]
    ds_read_b128 {vr(BQ0,4)}, v{vBQ}
    s_mov_b64 exec, s[{sHF1}:{sHF1+1}]
    ds_read_b128 {vr(BQ1,4)}, v{vBQ}
    s_mov_b64 exec, -1"""); L('qw'); L('bq', 2)
    a(f""" {hs(K0)}
    {hs(K1)}
    v_cvt_pk_bf16_f32 v{PUB}, v{K0}, v{K1}
    v_cvt_pk_bf16_f32 v{PUB+1}, v{K0+1}, v{K1+1}
    ds_write2_b32 v{vQKW}, v{PUB}, v{PUB+1} offset0:128 offset1:144"""); L('kw')
    AK0, AK1 = K0, K1
    S0, S1 = Q0, Q1
    a(f'ds_read_b128 {vr(AK0,4)}, v{vAKM}\nds_read_b128 {vr(AK1,4)}, v{vAKM} offset:64'); L('ak', 2)
    vstep()
    waitfor('bq')
    a(f's_waitcnt vmcnt({nvm_after_k})')
    VX = A01
    a(f""" v_mfma_f32_16x16x32_bf16 {vr(S0,4)}, {vr(KX,4)}, {vr(BQ0,4)}, 0
    v_add_u32 v{T}, s{sXW}, v{vL16}
    v_mfma_f32_16x16x32_bf16 {vr(S0,4)}, {vr(KX+4,4)}, {vr(BQ1,4)}, {vr(S0,4)}
    v_add_u32 v{T+1}, s{sX5}, v{vL16}""")
    waitfor('ak')
    stamp(a, 'ak ok')
    a(f""" v_mfma_f32_16x16x32_bf16 {vr(S1,4)}, {vr(AK0,4)}, {vr(BQ0,4)}, 0
    buffer_load_dwordx4 {vr(VX,4)}, v{vL16}, {W}, s{sVX} offen sc1
    v_mfma_f32_16x16x32_bf16 {vr(S1,4)}, {vr(AK1,4)}, {vr(BQ1,4)}, {vr(S1,4)}
    buffer_load_dwordx4 {vr(VX+4,4)}, v{vL16}, {W}, s{sVX} offen offset:1024 sc1""")
    vstep()
    a(f'ds_write_b128 v{T}, {vr(S0,4)}'); L('sx')
    vstep()
    a(f'ds_write_b32 v{T+1}, v{S1}'); L('sx')
    vstep()
    a(f'buffer_store_dwordx4 {vr(PUB,4)}, v{vL16}, {W}, s{sPUB} offen sc1')
    vstep()
    waitfor('sx')
    stamp(a, 'pre B2')
    a('s_barrier')
    stamp(a, 'post B2')
    R = ACC
    S5 = BQ0
    O0 = BQ1; O1 = T
    for w in range(4):
        a(f'ds_read_b128 {vr(R+4*w,4)}, v{vL16} offset:{L_XW+w*1024}')
    a(f'ds_read_b128 {vr(S5,4)}, v{vL16} offset:{L_SX5}'); L('sr', 5)
    vstep(); a(f'v_mov_b64 {vr(O0,2)}, 0')
    if not RED: a(f'buffer_load_dword v{vMST}, v{vRED}, {W}, s{sTK} offen sc1')
    vstep(); a(f'v_mov_b64 {vr(O0+2,2)}, 0')
    vstep(); a(f'v_mov_b64 {vr(O1,2)}, 0')
    if not RED: a(f'buffer_load_dword v{vMST}, v{vRED}, {W}, s{sT2} offen sc1\ns_add_u32 s{sTK}, s{sTK}, {1<<19}')
    vstep(); a(f'v_mov_b64 {vr(O1+2,2)}, 0\ns_add_u32 s{sVX}, s{sVX}, {1<<19}\ns_add_u32 s{sPUB}, s{sPUB}, {1<<17}')
    waitfor('sr')
    stamp(a, 'sr ok')
    Mx, M2 = R+4, R+5
    PA = R+8; ONES = R+12
    for r in range(0, 4, 2):
        a(f'v_pk_add_f32 {vr(R+r,2)}, {vr(R+r,2)}, {vr(R+4+r,2)}\nv_pk_add_f32 {vr(R+8+r,2)}, {vr(R+8+r,2)}, {vr(R+12+r,2)}')
    a(f'v_pk_add_f32 {vr(S5,2)}, {vr(S5,2)}, {vr(S5+2,2)}')
    for r in range(0, 4, 2):
        a(f'v_pk_add_f32 {vr(R+r,2)}, {vr(R+r,2)}, {vr(R+8+r,2)}')
    a(f""" v_add_f32 v{S5}, v{S5}, v{S5+1}
    v_max3_f32 v{Mx}, v{R}, v{R+1}, v{R+2}
    v_max3_f32 v{Mx}, v{Mx}, v{R+3}, v{S5}""")
    vstep()
    a(f""" v_mov_b64 {vr(ONES,2)}, s[{sONE}:{sONE+1}]
    v_max_f32_dpp v{Mx}, v{Mx}, v{Mx} quad_perm:[2,3,0,1] row_mask:0xf bank_mask:0xf
    v_mov_b32 v{M2}, v{Mx}""")
    vstep()
    a(f""" v_mov_b64 {vr(ONES+2,2)}, s[{sONE}:{sONE+1}]
    v_permlane16_swap_b32 v{M2}, v{Mx}
    v_max_f32 v{Mx}, v{Mx}, v{M2}
    v_mov_b32 v{M2}, v{Mx}""")
    vstep()
    a(f""" v_mov_b32 v{PA+3}, 0
    v_permlane32_swap_b32 v{M2}, v{Mx}
    v_max_f32 v{Mx}, v{Mx}, v{M2}""")
    vstep()
    a(f'v_mul_f32 v{Mx}, s{sC}, v{Mx}')
    for x in (R, R+1, R+2, R+3, S5):
        a(f'v_fma_f32 v{x}, v{x}, s{sC}, -v{Mx}')
    vstep()
    assert st['i'] == len(vops), st
    stamp(a, 'v issued')
    wl(('o8',1), VW)
    for i, x in enumerate((R, R+1, R+2, R+3, S5)):
        a(f'v_exp_f32 v{x}, v{x}')
    V0, V1 = ACV, ACV+4
    LS = AFW[2]
    a(f""" v_cvt_pk_bf16_f32 v{PA}, v{R}, v{R+1}
    v_cvt_pk_bf16_f32 v{PA+1}, v{R+2}, v{R+3}
    v_cvt_pk_bf16_f32 v{PA+2}, v{S5}, v{PA+3}
    s_waitcnt vmcnt({1 if RED else 3})""")
    stamp(a, 'P ready')
    accs = {'t8': S5, 0: O0, 1: O1, 2: LS, 3: ACV}
    a(f""" v_smfmac_f32_16x16x32_bf16 {vr(O0,4)}, {vr(PA,2)}, {vr(VX,4)}, v{vIDX}
    {hs(V0)}
    v_smfmac_f32_16x16x32_bf16 {vr(O1,4)}, {vr(PA,2)}, {vr(VX+4,4)}, v{vIDX}
    {hs(V1)}
    v_mfma_f32_16x16x32_bf16 {vr(LS,4)}, {vr(PA,4)}, {vr(ONES,4)}, 0
    v_cvt_pk_bf16_f32 v{V0}, v{V0}, v{V0+1}
    v_cvt_pk_bf16_f32 v{V0+1}, v{V1}, v{V1+1}
    v_cvt_pk_bf16_f32 v{V0+2}, v{V1}, v{V1+1}
    v_mov_b32 v{V0+3}, 0
    v_mov_b32 v{V1}, 0""")
    wl(('o',0,1), AFW[0])
    a(f'v_smfmac_f32_16x16x32_bf16 {vr(O0,4)}, {vr(PA+2,2)}, {vr(V0,4)}, v{vIDX} abid:2')
    wl(('o',0,3), A01)
    a(f""" {h1(LS,0)}
    v_smfmac_f32_16x16x32_bf16 {vr(O1,4)}, {vr(PA+2,2)}, {vr(V0+2,4)}, v{vIDX} abid:2
    {h1(LS,1)}
    v_rcp_f32 v{LS}, v{LS}
    v_rcp_f32 v{LS+1}, v{LS+1}
    v_mov_b64 {vr(PUB+2,2)}, {vr(V0,2)}
    {z4(accs['t8'])}
    {hs(O0)}
    {hs(O1)}
    v_pk_mul_f32 {vr(O0,2)}, {vr(O0,2)}, {vr(LS,2)}
    v_pk_mul_f32 {vr(O1,2)}, {vr(O1,2)}, {vr(LS,2)}
    v_cvt_pk_bf16_f32 v{LS+2}, v{O0}, v{O1}
    v_cvt_pk_bf16_f32 v{LS+3}, v{O0+1}, v{O1+1}
    ds_write2_b32 v{vOW}, v{LS+2}, v{LS+3} offset0:0 offset1:4
    v_and_b32 v{vTMP}, 32, v{vL16}
    v_lshl_add_u32 v{vTMP}, v{vTMP}, 5, v{vOA}
    {z4(accs[0])}
    {z4(accs[1])}
    s_waitcnt lgkmcnt(0)"""); lds.clear()
    stamp(a, 'pre B3')
    a('s_barrier')
    stamp(a, 'post B3')
    OA = [R, R+4, R+8, R+12]; OX = [ACV, ACV+4]
    for i in range(2):
        a(f'ds_read_b128 {vr(OX[i],4)}, v{vTMP} offset:{i*512}'); L(('oa', 'x%d' % i))
    for i in range(4):
        a(f'ds_read_b128 {vr(OA[i],4)}, v{vOA} offset:{i*512}'); L(('oa', i))
    a(z4(accs[2]))
    X8 = accs['t8']
    EV = f's[{sEV}:{sEV+1}]'
    def tag(r): return f'v_and_or_b32 v{r}, v{r}, -2, s{sEP}'
    post = {}
    post['t8'] = [h1(X8,0), h1(X8,1), f'v_cndmask_b32 v{X8+2}, v{X8}, v{X8+1}, {EV}',
        f'v_mov_b64 {vr(accs[3],2)}, 0',
        f'v_mov_b32_dpp v{X8+3}, v{X8+2} quad_perm:[1,0,3,2] row_mask:0xf bank_mask:0xf',
        f'v_cndmask_b32 v{X8}, v{X8+3}, v{X8}, {EV}', f'v_cndmask_b32 v{X8+1}, v{X8+1}, v{X8+3}, {EV}',
        f'v_cvt_pk_bf16_f32 v{X8}, v{X8}, v{X8+1}', tag(X8),
        f'buffer_store_dword v{X8}, v{vPS9}, {W}, s{sPW} offen {SC}', f'v_mov_b64 {vr(accs[3]+2,2)}, 0']
    for c in range(4):
        A = accs[c]; Dd = accs[c & 2]
        if c & 1 == 0:
            post[c] = [f'v_cvt_pk_bf16_f32 v{A}, v{A}, v{A+2}', f'v_cvt_pk_bf16_f32 v{A+2}, v{A+1}, v{A+3}', tag(A), tag(A+2)]
        else:
            post[c] = [f'v_cvt_pk_bf16_f32 v{Dd+1}, v{A}, v{A+2}', f'v_cvt_pk_bf16_f32 v{Dd+3}, v{A+1}, v{A+3}',
                       f'buffer_store_dwordx4 {vr(Dd,4)}, v{vL16}, {W}, s{sPW} offen offset:{(c>>1)*1024} {SC}']
    ops = [('t8', 'x0', ('o8',0)), ('t8', 'x1', ('o8',1))] + [(c, r, ('o',c,r)) for c in range(4) for r in range(4)]
    q = []
    def pop(k):
        while q and k > 0:
            x = q.pop(0); a(x)
            if not x.startswith('buffer'): k -= 1
    pend = []
    for n, (acc, af, f) in enumerate(ops):
        waitfor(('oa', af))
        if n == 0: stamp(a, 'OA ok')
        mm(accs[acc], OX[int(af[1])] if isinstance(af, str) else OA[af], f)
        for (acc2, n2) in list(pend):
            if n - n2 >= 3: q += post[acc2]; pend.remove((acc2, n2))
        if n+1 == len(ops) or ops[n+1][0] != acc: pend.append((acc, n))
        pop(1 if len(q) < 5 else 2)
    for (acc2, n2) in pend: q += post[acc2]
    pop(100)
    stamp(a, 'Wo done')
    tail = []
    if RED:
        A1, B0, D, TT = 16, 52, 72, 20
        a(f""" v_mov_b32 v{A1+2}, 0x3f80
        v_mov_b32 v{A1+3}, 0x3f800000
        v_cndmask_b32 v{A1+2}, v{A1+3}, v{A1+2}, {EV}
        v_cndmask_b32 v{A1}, 0, v{A1+2}, s[{sS0M}:{sS0M+1}]
        v_cndmask_b32 v{A1+1}, 0, v{A1+2}, s[{sS1M}:{sS1M+1}]
        v_mov_b64 {vr(A1+2,2)}, {vr(A1,2)}
        {z4(D)}
        v_mov_b64 {vr(TT,2)}, 0""")
        for _ in range(int(env.get('DELAY1', '6'))): a('s_nop 15')
        stamp(a, 'pp issue')
        ld = [f'buffer_load_dwordx4 {vr(B0+4*i,4)}, v{vRED}, {W}, s{sPR+i} offen sc1' for i in range(4)]
        for x in ld: a(x)
        tt = 0xf6
        def bt(i): return f'v_bitop3_b32 v{TT+(i&1)}, v{TT+(i&1)}, v{B0+i}, s{sEP} bitop3:{tt:#x}'
        a('s_waitcnt vmcnt(3)')
        for i in range(4): a(bt(i))
        a('s_waitcnt vmcnt(2)')
        smf(a, D, A1, ('v', B0))
        for i in range(4, 8): a(bt(i))
        a('s_waitcnt vmcnt(1)')
        for i in range(8, 12): a(bt(i))
        a('s_waitcnt vmcnt(0)')
        smf(a, D, A1, ('v', B0+8))
        for i in range(12, 16): a(bt(i))
        fin = f""" v_and_or_b32 v{TT}, v{TT+1}, s{sXM}, v{TT}
        v_and_b32 v{TT}, 1, v{TT}
        v_cmp_ne_u32 vcc, 0, v{TT}"""
        a(fin); a('s_cbranch_vccnz L_pp_retry')
        a.label('L_pp_done')
        stamp(a, 'part ok')
        for i in range(4):
            a(f'v_add_f32_dpp v{D+i}, v{D+i}, v{D+i} row_ror:8 row_mask:0xf bank_mask:0xf')
        a(f""" v_cvt_pk_bf16_f32 v{D}, v{D}, v{D+1}
        v_cvt_pk_bf16_f32 v{D+1}, v{D+2}, v{D+3}
        buffer_store_dwordx2 {vr(D,2)}, v{vMST}, {W}, s{sMEMw} offen {SC}""")
    else:
        stamp(a, 'x'); stamp(a, 'part ok')
    if int(env.get('B4', '1')): a('s_barrier')
    for _ in range(int(env.get('DELAY2', '0'))): a('s_nop 15')
    stamp(a, 'end')
    stamp_dump(a, sfx)
    a(f"""s_add_u32 s{sS}, s{sS}, 1
    s_cmp_lt_u32 s{sS}, {NSTEPS}
    s_cbranch_scc1 L_loop{sfx}
    s_branch L_exit{sfx}""")
    a.label('L_pm'+sfx)
    a('s_mov_b64 exec, vcc')
    pm_loads()
    a(f""" s_add_u32 s{sSPIN}, s{sSPIN}, 1
    s_cmp_gt_u32 s{sSPIN}, 4000000
    s_cbranch_scc1 L_pm_done{sfx}
    s_branch L_pm_chk{sfx}""")
    if RED:
        a.label('L_pp_retry')
        a('s_mov_b64 exec, vcc')
        for x in ld: a(x)
        a(f""" v_mov_b64 {vr(TT,2)}, 0
        s_add_u32 s{sSPIN}, s{sSPIN}, 1
        s_cmp_gt_u32 s{sSPIN}, 4000000
        s_cbranch_scc1 L_pp_fin
        s_waitcnt vmcnt(0)""")
        for i in range(16): a(bt(i))
        a(fin); a('s_cbranch_vccnz L_pp_retry')
        a.label('L_pp_fin')
        a(f's_mov_b64 exec, -1\n{z4(D)}')
        smf(a, D, A1, ('v', B0)); smf(a, D, A1, ('v', B0+8))
        a('s_nop 7\ns_branch L_pp_done')
    a.label('L_rdy'+sfx)
    a(f""" v_lshrrev_b32 v{T}, 2, v{vL16}
    v_and_b32 v{T}, 28, v{T}
    buffer_load_dword v{T+1}, v{T}, s[{sDBG}:{sDBG+3}], 0 offen offset:{Wk.D_KV*4} sc1
    s_add_u32 s{sSPIN}, s{sSPIN}, 1
    s_waitcnt vmcnt(0)
    v_cmp_gt_u32 vcc, 512, v{T+1}
    s_or_b32 s{sT1}, vcc_lo, 0x100
    s_ff1_i32_b32 s{sT1}, s{sT1}
    s_lshl_b32 s{sRDY}, s{sT1}, 3
    s_cmp_eq_u32 s{sT1}, 8
    s_cselect_b32 s{sRDY}, 100, s{sRDY}
    s_cmp_gt_u32 s{sSPIN}, 4000000
    s_cbranch_scc1 L_rdy_done{sfx}
    s_cmp_ge_u32 s{sT0}, s{sRDY}
    s_cbranch_scc1 L_rdy{sfx}
    s_branch L_rdy_done{sfx}""")
    a.label('L_exit'+sfx)
```

```python
import os
from asmdsl import *
MiB = 1 << 20
WS_KV, WS_QX, WS_PUB = 0, 32*MiB, 48*MiB
WS_PQ, WS_G, WS_KVP, WS_XP = 60*MiB, 64*MiB, 65*MiB, 72*MiB
PST = 9344
OOB = 0x40000000
D_TK0, D_BAR = 0, 1
D_INIT, D_BKV = 2, 3
D_KV, D_Q = 8, 16
D_TK = 32
D_X = 40
sWS, sX, sWC, sDBG, sOUT, sMI = 8, 12, 16, 20, 24, 28
sH, sW, sI, sT0, sT1, sT2, sT3, sTEAM = 32, 33, 34, 35, 36, 37, 38, 39
sSEL0, sSEL1, sSEG, sEND, sDST, sSTR, sCOL, sCNT, sCI, sBUF = 40, 41, 42, 43, 44, 45, 46, 47, 48, 49
sU0, sU1, sBLK, sPH, sSPIN, sDSTEP = 50, 51, 52, 53, 54, 55
P = 64
def ptr(i): return P + 2*i
XROW = 1168
XBUF = 32*XROW

def srd(a, s, lo, nbytes):
    a(f's_mov_b32 s{s}, s{lo}\ns_mov_b32 s{s+1}, s{lo+1}\ns_mov_b32 s{s+2}, {nbytes}\ns_mov_b32 s{s+3}, 0x00020000')

def signal(a, idx_sgpr_or_const, val, tag):
    a('s_waitcnt vmcnt(0)\ns_barrier')
    a(f's_cmp_lg_u32 s{sW}, 0\ns_cbranch_scc1 L_sig{tag}')
    a(f'v_mov_b32 v2, {idx_sgpr_or_const}\nv_mov_b32 v3, {val}\ns_mov_b64 exec, 1')
    a(f'buffer_atomic_add v3, v2, s[{sDBG}:{sDBG+3}], 0 offen\ns_mov_b64 exec, -1')
    a.label(f'L_sig{tag}')

vL16, vJ, vG = 0, 4, 5
vXA = 6
vRA = 16
vVO = 18
vT16 = 19
XS = 208
WF = 64
AFB = 24
ACC = 40

def load_weights(a, dst_kind, dst, tag_):
    NB = 4
    TB = XS
    def issue(f):
        a(f's_mul_i32 s{sT0}, s{sSTR}, {32*f}\ns_add_u32 s{sT0}, s{sT0}, s{sCOL}')
        for i in range(8):
            a(f'buffer_load_dword v{TB+(f%NB)*8+i}, v{vVO}, s[{sWC}:{sWC+3}], s{sT0} offen')
            if i < 7: a(f's_add_u32 s{sT0}, s{sT0}, s{sSTR}')
    for f in range(NB): issue(f)
    for f in range(18):
        rem = min(NB-1, 17-f)
        a(f's_waitcnt vmcnt({rem*8})')
        b = TB+(f%NB)*8
        for t in range(2):
            for p in range(4):
                d = dst + f*8 + t*4 + p
                if dst_kind == 'v':
                    a(f'v_perm_b32 v{d}, v{b+2*p+1}, v{b+2*p}, s{sSEL1 if t else sSEL0}')
                else:
                    a(f'v_perm_b32 v{AFB+t*4+p}, v{b+2*p+1}, v{b+2*p}, s{sSEL1 if t else sSEL0}')
                    a(f'v_accvgpr_write_b32 a{d}, v{AFB+t*4+p}')
        if f + NB < 18: issue(f+NB)

def xload(a):
    a(f's_mul_i32 s{sT0}, s{sSEG}, 36864')
    for i in range(9):
        a(f'buffer_load_dwordx4 {vr(XS+4*i,4)}, v{vT16}, s[{sX}:{sX+3}], s{sT0} offen')
        if i < 8: a(f's_add_u32 s{sT0}, s{sT0}, 4096')
def xwrite(a, buf):
    for i in range(9):
        a(f'ds_write_b128 v{vXA+i}, {vr(XS+4*i,4)} offset:{buf*XBUF}')

def rowaddr(a, kind):
    X, Y = 2, 3
    if kind == 'T':
        a(f'''v_lshrrev_b32 v{X}, 2, v{vJ}
        v_lshlrev_b32 v{X}, 3, v{X}
        v_bfe_u32 v{Y}, v{vJ}, 1, 1
        v_lshl_add_u32 v{X}, v{Y}, 2, v{X}
        v_and_b32 v{Y}, 1, v{vJ}
        v_add_u32 v{X}, v{X}, v{Y}''')
        d = 2
    else:
        a(f'''v_lshrrev_b32 v{X}, 2, v{vJ}
        v_lshlrev_b32 v{X}, 3, v{X}
        v_and_b32 v{Y}, 3, v{vJ}
        v_add_u32 v{X}, v{X}, v{Y}''')
        d = 4
    a(f'''v_mul_u32_u24 v{X}, {XROW}, v{X}
    v_lshl_add_u32 v{vRA}, v{vG}, 4, v{X}
    v_add_u32 v{vRA+1}, {d*XROW}, v{vRA}''')

LOG2E = 0x3fb8aa3b
def phi_pair(a, x0, x1, t0, t1, dst):
    a(f'''v_cvt_pk_bf16_f32 v{t0}, v{x0}, v{x1}
    v_lshlrev_b32 v{x0}, 16, v{t0}
    v_and_b32 v{x1}, 0xffff0000, v{t0}
    v_mul_f32 v{t0}, s{sT3}, v{x0}
    v_mul_f32 v{t1}, s{sT3}, v{x1}
    v_exp_f32 v{t0}, v{t0}
    v_exp_f32 v{t1}, v{t1}
    v_cmp_lt_f32 vcc, 0, v{x0}
    v_add_f32 v{x0}, 1.0, v{x0}
    v_cndmask_b32 v{x0}, v{t0}, v{x0}, vcc
    v_cmp_lt_f32 vcc, 0, v{x1}
    v_add_f32 v{x1}, 1.0, v{x1}
    v_cndmask_b32 v{x1}, v{t1}, v{x1}, vcc
    v_add_f32 v{x0}, s{sT2}, v{x0}
    v_add_f32 v{x1}, s{sT2}, v{x1}
    v_cvt_pk_bf16_f32 v{dst}, v{x0}, v{x1}''')

def gemm_loop(a, kind):
    W = f's[{sWS}:{sWS+3}]'
    L = 'L_g' + kind
    ACC2 = 244 - 16 + 0
    ACC2 = 56
    nt = 4 if kind == 'Bkv' else 2
    if kind == 'Bkv':
        acc = {(T, t): (ACC + (T*2+t)*4 if t < 2 else None) for T in range(2) for t in range(4)}
        extra = [56, 60, 244, 248]
        for T in range(2):
            for t in (2, 3): acc[(T, t)] = extra[T*2 + t-2]
        KVA = 160
        for i in range(16): a(f'v_accvgpr_write_b32 a{KVA+i}, 0')
        a(f'v_cmp_eq_u32 s[56:57], 9, v{vJ}')
    else:
        acc = {(T, t): ACC + (T*2+t)*4 for T in range(2) for t in range(2)}
    def wfrag(f, t):
        return vr(WF + f*8 + t*4, 4) if t < 2 else ar(f*8 + (t-2)*4, 4)
    rowaddr(a, 'T' if kind in ('T', 'Bq') else 'V')
    xload(a)
    a(f's_mov_b32 s{sCNT}, 0\ns_waitcnt vmcnt(0)')
    xwrite(a, 0)
    a(f's_waitcnt lgkmcnt(0)\ns_barrier\ns_mov_b32 s{sT3}, {LOG2E}\ns_mov_b32 s{sT2}, 0x358637bd')
    for buf in range(2):
        a.label(f'{L}_{buf}')
        a(f's_add_u32 s{sSEG}, s{sSEG}, 1')
        xload(a)
        def rd(f):
            for T in range(2):
                a(f'ds_read_b128 {vr(AFB+(f%2)*8+T*4,4)}, v{vRA+T} offset:{buf*XBUF+f*64}')
        rd(0)
        for f in range(18):
            if f+1 < 18:
                rd(f+1); a('s_waitcnt lgkmcnt(2)')
            else: a('s_waitcnt lgkmcnt(0)')
            for T in range(2):
                for t in range(nt):
                    xa = vr(AFB+(f%2)*8+T*4, 4)
                    A, B = (wfrag(f, t), xa) if kind in ('T', 'Bq') else (xa, wfrag(f, t))
                    c = '0' if f == 0 else vr(acc[(T, t)], 4)
                    a(f'v_mfma_f32_16x16x32_bf16 {vr(acc[(T,t)],4)}, {A}, {B}, {c}')
        O = AFB
        if kind == 'T':
            for T in range(2):
                for r in range(4): a(f'v_cvt_pk_bf16_f32 v{O+T*4+r}, v{acc[(T,0)]+r}, v{acc[(T,1)]+r}')
                a(f'buffer_store_dwordx4 {vr(O+T*4,4)}, v{vL16}, {W}, s{sDST} offen offset:{T*1024} sc1')
        elif kind == 'Bq':
            for T in range(2):
                for r in range(4): phi_pair(a, acc[(T,0)]+r, acc[(T,1)]+r, 2, 3, O+T*4+r)
                a(f'buffer_store_dwordx4 {vr(O+T*4,4)}, v{vL16}, {W}, s{sDST} offen offset:{T*1024} sc1')
        elif kind == 'V':
            for t in range(2):
                for T in range(2):
                    for h in range(2): a(f'v_cvt_pk_bf16_f32 v{O+t*4+T*2+h}, v{acc[(T,t)]+2*h}, v{acc[(T,t)]+2*h+1}')
                a(f'buffer_store_dwordx4 {vr(O+t*4,4)}, v{vL16}, {W}, s{sDST} offen offset:{t*1024} sc1')
        else:
            for t in range(2):
                for T in range(2):
                    for h in range(2): phi_pair(a, acc[(T,t)]+2*h, acc[(T,t)]+2*h+1, 2, 3, O+t*4+T*2+h)
            for t in range(2, 4):
                for T in range(2):
                    for h in range(2): a(f'v_cvt_pk_bf16_f32 v{O+t*4+T*2+h}, v{acc[(T,t)]+2*h}, v{acc[(T,t)]+2*h+1}')
            a('v_mov_b32 v2, 0x3f803f80')
            for i in range(4): a(f'v_cndmask_b32 v{O+8+i}, v{O+8+i}, v2, s[56:57]')
            for x in range(2):
                for y in range(2):
                    d = ar(KVA + (x*2+y)*4, 4)
                    a(f'v_mfma_f32_16x16x32_bf16 {d}, {vr(O+x*4,4)}, {vr(O+8+y*4,4)}, {d}')
        nst = 0 if kind == 'Bkv' else 2
        a(f's_add_u32 s{sDST}, s{sDST}, s{sDSTEP}\ns_add_u32 s{sCNT}, s{sCNT}, 1')
        a(f's_waitcnt vmcnt({nst})')
        xwrite(a, 1-buf)
        a('s_waitcnt lgkmcnt(0)')
        if kind != 'Bkv':
            a(f'''s_and_b32 s{sT0}, s{sSEG}, 7
            s_cmp_eq_u32 s{sT0}, 0
            s_cbranch_scc1 {L}_sig{buf}
            s_cmp_lt_u32 s{sSEG}, s{sEND}
            s_cbranch_scc1 {L}_nosig{buf}''')
            a.label(f'{L}_sig{buf}')
            a(f'''s_sub_u32 s{sT0}, s{sSEG}, 1
            s_lshr_b32 s{sT0}, s{sT0}, 3
            s_add_u32 s{sT0}, s{sT0}, s{sCI}
            s_lshl_b32 s{sT0}, s{sT0}, 2''')
            signal(a, f's{sT0}', f's{sCNT}', f'{kind}{buf}')
            a(f's_mov_b32 s{sCNT}, 0')
            a.label(f'{L}_nosig{buf}')
        a(f's_barrier\ns_cmp_ge_u32 s{sSEG}, s{sEND}\ns_cbranch_scc1 {L}_done')
        if buf == 1: a(f's_branch {L}_0')
    a.label(f'{L}_done')
    if kind == 'Bkv':
        a('s_nop 7')
        for i in range(4):
            a(f'buffer_store_dwordx4 {ar(KVA+4*i,4)}, v{vL16}, {W}, s{sDST} offen offset:{i*1024} sc1')
        signal(a, D_BKV*4, 1, 'bkvf')

def worker_gemm(a):
    W = f's[{sWS}:{sWS+3}]'
    srd(a, sX, ptr(0), 2048*1152); srd(a, sMI, ptr(10), 1152)
    a(f'''s_mov_b32 s{sSEL0}, 0x05040100
    s_mov_b32 s{sSEL1}, 0x07060302
    v_and_b32 v{vJ}, 15, v0
    v_lshrrev_b32 v{vG}, 4, v0
    v_mov_b32 v1, v0
    v_lshlrev_b32 v{vL16}, 4, v0
    s_lshl_b32 s{sT0}, s{sW}, 10
    v_add_u32 v{vT16}, s{sT0}, v{vL16}
    s_lshl_b32 s{sT1}, s{sI}, 2
    s_add_u32 s{sT1}, s{sT1}, s{sW}''')
    a('v_mov_b32 v24, -1\nv_mov_b32 v25, -1\nv_mov_b32 v26, -1\nv_mov_b32 v27, -1')
    a(f's_lshl_b32 s{sT0}, s{sT1}, 10\ns_add_u32 s{sT0}, s{sT0}, {WS_PUB}')
    for k in range(10):
        if k == 9: a(f's_cmp_ge_u32 s{sT1}, {8320-9*896}\ns_cbranch_scc1 L_pz_done')
        a(f'buffer_store_dwordx4 v[24:27], v{vL16}, {W}, s{sT0} offen sc1')
        a(f's_add_u32 s{sT0}, s{sT0}, {896*1024}')
    a.label('L_pz_done')
    a(f's_cmp_ge_u32 s{sT1}, 256\ns_cbranch_scc1 L_g_done')
    a(f'''v_lshrrev_b32 v2, 3, v1
    v_and_b32 v3, 7, v1
    v_lshlrev_b32 v3, 4, v3
    v_mul_u32_u24 v6, 1152, v2
    v_add_u32 v6, v6, v3
    s_mul_i32 s{sT0}, s{sT1}, {8*1152}''')
    for i in range(9):
        a(f'buffer_load_dwordx4 {vr(64+4*i,4)}, v6, s[{sX}:{sX+3}], s{sT0} offen offset:{i*128}')
        a(f'buffer_load_dwordx4 {vr(100+4*i,4)}, v3, s[{sMI}:{sMI+3}], 0 offen offset:{i*128}')
    a('v_mov_b32 v7, 0\nv_mov_b32 v8, 0\ns_waitcnt vmcnt(0)')
    for i in range(36):
        a(f'v_dot2_f32_bf16 v{7+(i&1)}, v{64+i}, v{100+i}, v{7+(i&1)}')
    a(f'''s_nop 3
    v_add_f32 v7, v7, v8
    s_nop 1
    v_add_f32_dpp v7, v7, v7 quad_perm:[1,0,3,2] row_mask:0xf bank_mask:0xf
    s_nop 1
    v_add_f32_dpp v7, v7, v7 quad_perm:[2,3,0,1] row_mask:0xf bank_mask:0xf
    s_nop 1
    v_add_f32_dpp v7, v7, v7 row_half_mirror row_mask:0xf bank_mask:0xf
    v_mul_f32 v7, 0xbfb8aa3b, v7
    v_exp_f32 v7, v7
    v_add_f32 v7, 1.0, v7
    v_rcp_f32 v7, v7
    v_lshlrev_b32 v2, 2, v2
    s_lshl_b32 s{sT0}, s{sT1}, 5
    s_add_u32 s{sT0}, s{sT0}, {WS_G}
    buffer_store_dword v7, v2, {W}, s{sT0} offen sc1''')
    a.label('L_g_done')
    signal(a, D_INIT*4, 1, 'init')
    for i in range(9):
        a(f'''v_lshrrev_b32 v2, 4, v{vT16}
        v_add_u32 v2, {i*256}, v2
        v_mul_u32_u24 v3, 3641, v2
        v_lshrrev_b32 v3, 18, v3
        v_mul_u32_u24 v{vXA+i}, {XROW-1152}, v3
        v_lshl_add_u32 v{vXA+i}, v2, 4, v{vXA+i}''')
    a(f's_cmp_ge_u32 s{sI}, 192\ns_cbranch_scc1 L_bkv')
    a(f'''s_mul_i32 s{sU0}, s{sI}, {104*43691}
    s_lshr_b32 s{sU0}, s{sU0}, 17
    s_add_u32 s{sT0}, s{sI}, 1
    s_mul_i32 s{sU1}, s{sT0}, {104*43691}
    s_lshr_b32 s{sU1}, s{sU1}, 17
    s_mov_b32 s{sPH}, 0''')
    a.label('L_job')
    a(f'''s_sub_u32 s{sT0}, s{sU1}, 1
    s_lshr_b32 s{sBLK}, s{sT0}, 6
    s_lshl_b32 s{sT0}, s{sBLK}, 6
    s_max_u32 s{sT1}, s{sT0}, s{sU0}
    s_sub_u32 s{sSEG}, s{sT1}, s{sT0}
    s_sub_u32 s{sEND}, s{sU1}, s{sT0}
    s_mov_b32 s{sU1}, s{sT1}''')
    a(f'''s_mov_b32 s{sSTR}, 8192
    s_mov_b32 s{sWC+2}, {576*8192}
    s_mov_b32 s{sWC+3}, 0x00020000
    v_lshlrev_b32 v{vVO}, 16, v{vG}
    v_lshl_add_u32 v{vVO}, v{vJ}, 2, v{vVO}
    s_cmp_ge_u32 s{sBLK}, 96
    s_cbranch_scc1 L_job_bq
    s_cmp_ge_u32 s{sBLK}, 64
    s_cbranch_scc1 L_job_q
    s_lshr_b32 s{sH}, s{sBLK}, 1
    s_lshl_b32 s{sCOL}, s{sH}, 8
    s_lshl_b32 s{sT0}, s{sW}, 6
    s_add_u32 s{sCOL}, s{sCOL}, s{sT0}
    s_lshl_b32 s{sDST}, s{sSEG}, 19
    s_lshl_b32 s{sT0}, s{sH}, 14
    s_add_u32 s{sDST}, s{sDST}, s{sT0}
    s_lshl_b32 s{sT0}, s{sW}, 11
    s_add_u32 s{sDST}, s{sDST}, s{sT0}
    s_mov_b32 s{sDSTEP}, {1<<19}
    s_mov_b32 s{sCI}, {D_KV}
    s_bitcmp1_b32 s{sBLK}, 0
    s_cbranch_scc1 L_job_v
    s_mov_b32 s{sWC}, s{ptr(3)}
    s_mov_b32 s{sWC+1}, s{ptr(3)+1}
    s_branch L_job_t''')
    a.label('L_job_q')
    a(f'''s_sub_u32 s{sH}, s{sBLK}, 64
    s_lshl_b32 s{sCOL}, s{sH}, 8
    s_lshl_b32 s{sT0}, s{sW}, 6
    s_add_u32 s{sCOL}, s{sCOL}, s{sT0}
    s_lshl_b32 s{sDST}, s{sSEG}, 18
    s_lshl_b32 s{sT0}, s{sH}, 13
    s_add_u32 s{sDST}, s{sDST}, s{sT0}
    s_lshl_b32 s{sT0}, s{sW}, 11
    s_add_u32 s{sDST}, s{sDST}, s{sT0}
    s_add_u32 s{sDST}, s{sDST}, {WS_QX}
    s_mov_b32 s{sDSTEP}, {1<<18}
    s_mov_b32 s{sCI}, {D_Q}
    s_mov_b32 s{sWC}, s{ptr(2)}
    s_mov_b32 s{sWC+1}, s{ptr(2)+1}''')
    a.label('L_job_t')
    load_weights(a, 'v', WF, 't')
    gemm_loop(a, 'T')
    a('s_branch L_job_next')
    a.label('L_job_v')
    a(f's_add_u32 s{sDST}, s{sDST}, 8192\ns_mov_b32 s{sWC}, s{ptr(4)}\ns_mov_b32 s{sWC+1}, s{ptr(4)+1}')
    load_weights(a, 'v', WF, 'v')
    gemm_loop(a, 'V')
    a('s_branch L_job_next')
    def bsetup():
        a(f'''s_mov_b32 s{sSTR}, 3456
        s_mov_b32 s{sWC}, s{ptr(8)}
        s_mov_b32 s{sWC+1}, s{ptr(8)+1}
        s_mov_b32 s{sWC+2}, {576*3456}
        s_mov_b32 s{sWC+3}, 0x00020000
        v_mul_u32_u24 v{vVO}, {8*3456}, v{vG}
        v_lshl_add_u32 v{vVO}, v{vJ}, 2, v{vVO}
        v_mov_b32 v2, {OOB}
        v_cmp_gt_u32 vcc, 9, v{vJ}
        v_cndmask_b32 v{vVO}, v2, v{vVO}, vcc''')
    a.label('L_job_bq')
    bsetup()
    a(f'''s_sub_u32 s{sH}, s{sBLK}, 96
    s_lshl_b32 s{sH}, s{sH}, 2
    s_add_u32 s{sH}, s{sH}, s{sW}
    s_mul_i32 s{sCOL}, s{sH}, 36
    s_lshl_b32 s{sDST}, s{sSEG}, 16
    s_lshl_b32 s{sT0}, s{sH}, 11
    s_add_u32 s{sDST}, s{sDST}, s{sT0}
    s_add_u32 s{sDST}, s{sDST}, {WS_PQ}
    s_mov_b32 s{sDSTEP}, {1<<16}
    s_mov_b32 s{sCI}, {D_Q}''')
    load_weights(a, 'v', WF, 'bq')
    gemm_loop(a, 'Bq')
    a.label('L_job_next')
    a(f's_cmp_lt_u32 s{sU0}, s{sU1}\ns_cbranch_scc1 L_job\ns_branch L_gemm_done')
    a.label('L_bkv')
    bsetup()
    a(f'''s_sub_u32 s{sT1}, s{sI}, 192
    s_lshr_b32 s{sH}, s{sT1}, 2
    s_lshl_b32 s{sH}, s{sH}, 2
    s_add_u32 s{sH}, s{sH}, s{sW}           ; head
    s_and_b32 s{sT1}, s{sT1}, 3             ; quarter
    s_lshl_b32 s{sSEG}, s{sT1}, 4
    s_add_u32 s{sEND}, s{sSEG}, 16
    s_lshl_b32 s{sDST}, s{sT1}, 17
    s_lshl_b32 s{sT0}, s{sH}, 12
    s_add_u32 s{sDST}, s{sDST}, s{sT0}
    s_add_u32 s{sDST}, s{sDST}, {WS_KVP}
    s_mov_b32 s{sDSTEP}, 0
    s_mul_i32 s{sCOL}, s{sH}, 36
    s_add_u32 s{sCOL}, s{sCOL}, {576*2}''')
    load_weights(a, 'v', WF, 'bk')
    a(f's_add_u32 s{sCOL}, s{sCOL}, {576*2}')
    load_weights(a, 'a', 0, 'bv')
    gemm_loop(a, 'Bkv')
    a.label('L_gemm_done')
```

```python
from asmdsl import *
from worker import *
import worker as Wk
vIDX = 1
(vQG, vKW, vAK, vOW, vOA, vOX, vPS9, vRED, vOUT, vGA, vGB, vZA) = range(6, 18)
MSK = 18
KVT = 22
ZT = 30
SEL = 34
ONES = 38
TMP = 42
KF, VF, BQ, AK, VM, OAC = 64, 96, 128, 160, 192, 224
L_KS = 0
L_O = 2048
sC, sEVm, sHF0, sHF1, sKVo, sQo, sPQo, sPUBo, sXPo, sRHO, sPW = 56, 58, 60, 62, 40+0, 41, 43, 44, 45, 46, 47
sXR = 92
def smf(a, d, A, B):
    a(f'v_smfmac_f32_16x16x64_bf16 {vr(d,4)}, {vr(A,4)}, {B}, v{vIDX}')

def wait_cnt(a, byteoff, shift, mask, target, tag):
    a(f'v_mov_b32 v2, {byteoff}')
    a.label(f'L_wc{tag}')
    a(f'''buffer_load_dword v3, v2, s[{sDBG}:{sDBG+3}], 0 offen sc1
    s_waitcnt vmcnt(0)
    v_readfirstlane_b32 s{sT0}, v3
    s_add_u32 s{sSPIN}, s{sSPIN}, 1
    s_lshr_b32 s{sT0}, s{sT0}, {shift}
    s_and_b32 s{sT0}, s{sT0}, {mask}
    s_cmp_ge_u32 s{sT0}, {target}
    s_cbranch_scc1 L_wd{tag}
    s_cmp_gt_u32 s{sSPIN}, 3000000
    s_cbranch_scc1 L_wd{tag}
    s_sleep 4
    s_branch L_wc{tag}''')
    a.label(f'L_wd{tag}')

def xs_pass(a, SC):
    W = f's[{sWS}:{sWS+3}]'
    X, Y, Z, RW = 2, 3, TMP, TMP+1
    a(f's_mov_b32 s{sH}, s92\ns_mov_b32 s{sSPIN}, 0')
    srd(a, sOUT, ptr(11), 2048*1152)
    srd(a, sWC, ptr(5), 4096*1152)
    srd(a, sMI, ptr(9), 576*1152)
    VO, V8 = TMP+2, TMP+3
    a(f'''v_mul_u32_u24 v{Z}, {4*1152}, v{vG}
    v_lshl_add_u32 v{VO}, v{vJ}, 4, v{Z}
    s_lshl_b32 s{sT0}, s{sW}, 8
    v_add_u32 v{VO}, s{sT0}, v{VO}
    v_lshl_add_u32 v{V8}, v{vJ}, 1, v{Z}
    s_lshl_b32 s{sT0}, s{sW}, 5
    s_add_u32 s{sT0}, s{sT0}, 1024
    v_add_u32 v{V8}, s{sT0}, v{V8}
    s_mul_i32 s{sT1}, s{sH}, 147456
    v_mov_b32 v{X}, {OOB}
    v_cmp_eq_u32 vcc, 0, v{vG}
    v_cndmask_b32 v{VO+2}, v{X}, v{VO}, vcc
    v_cndmask_b32 v{V8+2}, v{X}, v{V8}, vcc
    s_mul_i32 s{sT3}, s{sH}, {18*1152}''')
    B0 = 64
    for rho in range(4):
        for x in range(4):
            kh, p0 = x >> 1, x & 1
            a(f's_add_u32 s{sT2}, s{sT1}, {(32*rho+16*kh+2*p0)*1152}')
            a(f'buffer_load_dwordx4 {vr(B0+rho*32+x*8,4)}, v{VO}, s[{sWC}:{sWC+3}], s{sT2} offen')
            a(f'buffer_load_dwordx4 {vr(B0+rho*32+x*8+4,4)}, v{VO}, s[{sWC}:{sWC+3}], s{sT2} offen offset:1152')
    a('s_waitcnt vmcnt(0)')
    for sg in range(2):
        for b in range(8):
            kh, p0, hf = b >> 2, (b >> 1) & 1, b & 1
            a(f's_add_u32 s{sT2}, s{sT1}, {(32*(sg+2*hf)+16*kh+2*p0)*1152}')
            a(f'buffer_load_ushort v{192+sg*16+2*b}, v{V8}, s[{sWC}:{sWC+3}], s{sT2} offen')
            a(f'buffer_load_ushort v{193+sg*16+2*b}, v{V8}, s[{sWC}:{sWC+3}], s{sT2} offen offset:1152')
    for x in range(3):
        kh, p0 = x >> 1, x & 1
        a(f's_add_u32 s{sT2}, s{sT3}, {(16*kh+2*p0)*1152}')
        o = 2 if kh else 0
        a(f'buffer_load_dwordx4 {vr(224+x*8,4)}, v{VO+o}, s[{sMI}:{sMI+3}], s{sT2} offen')
        a(f'buffer_load_dwordx4 {vr(228+x*8,4)}, v{VO+o}, s[{sMI}:{sMI+3}], s{sT2} offen offset:1152')
        a(f'buffer_load_ushort v{248+2*x}, v{V8+o}, s[{sMI}:{sMI+3}], s{sT2} offen')
        a(f'buffer_load_ushort v{249+2*x}, v{V8+o}, s[{sMI}:{sMI+3}], s{sT2} offen offset:1152')
    for rho in range(4):
        for c in range(4):
            for x in range(4):
                kh, p0 = x >> 1, x & 1
                for hf in range(2):
                    a(f'v_perm_b32 v{X}, v{B0+rho*32+x*8+4+c}, v{B0+rho*32+x*8+c}, s{sSEL1 if hf else sSEL0}')
                    a(f'v_accvgpr_write_b32 a{(c*5+rho)*8+4*kh+2*p0+hf}, v{X}')
    a('s_waitcnt vmcnt(0)')
    for sg in range(2):
        for b in range(8):
            a(f'v_lshl_or_b32 v{X}, v{193+sg*16+2*b}, 16, v{192+sg*16+2*b}\nv_accvgpr_write_b32 a{160+sg*8+b}, v{X}')
    for c in range(4):
        for x in range(4):
            kh, p0 = x >> 1, x & 1
            for hf in range(2):
                d = (c*5+4)*8+4*kh+2*p0+hf
                if x == 3: a(f'v_accvgpr_write_b32 a{d}, 0')
                else:
                    a(f'v_perm_b32 v{X}, v{228+x*8+c}, v{224+x*8+c}, s{sSEL1 if hf else sSEL0}')
                    a(f'v_accvgpr_write_b32 a{d}, v{X}')
    for b in range(8):
        x, hf = b >> 1, b & 1
        if hf or x == 3: a(f'v_accvgpr_write_b32 a{176+b}, 0')
        else: a(f'v_lshl_or_b32 v{X}, v{249+2*x}, 16, v{248+2*x}\nv_accvgpr_write_b32 a{176+b}, v{X}')
    a(f'''v_and_b32 v{X}, 2, v{vJ}
    v_mov_b32 v{vIDX}, 0x00444444
    v_mov_b32 v{Y}, 0x0049EEEE
    v_cmp_ne_u32 vcc, 0, v{X}
    v_cndmask_b32 v{vIDX}, v{vIDX}, v{Y}, vcc
    s_mov_b64 s[{sHF1}:{sHF1+1}], vcc
    s_not_b64 s[{sHF0}:{sHF0+1}], vcc
    v_lshrrev_b32 v{X}, 2, v{vJ}
    v_and_b32 v{Y}, 1, v{vJ}
    v_lshl_add_u32 v{RW}, v{X}, 1, v{Y}           ; row(j) 0..7
    v_cmp_eq_u32 s[{sEVm}:{sEVm+1}], 0, v{Y}
    s_mov_b32 s{sC}, 0x3e0293ee
    s_lshl_b32 s{sRHO}, s{sW}, 5
    s_add_u32 s{sRHO}, s{sRHO}, s{sH}''')
    a(f'''v_lshrrev_b32 v{X}, 2, v{RW}
    v_and_b32 v{Y}, 1, v{RW}
    v_lshl_add_u32 v{X}, v{X}, 1, v{Y}
    s_lshl_b32 s{sT0}, s{sW}, 2
    v_add_u32 v{X}, s{sT0}, v{X}
    v_lshl_add_u32 v{X}, v{vG}, 4, v{X}
    v_lshlrev_b32 v{X}, 4, v{X}
    v_bfe_u32 v{Y}, v{RW}, 1, 1
    v_lshl_add_u32 v{vQG}, v{Y}, 10, v{X}
    v_lshlrev_b32 v{X}, 7, v{vG}
    v_lshl_add_u32 v{X}, v{vJ}, 2, v{X}
    s_lshl_b32 s{sT0}, s{sW}, 9
    v_add_u32 v{vKW}, s{sT0}, v{X}
    v_lshrrev_b32 v{X}, 2, v{vJ}
    v_lshlrev_b32 v{X}, 7, v{X}
    v_lshl_add_u32 v{vAK}, v{vG}, 4, v{X}
    v_lshl_add_u32 v{X}, v{vG}, 3, v{RW}
    v_lshlrev_b32 v{X}, 4, v{X}
    v_add_u32 v{vOA}, {L_O}, v{X}
    v_and_b32 v{Y}, 2, v{vJ}
    v_lshl_add_u32 v{vOX}, v{Y}, 9, v{vOA}
    ; OW = L_O + w*2560 + ((j>>2)*8 + 2g)*16 + (j&3)*4
    v_lshrrev_b32 v{X}, 2, v{vJ}
    v_lshlrev_b32 v{X}, 3, v{X}
    v_lshl_add_u32 v{X}, v{vG}, 1, v{X}
    v_lshlrev_b32 v{X}, 4, v{X}
    v_and_b32 v{Y}, 3, v{vJ}
    v_lshl_add_u32 v{X}, v{Y}, 2, v{X}
    s_mul_i32 s{sT0}, s{sW}, 2560
    s_add_u32 s{sT0}, s{sT0}, {L_O}
    v_add_u32 v{vOW}, s{sT0}, v{X}
    ; PS9
    v_lshrrev_b32 v{X}, 2, v{vJ}
    v_lshlrev_b32 v{X}, 1, v{X}
    v_lshl_add_u32 v{X}, v{vG}, 3, v{X}
    v_and_b32 v{Y}, 1, v{vJ}
    v_add_u32 v{X}, v{X}, v{Y}
    v_lshlrev_b32 v{X}, 3, v{X}
    v_and_b32 v{Y}, 2, v{vJ}
    v_lshl_add_u32 v{X}, v{Y}, 1, v{X}
    s_mul_i32 s{sT0}, s{sW}, 1792
    s_sub_u32 s{sT0}, 8192, s{sT0}
    v_add_u32 v{vPS9}, s{sT0}, v{X}
    ; RED
    v_lshrrev_b32 v{X}, 3, v{vJ}
    v_lshl_add_u32 v{X}, v{X}, 2, v{vG}
    v_mul_u32_u24 v{X}, {PST}, v{X}
    v_and_b32 v{Y}, 7, v{vJ}
    v_lshl_add_u32 v{Y}, v{Y}, 4, v{X}
    s_lshl_b32 s{sT0}, s{sRHO}, 7
    v_add_u32 v{vRED}, s{sT0}, v{Y}
    s_lshl_b32 s{sT0}, s{sW}, 5
    v_lshlrev_b32 v{X}, 3, v{vG}
    v_add_u32 v{vGA}, s{sT0}, v{X}
    v_lshlrev_b32 v{X}, 2, v{RW}
    v_add_u32 v{vGB}, s{sT0}, v{X}
    v_lshlrev_b32 v{X}, 8, v{vG}
    v_add_u32 v{vZA}, {9*16}, v{X}
    ; SEL
    v_mov_b32 v{X}, 0x3f80
    v_mov_b32 v{Y}, 0x3f800000
    v_cndmask_b32 v{X}, v{Y}, v{X}, s[{sEVm}:{sEVm+1}]
    v_lshrrev_b32 v{Y}, 2, v{vJ}
    v_cmp_eq_u32 vcc, 0, v{Y}
    v_cndmask_b32 v{SEL}, 0, v{X}, vcc
    v_cmp_eq_u32 vcc, 1, v{Y}
    v_cndmask_b32 v{SEL+1}, 0, v{X}, vcc
    v_mov_b32 v{SEL+2}, v{SEL}
    v_mov_b32 v{SEL+3}, v{SEL+1}''')
    for i in range(4): a(f'v_mov_b32 v{ONES+i}, 0x3f803f80')
    a(f'''v_and_b32 v{X}, 2, v{vJ}
    v_lshl_add_u32 v{X}, v{vG}, 3, v{X}
    s_lshl_b32 s{sT0}, s{sW}, 3
    v_add_u32 v{Y}, s{sT0}, v{RW}
    v_mov_b32 v{TMP+4}, 0xf149f2ca''')
    for r in range(4):
        a(f'v_add_u32 v{TMP+5}, {4*(r>>1)+(r&1)}, v{X}\nv_cmp_le_u32 vcc, v{TMP+5}, v{Y}\nv_cndmask_b32 v{MSK+r}, v{TMP+4}, 0, vcc')
    O, Q, T1, Q2, R2, H2, RR = TMP+4, TMP+5, TMP+6, TMP+7, TMP+8, TMP+9, TMP+10
    a(f'''s_lshl_b32 s{sT0}, s{sRHO}, 7
    v_and_b32 v{X}, 7, v{vJ}
    v_lshlrev_b32 v{X}, 4, v{X}
    v_and_b32 v{Y}, 1, v{vG}
    v_lshl_add_u32 v{X}, v{Y}, 3, v{X}
    v_add_u32 v{O}, s{sT0}, v{X}
    v_bfe_u32 v{X}, v{O}, 8, 2
    v_bfe_u32 v{Y}, v{O}, 3, 1
    v_lshl_add_u32 v{RR}, v{X}, 1, v{Y}
    v_lshrrev_b32 v{Q}, 11, v{O}
    v_lshlrev_b32 v{Q}, 4, v{Q}
    v_bfe_u32 v{X}, v{O}, 4, 4
    v_add_u32 v{Q}, v{Q}, v{X}
    v_bfe_u32 v{T1}, v{O}, 10, 1
    v_bfe_u32 v{X}, v{O}, 8, 2
    v_bfe_u32 v{Y}, v{O}, 5, 1
    v_lshl_add_u32 v{Q2}, v{X}, 1, v{Y}
    v_add_u32 v{Q2}, 64, v{Q2}
    v_bfe_u32 v{X}, v{O}, 6, 2
    v_bfe_u32 v{Y}, v{O}, 3, 1
    v_lshl_add_u32 v{R2}, v{X}, 1, v{Y}
    v_bfe_u32 v{H2}, v{O}, 4, 1
    v_cmp_le_u32 vcc, 0x2000, v{O}
    v_cndmask_b32 v{Q}, v{Q}, v{Q2}, vcc
    v_cndmask_b32 v{RR}, v{RR}, v{R2}, vcc
    v_cndmask_b32 v{T1}, v{T1}, v{H2}, vcc
    v_mul_u32_u24 v{vOUT}, 1152, v{RR}
    v_lshl_add_u32 v{vOUT}, v{Q}, 4, v{vOUT}
    v_lshl_add_u32 v{vOUT}, v{T1}, 3, v{vOUT}
    v_cmp_gt_u32 s[96:97], 8, v{vJ}
    v_cmp_gt_u32 s[98:99], 2, v{vG}
    s_and_b64 vcc, s[96:97], s[98:99]
    v_mov_b32 v{X}, {OOB}
    v_cndmask_b32 v{vOUT}, v{X}, v{vOUT}, vcc''')
    for i in range(0, 32, 2): a(f'v_mov_b64 {vr(VM+i,2)}, 0\nv_mov_b64 {vr(BQ+i,2)}, 0')
    wait_cnt(a, D_BKV*4, 0, '0xffff', 32, 'bkv')
    wait_cnt(a, D_INIT*4, 0, '0xffff', 224, 'ini')
    a(f's_lshl_b32 s{sT1}, s{sH}, 12\ns_add_u32 s{sT1}, s{sT1}, {WS_KVP}')
    for p in range(4):
        for ab in range(4):
            a(f'buffer_load_dwordx4 {vr(KF+p*16+ab*4,4)}, v{vL16}, {W}, s{sT1} offen offset:{ab*1024} sc1')
        for x in range(2):
            a(f'buffer_load_dwordx4 {vr(AK+p*8+x*4,4)}, v{vZA}, {W}, s{sT1} offen offset:{x*2048} sc1')
        a(f's_add_u32 s{sT1}, s{sT1}, {1<<17}')
    a('s_waitcnt vmcnt(0)')
    for p in range(1, 4):
        for i in range(16): a(f'v_add_f32 v{KF+i}, v{KF+i}, v{KF+p*16+i}')
        for i in range(8): a(f'v_add_f32 v{AK+i}, v{AK+i}, v{AK+p*8+i}')
    for r in range(4):
        a(f'v_lshlrev_b32 v{X}, 2, v{vG}\nv_add_u32 v{X}, {r}, v{X}\nv_cmp_gt_u32 vcc, 9, v{X}')
        for b in range(2):
            a(f'v_cvt_pk_bf16_f32 v{Y}, v{KF+b*4+r}, v{KF+8+b*4+r}\nv_cndmask_b32 v{KVT+b*4+r}, 0, v{Y}, vcc')
        a(f'v_cvt_pk_bf16_f32 v{Y}, v{AK+r}, v{AK+4+r}\nv_cndmask_b32 v{ZT+r}, 0, v{Y}, vcc')
    a(f's_mov_b32 s{sSEG}, s{sTEAM}')
    a.label('L_xs')
    a(f's_lshr_b32 s{sT1}, s{sSEG}, 3\ns_lshl_b32 s{sT1}, s{sT1}, 2\ns_add_u32 s{sT2}, s{sT1}, {D_KV*4}\ns_add_u32 s{sT3}, s{sT1}, {D_Q*4}')
    wait_cnt(a, f's{sT2}', 0, '0xffff', 512, 'kv')
    wait_cnt(a, f's{sT3}', 0, '0xffff', 320, 'q')
    a(f'''s_lshl_b32 s{sT0}, s{sSEG}, 5
    s_add_u32 s{sT0}, s{sT0}, s{sH}             ; s*32+h
    s_lshl_b32 s{sKVo}, s{sT0}, 14
    s_lshl_b32 s{sQo}, s{sT0}, 13
    s_add_u32 s{sQo}, s{sQo}, {WS_QX}
    s_lshl_b32 s{sPQo}, s{sT0}, 11
    s_add_u32 s{sPQo}, s{sPQo}, {WS_PQ}
    s_lshl_b32 s{sPUBo}, s{sT0}, 12
    s_add_u32 s{sPUBo}, s{sPUBo}, {WS_PUB}
    s_mul_i32 s{sXPo}, s{sSEG}, {4*32*PST}
    s_add_u32 s{sXPo}, s{sXPo}, {WS_XP}
    s_mul_i32 s{sPW}, s{sH}, {PST}
    s_add_u32 s{sPW}, s{sPW}, s{sXPo}
    s_lshl_b32 s{sT1}, s{sW}, 11
    s_add_u32 s{sPW}, s{sPW}, s{sT1}''')
    for i in range(16):
        if i % 4 == 0 and i: a(f's_add_u32 s{sKVo}, s{sKVo}, 4096')
        a(f'buffer_load_dwordx4 {vr(KF+4*i,4)}, v{vL16}, {W}, s{sKVo} offen offset:{(i%4)*1024} sc1')
    for hf in range(2):
        a(f's_mov_b64 exec, s[{(sHF0,sHF1)[hf]}:{(sHF0,sHF1)[hf]+1}]')
        for kk in range(4):
            if kk == 2: a(f's_add_u32 s{sT1}, s{sQo}, 4096')
            a(f'buffer_load_dwordx4 {vr(BQ+(kk*2+hf)*4,4)}, v{vQG}, {W}, s{sQo if kk<2 else sT1} offen offset:{(kk&1)*2048} sc1')
    PQ, GA, GB, PB = TMP, TMP+4, TMP+6, TMP+8
    a(f'''s_mov_b64 exec, -1
    buffer_load_dwordx4 {vr(PQ,4)}, v{vQG}, {W}, s{sPQo} offen sc1
    s_lshl_b32 s{sT1}, s{sSEG}, 7
    s_add_u32 s{sT1}, s{sT1}, {WS_G}
    buffer_load_dwordx2 {vr(GA,2)}, v{vGA}, {W}, s{sT1} offen sc1
    buffer_load_dword v{GB}, v{vGB}, {W}, s{sT1} offen sc1
    s_lshl_b32 s{sT1}, s{sW}, 10
    s_add_u32 s{sT1}, s{sT1}, s{sPUBo}
    s_add_u32 s{sT2}, s{sPUBo}, {1<<17}''')
    a.label('L_xp')
    a(f'buffer_load_dwordx2 {vr(PB,2)}, v{vL16}, {W}, s{sT1} offen sc1')
    for w2 in range(4):
        for tv in range(2):
            a(f'buffer_load_dword v{VM+(w2*2+tv)*4}, v{vL16}, {W}, s{sT2} offen offset:{w2*1024+8+tv*4} sc1')
    a(f'''s_add_u32 s{sSPIN}, s{sSPIN}, 1
    s_waitcnt vmcnt(0)
    v_max3_u32 v{X}, v{PB}, v{PB+1}, v{VM}
    v_max3_u32 v{X}, v{X}, v{VM+4}, v{VM+8}
    v_max3_u32 v{X}, v{X}, v{VM+12}, v{VM+16}
    v_max3_u32 v{X}, v{X}, v{VM+20}, v{VM+24}
    v_max_u32 v{X}, v{X}, v{VM+28}
    v_cmp_eq_u32 vcc, -1, v{X}
    s_cbranch_vccz L_xp_ok
    s_cmp_gt_u32 s{sSPIN}, 3000000
    s_cbranch_scc1 L_xp_ok
    s_sleep 8
    s_branch L_xp''')
    a.label('L_xp_ok')
    a(f'ds_write2_b32 v{vKW}, v{PB}, v{PB+1} offset0:0 offset1:16')
    S0, S1 = TMP+10, TMP+14
    for kk in range(4):
        for hf in range(2):
            c = vr(MSK,4) if kk+hf == 0 else vr(S0,4)
            a(f'v_mfma_f32_16x16x32_bf16 {vr(S0,4)}, {vr(KF+(kk*2+hf)*4,4)}, {vr(BQ+(kk*2+hf)*4,4)}, {c}')
    a('s_waitcnt lgkmcnt(0)\ns_barrier')
    for kk in range(4):
        for hf in range(2):
            a(f'ds_read_b128 {vr(AK+(kk*2+hf)*4,4)}, v{vAK} offset:{L_KS+kk*512+hf*64}')
    N0, N1, DN = OAC, OAC+4, OAC+8
    a(f'''v_mfma_f32_16x16x32_bf16 {vr(N0,4)}, {vr(KVT,4)}, {vr(PQ,4)}, 0
    v_mfma_f32_16x16x32_bf16 {vr(N1,4)}, {vr(KVT+4,4)}, {vr(PQ,4)}, 0
    v_mfma_f32_16x16x32_bf16 {vr(DN,4)}, {vr(ZT,4)}, {vr(PQ,4)}, 0
    v_sub_f32 v{GB}, 1.0, v{GB}
    v_add_f32 v{DN}, 0x358637bd, v{DN}
    v_rcp_f32 v{DN}, v{DN}
    v_mul_f32 v{DN}, v{DN}, v{GB}''')
    for r in range(4):
        a(f'v_mul_f32 v{N0+r}, v{N0+r}, v{DN}\nv_mul_f32 v{N1+r}, v{N1+r}, v{DN}\nv_cvt_pk_bf16_f32 v{PQ+r}, v{N0+r}, v{N1+r}')
    a(f's_mul_i32 s{sT0}, s{sW}, 2560\nv_add_u32 v{X}, s{sT0}, v{vOA}\nds_write_b128 v{X}, {vr(PQ,4)} offset:2048')
    a('s_waitcnt lgkmcnt(1)')
    for kk in range(4):
        for hf in range(2):
            c = '0' if kk+hf == 0 else vr(S1,4)
            a(f'v_mfma_f32_16x16x32_bf16 {vr(S1,4)}, {vr(AK+(kk*2+hf)*4,4)}, {vr(BQ+(kk*2+hf)*4,4)}, {c}')
    for i in range(0, 32, 2): a(f'v_mov_b64 {vr(OAC+i,2)}, 0')
    Mx, M2 = X, Y
    PA = TMP+18
    a(f'''v_max3_f32 v{Mx}, v{S0}, v{S0+1}, v{S0+2}
    v_max3_f32 v{Mx}, v{Mx}, v{S0+3}, v{S1}
    v_max_f32_dpp v{Mx}, v{Mx}, v{Mx} quad_perm:[2,3,0,1] row_mask:0xf bank_mask:0xf
    v_mov_b32 v{M2}, v{Mx}
    v_permlane16_swap_b32 v{M2}, v{Mx}
    v_max_f32 v{Mx}, v{Mx}, v{M2}
    v_mov_b32 v{M2}, v{Mx}
    v_permlane32_swap_b32 v{M2}, v{Mx}
    v_max_f32 v{Mx}, v{Mx}, v{M2}
    v_mul_f32 v{Mx}, s{sC}, v{Mx}''')
    for x in (S0, S0+1, S0+2, S0+3, S1): a(f'v_fma_f32 v{x}, v{x}, s{sC}, -v{Mx}')
    for x in (S0, S0+1, S0+2, S0+3, S1): a(f'v_exp_f32 v{x}, v{x}')
    LS = S1
    a(f'''v_mov_b32 v{PA+3}, 0
    v_cvt_pk_bf16_f32 v{PA}, v{S0}, v{S0+1}
    v_cvt_pk_bf16_f32 v{PA+1}, v{S0+2}, v{S0+3}
    v_cvt_pk_bf16_f32 v{PA+2}, v{S1}, v{PA+3}
    v_mfma_f32_16x16x32_bf16 {vr(LS,4)}, {vr(PA,4)}, {vr(ONES,4)}, 0''')
    for t in range(8):
        a(f'v_smfmac_f32_16x16x32_bf16 {vr(OAC+4*t,4)}, {vr(PA,2)}, {vr(VF+4*t,4)}, v{vIDX}')
    for t in range(8):
        a(f'v_smfmac_f32_16x16x32_bf16 {vr(OAC+4*t,4)}, {vr(PA+2,2)}, {vr(VM+4*t,4)}, v{vIDX} abid:2')
    a(f'''v_add_f32 v{LS}, v{LS}, v{LS+2}
    v_add_f32 v{LS+1}, v{LS+1}, v{LS+3}
    v_rcp_f32 v{LS}, v{LS}
    v_rcp_f32 v{LS+1}, v{LS+1}
    v_mul_f32 v{LS}, v{LS}, v{GA}
    v_mul_f32 v{LS+1}, v{LS+1}, v{GA+1}''')
    for w2 in range(4):
        A, B = OAC+8*w2, OAC+8*w2+4
        for r in range(2):
            a(f'''v_add_f32 v{A+r}, v{A+r}, v{A+r+2}
            v_add_f32 v{B+r}, v{B+r}, v{B+r+2}
            v_mul_f32 v{A+r}, v{A+r}, v{LS+r}
            v_mul_f32 v{B+r}, v{B+r}, v{LS+r}
            v_cvt_pk_bf16_f32 v{A+2+r}, v{A+r}, v{B+r}''')
        a(f'ds_write2_b32 v{vOW}, v{A+2}, v{A+3} offset0:{w2*128} offset1:{w2*128+4}' if w2 < 2 else
          f'ds_write_b32 v{vOW}, v{A+2} offset:{w2*512}\nds_write_b32 v{vOW}, v{A+3} offset:{w2*512+16}')
    a('s_waitcnt lgkmcnt(0)\ns_barrier')
    EV = f's[{sEVm}:{sEVm+1}]'
    for rg in range(4):
        OA = KF + (rg & 1)*32
        AC = AK + (rg & 1)*0
        AC = OAC if rg & 1 else AK
        for i in range(5): a(f'ds_read_b128 {vr(OA+4*i,4)}, v{vOA} offset:{rg*2560+i*512}')
        for i in range(2): a(f'ds_read_b128 {vr(OA+20+4*i,4)}, v{vOX} offset:{rg*2560+i*512}')
        for i in range(0, 20, 2): a(f'v_mov_b64 {vr(AC+i,2)}, 0')
        a('s_waitcnt lgkmcnt(0)')
        X8 = AC+16
        smf(a, X8, OA+20, ar(160,8)); smf(a, X8, OA+24, ar(168,8)); smf(a, X8, OA+16, ar(176,8))
        for c in range(4):
            for rho in range(5): smf(a, AC+4*c, OA+4*rho, ar((c*5+rho)*8, 8))
        a(f'''v_add_f32 v{X8}, v{X8}, v{X8+2}
        v_add_f32 v{X8+1}, v{X8+1}, v{X8+3}
        v_cndmask_b32 v{X8+2}, v{X8}, v{X8+1}, {EV}
        v_mov_b32_dpp v{X8+3}, v{X8+2} quad_perm:[1,0,3,2] row_mask:0xf bank_mask:0xf
        v_cndmask_b32 v{X8}, v{X8+3}, v{X8}, {EV}
        v_cndmask_b32 v{X8+1}, v{X8+1}, v{X8+3}, {EV}
        v_cvt_pk_bf16_f32 v{X8}, v{X8}, v{X8+1}
        buffer_store_dword v{X8}, v{vPS9}, {W}, s{sPW} offen {SC}''')
        for hh in range(2):
            A, B = AC+8*hh, AC+8*hh+4
            a(f'''v_cvt_pk_bf16_f32 v{A}, v{A}, v{A+2}
            v_cvt_pk_bf16_f32 v{A+2}, v{A+1}, v{A+3}
            v_cvt_pk_bf16_f32 v{A+1}, v{B}, v{B+2}
            v_cvt_pk_bf16_f32 v{A+3}, v{B+1}, v{B+3}
            buffer_store_dwordx4 {vr(A,4)}, v{vL16}, {W}, s{sPW} offen offset:{hh*1024} {SC}''')
        a(f's_add_u32 s{sPW}, s{sPW}, {32*PST}')
    a(f'''s_lshr_b32 s{sT2}, s{sSEG}, 2
    s_lshl_b32 s{sT2}, s{sT2}, 2
    s_add_u32 s{sT2}, s{sT2}, {D_X*4}
    s_and_b32 s{sT3}, s{sSEG}, 3
    s_lshl_b32 s{sT3}, s{sT3}, 3
    s_lshl_b32 s{sT1}, 1, s{sT3}''')
    signal(a, f's{sT2}', f's{sT1}', 'xs')
    a(f's_cmp_ge_u32 s{sRHO}, 72\ns_cbranch_scc1 L_xs_next')
    wait_cnt(a, f's{sT2}', f's{sT3}', '0xff', 32, 'xp')
    for rg in range(4):
        for i in range(4):
            a(f'buffer_load_dwordx4 {vr(KF+rg*16+4*i,4)}, v{vRED}, {W}, s{sXPo} offen sc1')
            a(f's_add_u32 s{sXPo}, s{sXPo}, {8*PST}')
    for i in range(0, 16, 2): a(f'v_mov_b64 {vr(OAC+i,2)}, 0')
    a(f's_mul_i32 s{sT1}, s{sSEG}, {32*1152}')
    for rg in range(4):
        a(f's_waitcnt vmcnt({12-4*rg+rg})')
        D = OAC+4*rg
        smf(a, D, SEL, vr(KF+rg*16, 8)); smf(a, D, SEL, vr(KF+rg*16+8, 8))
        for i in range(4): a(f'v_add_f32_dpp v{D+i}, v{D+i}, v{D+i} row_ror:8 row_mask:0xf bank_mask:0xf')
        a(f'''v_cvt_pk_bf16_f32 v{D}, v{D}, v{D+1}
        v_cvt_pk_bf16_f32 v{D+1}, v{D+2}, v{D+3}
        buffer_store_dwordx2 {vr(D,2)}, v{vOUT}, s[{sOUT}:{sOUT+3}], s{sT1} offen
        s_add_u32 s{sT1}, s{sT1}, {8*1152}''')
    a.label('L_xs_next')
    a(f's_add_u32 s{sSEG}, s{sSEG}, 7\ns_cmp_lt_u32 s{sSEG}, 64\ns_cbranch_scc1 L_xs')
```

```python
import sys, os
from asmdsl import *
import worker as Wk, xs, chain8, gen_w
a = Asm()
gen_w.prologue(a)
a('s_cmp_lg_u32 s3, 0\ns_cbranch_scc1 L_worker')
chain8.chain(a)
a.label('L_worker')
gen_w.worker_entry(a)
Wk.worker_gemm(a)
xs.xs_pass(a, '')
gen_w.epilogue(a)
open(sys.argv[1], 'w').write(a.text())
```

```python
import re

REG_RE = re.compile(r'\b([vas])(\d+)\b|\b([vas])\[(\d+):(\d+)\]|\b(vcc|exec|m0|scc)\b')

def regs_of(tok):
    out = []
    for m in REG_RE.finditer(tok):
        if m.group(1):
            out.append((m.group(1), int(m.group(2))))
        elif m.group(3):
            out += [(m.group(3), i) for i in range(int(m.group(4)), int(m.group(5)) + 1)]
        else:
            out.append((m.group(6), 0))
    return out

TRANS = ('v_exp_f32', 'v_log_f32', 'v_rcp_f32', 'v_rsq_f32', 'v_sqrt_f32', 'v_sin_f32', 'v_cos_f32', 'v_rcp_iflag_f32')

def mfma_passes(op):
    if '32x32' in op: return 8
    if '16x16' in op: return 4
    if '4x4x4' in op: return 2
    raise ValueError(op)

class Ins:
    def __init__(self, text):
        self.text = text
        t = text.split(';')[0].strip()
        self.op = t.split()[0] if t else ''
        rest = t[len(self.op):].strip()
        ops = [o.strip() for o in re.split(r',(?![^\[]*\])', rest)] if rest else []
        self.ops = ops
        op = self.op
        self.w = []; self.r = []
        self.kind = 'other'
        self.states = 1
        self.srcC = []; self.srcAB = []
        self.dpp = ('_dpp' in op) or any(k in rest for k in ('row_ror', 'row_shr', 'row_shl', 'quad_perm', 'row_mirror', 'row_half_mirror', 'row_bcast', 'row_newbcast'))
        if op.endswith(':') or op.startswith('.') or op == '':
            self.kind = 'label'; self.states = 0
            return
        if op == 's_nop':
            self.kind = 'nop'; self.states = int(ops[0], 0) + 1
            return
        if op.startswith('v_mfma') or op.startswith('v_smfmac'):
            self.kind = 'mfma'; self.passes = mfma_passes(op)
            self.w = regs_of(ops[0])
            self.srcAB = regs_of(ops[1]) + regs_of(ops[2])
            if op.startswith('v_smfmac'):
                self.srcC = regs_of(ops[0]); self.srcAB += regs_of(ops[3].split()[0])
            else:
                self.srcC = regs_of(ops[3].split()[0])
            self.r = self.srcAB + self.srcC
            return
        if op.startswith('v_'):
            self.kind = 'valu'
            if op.startswith('v_permlane') and 'swap' in op:
                self.w = regs_of(ops[0]) + regs_of(ops[1]); self.r = list(self.w); self.perm = True
                return
            if op.startswith('v_cmp'):
                self.w = regs_of(ops[0]); self.r = sum((regs_of(o) for o in ops[1:]), [])
                if op.startswith('v_cmpx'): self.w.append(('exec', 0))
                return
            self.w = regs_of(ops[0])
            srcs = ops[1:]
            if op.startswith(('v_add_co', 'v_sub_co', 'v_addc_co', 'v_subb_co', 'v_subrev_co')):
                self.w += regs_of(ops[1]); srcs = ops[2:]
            self.r = sum((regs_of(o.split()[0]) if o else [] for o in srcs), [])
            if op.startswith(('v_fmac', 'v_pk_fmac', 'v_dot2c', 'v_writelane')) or self.dpp:
                self.r += regs_of(ops[0])
            return
        if op.startswith('buffer_') or op.startswith('global_'):
            self.kind = 'vmem'
            isload = '_load' in op
            islds = re.search(r'\blds\b', rest) is not None
            allr = [regs_of(o.split()[0]) if o else [] for o in ops]
            if op.startswith('buffer_'):
                if op.startswith('buffer_inv') or op.startswith('buffer_wbl2'):
                    return
                if islds:
                    self.r = sum(allr, []) + [('m0', 0)]
                elif isload:
                    self.w = allr[0]; self.r = sum(allr[1:], [])
                    if 'd16' in op: self.r += allr[0]
                else:
                    self.r = sum(allr, [])
                    self.store_data = allr[0]
                    if 'atomic' in op and 'sc0' in rest: self.w = allr[0]
            else:
                if isload and not islds and 'load_lds' not in op:
                    self.w = allr[0]; self.r = sum(allr[1:], [])
                elif 'atomic' in op and 'sc0' in rest:
                    self.w = allr[0]; self.r = sum(allr[1:], [])
                else:
                    self.r = sum(allr, [])
                    self.store_data = allr[1] if len(allr) > 1 else []
            self.wide_store = (not isload) and ('x4' in op or 'x3' in op)
            return
        if op.startswith('ds_'):
            self.kind = 'ds'
            allr = [regs_of(o.split()[0]) if o else [] for o in ops]
            if op.startswith(('ds_read', 'ds_bpermute', 'ds_permute', 'ds_swizzle')) or '_rtn' in op:
                self.w = allr[0]; self.r = sum(allr[1:], [])
                if 'd16' in op: self.r += allr[0]
            else:
                self.r = sum(allr, [])
            return
        if op.startswith('s_'):
            self.kind = 'salu'
            if op.startswith(('s_cmp', 's_bitcmp')):
                self.r = sum((regs_of(o) for o in ops), []); self.w = [('scc', 0)]
            elif op.startswith(('s_cbranch', 's_branch', 's_waitcnt', 's_barrier', 's_endpgm', 's_sleep', 's_setprio')):
                pass
            else:
                if ops:
                    self.w = regs_of(ops[0]); self.r = sum((regs_of(o.split()[0]) if o else [] for o in ops[1:]), [])
                if 'saveexec' in op: self.w.append(('exec', 0))
            return

def need(prod, cons):
    n = 0
    pw = set(prod.w); cr = set(cons.r); cw = set(cons.w)
    if prod.kind == 'valu':
        vw = {x for x in pw if x[0] in 'va'}
        sw = {x for x in pw if x[0] == 's' or x[0] == 'vcc'}
        if cons.kind == 'mfma' and vw & cr: n = max(n, 2)
        if cons.kind == 'valu':
            if getattr(cons, 'perm', False) and vw & cr: n = max(n, 2)
            if cons.dpp and vw & cr: n = max(n, 2)
            if cons.op.startswith(('v_readlane', 'v_readfirstlane')) and vw & cr: n = max(n, 1)
            if prod.op.replace('_e32', '').replace('_e64', '') in TRANS and vw & cr and cons.op.replace('_e32', '').replace('_e64', '') not in TRANS: n = max(n, 1)
            if sw & cr: n = max(n, 4 if cons.op.startswith(('v_readlane', 'v_writelane')) else 2)
            if ('exec', 0) in pw:
                if cons.dpp: n = max(n, 5)
                if getattr(cons, 'perm', False) or cons.op.startswith(('v_readlane', 'v_readfirstlane', 'v_writelane')): n = max(n, 4)
        if cons.kind == 'vmem' and sw & cr: n = max(n, 5)
        if cons.kind == 'salu' and sw & cr: n = max(n, 1)
        if ('exec', 0) in pw and cons.kind == 'mfma': n = max(n, 4)
    if prod.kind == 'mfma':
        P = prod.passes
        tab_c_overlap = {2: 4, 4: 6, 8: 10, 16: 18}[P]
        tab_ab = {2: 5, 4: 8, 8: 12, 16: 20}[P]
        if cons.kind == 'mfma':
            c = set(cons.srcC)
            if pw & c:
                if list(prod.w) == list(cons.srcC) and cons.passes == P:
                    n = max(n, 2 if P == 2 else 0)
                else:
                    n = max(n, tab_c_overlap)
            if pw & set(cons.srcAB): n = max(n, tab_ab)
            if pw & cw and not (pw & c): n = max(n, tab_c_overlap)
        elif cons.kind in ('valu', 'vmem', 'ds'):
            if pw & (cr | cw): n = max(n, tab_ab)
        if cons.kind == 'valu' and set(prod.srcC) & cw:
            n = max(n, {2: 1, 4: 3, 8: 7, 16: 15}[P])
    if prod.kind == 'vmem' and getattr(prod, 'wide_store', False):
        if set(prod.store_data) & cw:
            n = max(n, 2 if cons.kind == 'valu' else 1)
    if prod.kind == 'salu' and ('m0', 0) in pw and ('m0', 0) in cr:
        n = max(n, 1)
    if prod.kind == 'salu' and ('exec', 0) in pw:
        pass
    return n

class Asm:
    def __init__(self):
        self.lines = []
    def __call__(self, text):
        for t in text.strip().split('\n'):
            t = t.strip()
            if not t: continue
            self.emit(t)
    def raw(self, t):
        i = Ins(''); i.text = t; self.lines.append(i)
    def emit(self, t):
        if t.startswith(';'):
            self.raw(t); return
        ins = Ins(t)
        if ins.kind not in ('label', 'nop'):
            dist = 0; req = 0
            for p in reversed(self.lines[-40:]):
                if p.kind == 'label':
                    continue
                k = need(p, ins) if p.kind != 'nop' else 0
                if k > dist: req = max(req, k - dist)
                dist += p.states
                if dist >= 20: break
            while req > 0:
                k = min(req, 16)
                self.lines.append(Ins('s_nop %d' % (k - 1)))
                req -= k
        self.lines.append(ins)
    def label(self, name):
        self.emit(name + ':')
    def text(self):
        out = []
        for i in self.lines:
            if i.kind == 'label' : out.append(i.text)
            else: out.append('    ' + i.text)
        return '\n'.join(out) + '\n'

def vr(b, n=1):
    return 'v%d' % b if n == 1 else 'v[%d:%d]' % (b, b + n - 1)
def ar(b, n=1):
    return 'a%d' % b if n == 1 else 'a[%d:%d]' % (b, b + n - 1)
def sr(b, n=1):
    return 's%d' % b if n == 1 else 's[%d:%d]' % (b, b + n - 1)

import os as _os
def mark(a, idx, sdbg, va=2, vb=3, inv=False):
    if not int(_os.environ.get('MARK', '0')): return
    a(f"""s_memrealtime s[96:97]
    s_mov_b64 s[98:99], exec
    s_waitcnt lgkmcnt(0)
    {'s_not_b32 s96, s96' if inv else 's_nop 0'}
    v_mov_b32 v{va}, {(56+idx)*4}
    v_mov_b32 v{vb}, s96
    s_mov_b64 exec, 1
    buffer_atomic_umax v{vb}, v{va}, s[{sdbg}:{sdbg+3}], 0 offen
    s_mov_b64 exec, s[98:99]""")
```

```python
import sys, os
from asmdsl import *
NSTEPS=int(os.environ.get('NSTEPS','64')); NOPOISON=int(os.environ.get('NOPOISON','0')); PROBE=int(os.environ.get('PROBE','0'))
NAME = 'gated_mix__memory_aug_recurrent_mem_tr__linear_attn_block__prompt'
MiB = 1 << 20
WS_KV, WS_QX, WS_PUB = 0, 32*MiB, 48*MiB
WS_PART, WS_MEM = 58*MiB, 59*MiB
PSZ = 9216
PST = 9344
L_MEMS = 0; L_XW = 9216; L_SX5 = 13312; L_OB = 14336; L_W = 16384
OOB = 0x40000000
SC = ''
sWS, sWQ, sWK, sWV, sWO, sM0, sDBG = 8, 12, 16, 20, 24, 28, 32
sH, sW, sS, sT0, sT1, sT2, sT3, sR = 36, 37, 38, 39, 40, 41, 42, 43
sMEMr, sMEMw, sMEMp, sPW, sXW, sX5, sKX, sVX, sPUB, sEP, sMW2, sL4 = 44, 45, 46, 47, 48, 49, 50, 51, 52, 53, 54, 55
sC, sSEL0, sSEL1, sSPIN = 56, 57, 58, 59
sTM = 60
sPR = 64; sOWN = 68
sRHO = 72
sTK, sXM, sRDY = 73, 74, 75
sS0M, sS1M = 100, 2
sEV = 76
sHF0, sHF1, sONE = 4, 6, 78
(vL16, vIDX, vWL, vQKW, vBQ, vAKM, vOW, vPS9, vRED, vMST, vTMP, vOA) = range(12)
PUB = 12
AF = 16; ACC = 52; ACV = 68; T = 76
LDSF = [('qk',0,0),('qk',0,1),('qk',0,2)] + [('qk',sl,3) for sl in range(1,9)] + [('v',6,1),('v',8,1),('v',3,1),('v',5,1)] + [('o8',1),('o',0,1),('o',0,3)]
assert len(LDSF) == 18
ALLF = [('qk',sl,t) for sl in range(9) for t in range(4)] + [('v',sl,t) for sl in range(9) for t in range(2)] + [('o',c,r) for c in range(4) for r in range(4)] + [('o8',0),('o8',1)]
LOC = {}
_res = [f for f in ALLF if f not in LDSF]
assert len(_res) == 54
_wo = sorted([f for f in _res if f[0] == 'o'], key=lambda f: (f[2], f[1])) + [f for f in _res if f[0] == 'o8']
_ot = [f for f in _res if f[0] in ('qk', 'v')]
for i, f in enumerate(_wo): LOC[f] = ('v', 80 + i*8)
for i, f in enumerate(_ot): LOC[f] = ('a', i*8) if i < 32 else ('v', 200 + (i-32)*8)
assert len(_wo) == 15 and len(_ot) == 39
for i, f in enumerate(LDSF): LOC[f] = ('l', i*2048)
BUFTOP = 80 + 15*8
def rstr(kind, b, n):
    return ar(b, n) if kind == 'a' else vr(b, n)
def srd(a, s, lo, nbytes):
    a(f's_mov_b32 s{s}, s{lo}\ns_mov_b32 s{s+1}, s{lo+1}\ns_mov_b32 s{s+2}, {nbytes}\ns_mov_b32 s{s+3}, 0x00020000')

def chain(a):
    import worker as Wk
    p = Wk.ptr
    srd(a, sM0, p(1), 9216); srd(a, sWQ, p(2), 576*8192); srd(a, sWK, p(3), 576*8192); srd(a, sWV, p(4), 576*8192)
    srd(a, sWO, p(5), 4096*1152); srd(a, sDBG, p(12), 256); srd(a, sWS, p(13), 256*MiB)
    a(f'v_readfirstlane_b32 s{sW}, v1')
    mark(a, 0, sDBG, 20, 21, True)
    TK = 10
    a(f''' v_mov_b32 v{TK}, 0
    v_mov_b32 v{TK+1}, 1
    s_cmp_lg_u32 s{sW}, 0
    s_cbranch_scc1 L_tk
    s_mov_b64 s[80:81], exec
    s_mov_b64 exec, 1
    buffer_atomic_add v{TK+1}, v{TK}, s[{sDBG}:{sDBG+3}], 0 offen sc0
    s_waitcnt vmcnt(0)
    ds_write_b32 v{TK}, v{TK+1}
    s_waitcnt lgkmcnt(0)
    s_mov_b64 exec, s[80:81]''')
    a.label('L_tk')
    a(f''' s_barrier
    ds_read_b32 v{TK+1}, v{TK}
    s_waitcnt lgkmcnt(0)
    v_readfirstlane_b32 s{sH}, v{TK+1}
    s_nop 3
    s_barrier
    s_cmp_ge_u32 s{sH}, 32
    s_cbranch_scc1 L_end
    s_memtime s[{sTM}:{sTM+1}]
    s_lshl_b32 s{sR}, s{sH}, 2
    s_add_u32 s{sR}, s{sR}, s{sW}
    s_lshl_b32 s{sRHO}, s{sW}, 5
    s_add_u32 s{sRHO}, s{sRHO}, s{sH}
    s_mov_b32 s{sSEL0}, 0x05040100
    s_mov_b32 s{sSEL1}, 0x07060302''')
    a(f'v_lshlrev_b32 v{vL16}, 4, v0')
    J, G, LANE, X, Y, RW = 60, 61, 62, 63, 64, 65
    a(f''' v_lshrrev_b32 v{LANE}, 4, v{vL16}
    v_and_b32 v{J}, 15, v{LANE}
    v_lshrrev_b32 v{G}, 4, v{LANE}
    v_and_b32 v{X}, 2, v{LANE}
    v_mov_b32 v{vIDX}, 0x00444444
    v_mov_b32 v{Y}, 0x0049EEEE
    v_cmp_ne_u32 vcc, 0, v{X}
    v_cndmask_b32 v{vIDX}, v{vIDX}, v{Y}, vcc
    s_mov_b64 s[{sHF1}:{sHF1+1}], vcc
    s_not_b64 s[{sHF0}:{sHF0+1}], vcc
    s_mov_b32 s{sONE}, 0x3f803f80
    s_mov_b32 s{sONE+1}, 0x3f803f80
    s_lshl_b32 s{sOWN}, s{sW}, 11
    s_xor_b32 s{sOWN+1}, s{sOWN}, 2048
    s_xor_b32 s{sOWN+2}, s{sOWN}, 4096
    s_xor_b32 s{sOWN+3}, s{sOWN}, 6144
    s_lshl_b32 s{sL4}, s{sW}, 8
    s_add_u32 s{sL4}, s{sL4}, 8192
    s_lshl_b32 s{sXW}, s{sW}, 10
    s_add_u32 s{sXW}, s{sXW}, {L_XW}
    s_lshl_b32 s{sX5}, s{sW}, 2
    s_add_u32 s{sX5}, s{sX5}, {L_SX5}
    v_lshlrev_b32 v{X}, 7, v{G}
    v_lshl_add_u32 v{X}, v{J}, 2, v{X}
    v_add_u32 v{vQKW}, s{sXW}, v{X}
    v_lshrrev_b32 v{X}, 2, v{J}
    v_and_b32 v{Y}, 1, v{J}
    v_lshl_add_u32 v{RW}, v{X}, 1, v{Y}
    v_lshlrev_b32 v{X}, 6, v{RW}
    v_lshl_add_u32 v{X}, v{G}, 4, v{X}
    v_add_u32 v{vBQ}, s{sXW}, v{X}
    v_lshrrev_b32 v{X}, 2, v{J}
    v_lshlrev_b32 v{X}, 7, v{X}
    v_lshl_add_u32 v{X}, v{G}, 4, v{X}
    v_add_u32 v{X}, 512, v{X}
    v_add_u32 v{vAKM}, s{sXW}, v{X}
    v_lshl_add_u32 v{X}, v{G}, 3, v{RW}
    v_lshlrev_b32 v{X}, 4, v{X}
    v_add_u32 v{vOA}, {L_OB}, v{X}
    v_lshrrev_b32 v{X}, 2, v{J}
    v_lshlrev_b32 v{X}, 3, v{X}
    v_lshl_add_u32 v{X}, v{G}, 1, v{X}
    v_lshlrev_b32 v{X}, 4, v{X}
    v_and_b32 v{Y}, 3, v{J}
    v_lshl_add_u32 v{X}, v{Y}, 2, v{X}
    s_lshl_b32 s{sT0}, s{sW}, 9
    s_add_u32 s{sT0}, s{sT0}, {L_OB}
    v_add_u32 v{vOW}, s{sT0}, v{X}
    v_lshrrev_b32 v{X}, 2, v{J}
    v_lshlrev_b32 v{X}, 1, v{X}
    v_lshl_add_u32 v{X}, v{G}, 3, v{X}
    v_and_b32 v{Y}, 1, v{J}
    v_add_u32 v{X}, v{X}, v{Y}
    v_lshlrev_b32 v{X}, 3, v{X}
    v_and_b32 v{Y}, 2, v{J}
    v_lshl_add_u32 v{X}, v{Y}, 1, v{X}
    s_mul_i32 s{sT0}, s{sW}, 1792
    s_sub_u32 s{sT0}, 8192, s{sT0}
    v_add_u32 v{vPS9}, s{sT0}, v{X}
    v_lshrrev_b32 v{X}, 3, v{J}
    v_lshl_add_u32 v{X}, v{X}, 2, v{G}
    v_mul_u32_u24 v{X}, {PST}, v{X}
    v_and_b32 v{Y}, 7, v{J}
    v_lshl_add_u32 v{Y}, v{Y}, 4, v{X}
    s_lshl_b32 s{sT0}, s{sRHO}, 7
    v_add_u32 v{vRED}, s{sT0}, v{Y}
    v_lshrrev_b32 v{Y}, 2, v{J}
    v_cmp_eq_u32 s[{sS0M}:{sS0M+1}], 0, v{Y}
    v_cmp_eq_u32 s[{sS1M}:{sS1M+1}], 1, v{Y}''')
    O, Q, SRC, T1, Q2, R2, H2 = 66, 67, 68, 69, 70, 71, 72
    a(f''' s_lshl_b32 s{sT0}, s{sRHO}, 7
    v_and_b32 v{X}, 7, v{J}
    v_lshlrev_b32 v{X}, 4, v{X}
    v_and_b32 v{Y}, 1, v{G}
    v_lshl_add_u32 v{X}, v{Y}, 3, v{X}
    v_add_u32 v{O}, s{sT0}, v{X}
    v_bfe_u32 v{X}, v{O}, 8, 2
    v_bfe_u32 v{Y}, v{O}, 3, 1
    v_lshl_add_u32 v{RW}, v{X}, 1, v{Y}
    v_lshrrev_b32 v{Q}, 11, v{O}
    v_lshlrev_b32 v{Q}, 4, v{Q}
    v_bfe_u32 v{X}, v{O}, 4, 4
    v_add_u32 v{Q}, v{Q}, v{X}
    v_bfe_u32 v{T1}, v{O}, 10, 1
    v_bfe_u32 v{X}, v{O}, 8, 2
    v_bfe_u32 v{Y}, v{O}, 5, 1
    v_lshl_add_u32 v{Q2}, v{X}, 1, v{Y}
    v_add_u32 v{Q2}, 64, v{Q2}
    v_bfe_u32 v{X}, v{O}, 6, 2
    v_bfe_u32 v{Y}, v{O}, 3, 1
    v_lshl_add_u32 v{R2}, v{X}, 1, v{Y}
    v_bfe_u32 v{H2}, v{O}, 4, 1
    v_cmp_le_u32 vcc, 0x2000, v{O}
    v_cndmask_b32 v{Q}, v{Q}, v{Q2}, vcc
    v_cndmask_b32 v{RW}, v{RW}, v{R2}, vcc
    v_cndmask_b32 v{T1}, v{T1}, v{H2}, vcc
    v_lshrrev_b32 v{X}, 1, v{RW}
    v_lshlrev_b32 v{X}, 2, v{X}
    v_and_b32 v{Y}, 1, v{Q}
    v_lshl_add_u32 v{X}, v{Y}, 1, v{X}
    v_and_b32 v{Y}, 1, v{RW}
    v_add_u32 v{X}, v{X}, v{Y}
    v_lshlrev_b32 v{X}, 4, v{X}
    v_lshrrev_b32 v{Y}, 1, v{Q}
    v_lshl_add_u32 v{X}, v{Y}, 8, v{X}
    v_lshl_add_u32 v{vMST}, v{T1}, 3, v{X}
    v_mul_u32_u24 v{SRC}, 1152, v{RW}
    v_lshl_add_u32 v{SRC}, v{Q}, 4, v{SRC}
    v_lshl_add_u32 v{SRC}, v{T1}, 3, v{SRC}
    v_cmp_gt_u32 s[80:81], 8, v{J}
    v_cmp_gt_u32 s[82:83], 2, v{G}
    s_and_b64 vcc, s[80:81], s[82:83]
    s_cmp_lt_u32 s{sRHO}, 72
    s_cselect_b64 vcc, vcc, 0
    s_cselect_b64 s[80:81], -1, 0
    v_mov_b32 v{X}, {OOB}
    v_cndmask_b32 v{vMST}, v{X}, v{vMST}, vcc
    v_cndmask_b32 v{SRC}, v{X}, v{SRC}, vcc
    v_cndmask_b32 v{vRED}, v{X}, v{vRED}, s[80:81]''')
    a(f''' v_and_b32 v{X}, 1, v{J}
    v_cmp_eq_u32 s[{sEV}:{sEV+1}], 0, v{X}
    s_mov_b32 s{sC}, 0x3e0293ee
    s_cmp_ge_u32 s{sRHO}, 64
    s_cselect_b32 s{sXM}, 1, 0
    s_mov_b32 s{sPR}, {WS_PART}
    s_mov_b32 s{sPR+1}, {WS_PART+8*PST}
    s_mov_b32 s{sPR+2}, {WS_PART+16*PST}
    s_mov_b32 s{sPR+3}, {WS_PART+24*PST}
    s_mul_i32 s{sPW}, s{sH}, {PST}
    s_add_u32 s{sPW}, s{sPW}, {WS_PART}
    s_add_u32 s{sPW}, s{sPW}, s{sOWN}
    s_lshl_b32 s{sKX}, s{sH}, 14
    s_add_u32 s{sTK}, s{sKX}, {WS_KV + (2<<19)}
    s_add_u32 s{sKX}, s{sKX}, s{sOWN}
    s_add_u32 s{sKX}, s{sKX}, {WS_KV}
    s_add_u32 s{sVX}, s{sKX}, 8192
    s_lshl_b32 s{sPUB}, s{sR}, 10
    s_add_u32 s{sPUB}, s{sPUB}, {WS_PUB}''')
    a(f'buffer_load_dwordx2 v[28:29], v{SRC}, s[{sM0}:{sM0+3}], 0 offen\nv_mov_b32 v30, v{vMST}\nv_mov_b32 v31, v{vRED}')
    a('v_mov_b32 v24, -1\nv_mov_b32 v25, -1\nv_mov_b32 v26, -1\nv_mov_b32 v27, -1')
    a(f'v_lshrrev_b32 v0, 4, v{vL16}')
    J, G, LANE, X, Y, Z, VO = 4, 5, 6, 7, 8, 9, 10
    a(f''' v_mov_b32 v{LANE}, v0
    v_and_b32 v{J}, 15, v{LANE}
    v_lshrrev_b32 v{G}, 4, v{LANE}
    v_lshlrev_b32 v{vL16}, 4, v{LANE}
    v_lshrrev_b32 v{X}, 1, v{G}
    v_lshlrev_b32 v{X}, 4, v{X}
    v_and_b32 v{Y}, 1, v{G}
    v_lshlrev_b32 v{Y}, 2, v{Y}
    v_add_u32 v{X}, v{X}, v{Y}
    v_lshlrev_b32 v{VO}, 13, v{X}
    v_lshl_add_u32 v{VO}, v{J}, 2, v{VO}
    v_mul_u32_u24 v{Z}, 1152, v{X}
    s_mul_i32 s{sT0}, s{sW}, 36864
    s_add_u32 s{sT0}, s{sT0}, {L_W}
    v_add_u32 v{vWL}, s{sT0}, v{vL16}''')
    SW, SR, WO4, WO8, SR2, SE, SO = 11, 12, 13, 14, 15, 3, 1
    a(f''' v_lshlrev_b32 v{SR}, 7, v{X}
    v_lshl_add_u32 v{SR}, v{J}, 2, v{SR}
    s_and_b32 s{sT0}, s{sW}, 1
    s_lshl_b32 s{sT0}, s{sT0}, 6
    v_add_u32 v{SR}, s{sT0}, v{SR}
    s_lshl_b32 s{sT0}, s{sW}, 12
    s_and_b32 s{sT1}, s{sT0}, 0x2000
    v_add_u32 v{SE}, s{sT1}, v{SR}
    v_add_u32 v{SO}, 4096, v{SE}
    v_xor_b32 v{SR2}, 4096, v{SR}
    v_add_u32 v{SR}, s{sT0}, v{SR}
    v_xor_b32 v{SR2}, 4096, v{SR}
    v_add_u32 v{SW}, s{sT0}, v{vL16}
    v_lshrrev_b32 v{X}, 3, v{LANE}
    v_lshlrev_b32 v{VO}, 13, v{X}
    v_and_b32 v{Y}, 7, v{LANE}
    v_lshl_add_u32 v{VO}, v{Y}, 4, v{VO}
    s_lshl_b32 s{sT3}, s{sH}, 8
    s_lshr_b32 s{sT0}, s{sW}, 1
    s_lshl_b32 s{sT0}, s{sT0}, 7
    s_add_u32 s{sT3}, s{sT3}, s{sT0}
    v_mul_u32_u24 v{Z}, {4*1152}, v{G}
    v_lshl_add_u32 v{WO4}, v{J}, 4, v{Z}
    s_lshl_b32 s{sT0}, s{sW}, 8
    v_add_u32 v{WO4}, s{sT0}, v{WO4}
    v_lshl_add_u32 v{WO8}, v{J}, 1, v{Z}
    s_lshl_b32 s{sT0}, s{sW}, 5
    s_add_u32 s{sT0}, s{sT0}, 1024
    v_add_u32 v{WO8}, s{sT0}, v{WO8}
    s_mul_i32 s{sT1}, s{sH}, 147456''')
    vq = ['m0']
    def vwait(tag):
        idx = max(i for i, t in enumerate(vq) if t == tag)
        a(f's_waitcnt vmcnt({min(len(vq)-1-idx, 63)})')
        del vq[:idx+1]
    RAW = 128
    for rho in range(4):
        for x in range(4):
            kh, p0 = x >> 1, x & 1
            a(f's_add_u32 s{sT2}, s{sT1}, {(32*rho+16*kh+2*p0)*1152}')
            a(f'buffer_load_dwordx4 {vr(RAW+rho*32+x*8,4)}, v{WO4}, s[{sWO}:{sWO+3}], s{sT2} offen')
            a(f'buffer_load_dwordx4 {vr(RAW+rho*32+x*8+4,4)}, v{WO4}, s[{sWO}:{sWO+3}], s{sT2} offen offset:1152')
            vq += [('wo', rho)]*2
    for i in range(4):
        a(f'buffer_store_dwordx4 v[24:27], v31, s[{sWS}:{sWS+3}], s{sPR+i} offen {SC}'); vq.append('pz')
    for slot in range(1, 4):
        a(f's_mov_b32 s{sT0}, {WS_MEM + slot*PSZ}')
        a(f'buffer_store_dwordx2 v[24:25], v30, s[{sWS}:{sWS+3}], s{sT0} offen {SC}'); vq.append('pz')
    jobs = [(m, pp, sg, kh) for m in (0, 1, 2) for pp in (0, 1) for sg in (0, 1) for kh in (0, 1)] + [(m, 8, 0, 0) for m in range(3)]
    def fr(m, slot, t): return ('qk', slot, 2*m+t) if m < 2 else ('v', slot, t)
    def parts(j):
        m, pp, sg, kh = j
        if pp == 8: return [(SE, 8, 0), (SO, 8, 1)]
        return [(SR, 4*pp+sg, kh), (SR2, 4*pp+2+sg, kh)]
    def late(j):
        return any(LOC[fr(j[0], slot, t)][0] == 'v' for (_, slot, _) in parts(j) for t in range(2))
    jobs = [j for j in jobs if not late(j)] + [j for j in jobs if late(j)]
    nlate = sum(map(late, jobs))
    free = [48, 64]
    bufn = {}
    for p in range(2): a(f's_xor_b32 s{84+p}, s{sW}, {2*p}\ns_lshl_b32 s{84+p}, s{84+p}, 20\ns_add_u32 s{84+p}, s{84+p}, s{sT3}')
    a(f's_and_b32 s86, s{sW}, 1\ns_lshl_b32 s86, s86, 18\ns_add_u32 s86, s86, s{sT3}')
    nxt = [0]
    written = set()
    def issue():
        n = nxt[0]
        if n >= len(jobs) or not free: return False
        m, pp, sg, kh = jobs[n]
        def ok(b):
            if b < 200: return True
            for k in range(n+1):
                for (_, slot, _) in parts(jobs[k]):
                    for t in range(2):
                        kind, base = LOC[fr(jobs[k][0], slot, t)]
                        if kind == 'v' and base < b+16 and base+8 > b: return False
            return True
        cand = [b for b in free if ok(b)]
        if not cand: return False
        buf = cand[-1]; free.remove(buf); bufn[n] = buf
        s = (sWQ, sWK, sWV)[m]
        for i in range(4):
            if pp < 8: a(f's_add_u32 s{sT2}, s{84+pp}, {(sg*64+32*kh+8*i)*8192}')
            else: a(f's_add_u32 s{sT2}, s86, {(512+8*i)*8192}')
            a(f'buffer_load_dwordx4 {vr(buf+4*i,4)}, v{VO}, s[{s}:{s+3}], s{sT2} offen')
        vq.extend([('j', n)]*4)
        nxt[0] += 1
        return True
    P, RD = 16, 32
    def consume(n):
        m = jobs[n][0]
        buf = bufn[n]
        vwait(('j', n))
        a('s_barrier')
        if n == 2:
            assert 'seed' not in vq
            a(f'''s_cmp_lg_u32 s{sW}, 0
            s_cbranch_scc1 L_arr
            v_mov_b32 v{RD}, 1
            s_mov_b64 exec, 1
            buffer_atomic_add v{RD}, off, s[{sDBG}:{sDBG+3}], 0 offset:4
            s_mov_b64 exec, -1''')
            a.label('L_arr')
        for i in range(4): a(f'ds_write_b128 v{SW}, {vr(buf+4*i,4)} offset:{i*1024}')
        a('s_waitcnt lgkmcnt(0)\ns_barrier')
        for q, (adr, slot, kh) in enumerate(parts(jobs[n])):
            for b in range(4):
                p0, hf = b >> 1, b & 1
                for u in range(2):
                    a(f'ds_read_b32 v{RD+8*q+2*b+u}, v{adr} offset:{(8*hf+2*p0+u)*128}')
        free.append(buf)
        while issue(): pass
        a('s_waitcnt lgkmcnt(0)')
        for q, (adr, slot, kh) in enumerate(parts(jobs[n])):
            for t in range(2):
                kind, base = LOC[fr(m, slot, t)]
                dst = base+4*kh if kind == 'v' else P + 8*q + 4*t
                for b in range(4):
                    a(f'v_perm_b32 v{dst+b}, v{RD+8*q+2*b+1}, v{RD+8*q+2*b}, s{sSEL1 if t else sSEL0}')
                if kind == 'a':
                    for b in range(4): a(f'v_accvgpr_write_b32 a{base+4*kh+b}, v{dst+b}')
                if kind == 'l':
                    a(f'ds_write_b128 v{vWL}, {vr(dst, 4)} offset:{base + kh*1024}')
    while issue(): pass
    vwait('m0')
    a(f's_mov_b32 s{sT0}, {WS_MEM}\nbuffer_store_dwordx2 v[28:29], v30, s[{sWS}:{sWS+3}], s{sT0} offen {SC}'); vq.append('seed')
    for rho in range(4):
        vwait(('wo', rho))
        for c in range(4):
            kind, base = LOC[('o', c, rho)]
            dst = base if kind == 'v' else P
            for x in range(4):
                kh, p0 = x >> 1, x & 1
                for hf in range(2):
                    a(f'v_perm_b32 v{dst+4*kh+2*p0+hf}, v{RAW+rho*32+x*8+4+c}, v{RAW+rho*32+x*8+c}, s{sSEL1 if hf else sSEL0}')
            if kind == 'l':
                for hh in range(2): a(f'ds_write_b128 v{vWL}, {vr(dst+4*hh,4)} offset:{base+hh*1024}')
        if rho == 2: free.append(208)
        if rho == 3: free.extend([224, 240])
        while issue(): pass
    for n in range(len(jobs)):
        consume(n)
    assert nxt[0] == len(jobs)
    for sg in range(2):
        for b in range(8):
            kh, p0, hf = b >> 2, (b >> 1) & 1, b & 1
            a(f's_add_u32 s{sT2}, s{sT1}, {(32*(sg+2*hf)+16*kh+2*p0)*1152}')
            a(f'buffer_load_ushort v{32+sg*16+2*b}, v{WO8}, s[{sWO}:{sWO+3}], s{sT2} offen')
            a(f'buffer_load_ushort v{33+sg*16+2*b}, v{WO8}, s[{sWO}:{sWO+3}], s{sT2} offen offset:1152')
    a('s_waitcnt vmcnt(0) lgkmcnt(0)')
    for sg in range(2):
        kind, base = LOC[('o8', sg)]
        dst = base if kind == 'v' else P
        for b in range(8): a(f'v_lshl_or_b32 v{dst+b}, v{33+sg*16+2*b}, 16, v{32+sg*16+2*b}')
        if kind == 'l':
            for hh in range(2): a(f'ds_write_b128 v{vWL}, {vr(dst+4*hh,4)} offset:{base+hh*1024}')
    a('s_waitcnt lgkmcnt(0)')
    J, G, LANE, X, Y, RW = 60, 61, 62, 63, 64, 65
    a(f''' v_lshrrev_b32 v{LANE}, 4, v{vL16}
    v_and_b32 v{J}, 15, v{LANE}
    v_lshrrev_b32 v{G}, 4, v{LANE}
    v_and_b32 v{X}, 2, v{LANE}
    v_mov_b32 v{vIDX}, 0x00444444
    v_mov_b32 v{Y}, 0x0049EEEE
    v_cmp_ne_u32 vcc, 0, v{X}
    v_cndmask_b32 v{vIDX}, v{vIDX}, v{Y}, vcc
    s_mov_b64 s[{sHF1}:{sHF1+1}], vcc
    s_not_b64 s[{sHF0}:{sHF0+1}], vcc
    s_mov_b32 s{sONE}, 0x3f803f80
    s_mov_b32 s{sONE+1}, 0x3f803f80
    s_lshl_b32 s{sOWN}, s{sW}, 11
    s_xor_b32 s{sOWN+1}, s{sOWN}, 2048
    s_xor_b32 s{sOWN+2}, s{sOWN}, 4096
    s_xor_b32 s{sOWN+3}, s{sOWN}, 6144
    s_lshl_b32 s{sL4}, s{sW}, 8
    s_add_u32 s{sL4}, s{sL4}, 8192
    s_lshl_b32 s{sXW}, s{sW}, 10
    s_add_u32 s{sXW}, s{sXW}, {L_XW}
    s_lshl_b32 s{sX5}, s{sW}, 2
    s_add_u32 s{sX5}, s{sX5}, {L_SX5}
    v_lshlrev_b32 v{X}, 7, v{G}
    v_lshl_add_u32 v{X}, v{J}, 2, v{X}
    v_add_u32 v{vQKW}, s{sXW}, v{X}
    v_lshrrev_b32 v{X}, 2, v{J}
    v_and_b32 v{Y}, 1, v{J}
    v_lshl_add_u32 v{RW}, v{X}, 1, v{Y}
    v_lshlrev_b32 v{X}, 6, v{RW}
    v_lshl_add_u32 v{X}, v{G}, 4, v{X}
    v_add_u32 v{vBQ}, s{sXW}, v{X}
    v_lshrrev_b32 v{X}, 2, v{J}
    v_lshlrev_b32 v{X}, 7, v{X}
    v_lshl_add_u32 v{X}, v{G}, 4, v{X}
    v_add_u32 v{X}, 512, v{X}
    v_add_u32 v{vAKM}, s{sXW}, v{X}
    v_lshl_add_u32 v{X}, v{G}, 3, v{RW}
    v_lshlrev_b32 v{X}, 4, v{X}
    v_add_u32 v{vOA}, {L_OB}, v{X}
    v_lshrrev_b32 v{X}, 2, v{J}
    v_lshlrev_b32 v{X}, 3, v{X}
    v_lshl_add_u32 v{X}, v{G}, 1, v{X}
    v_lshlrev_b32 v{X}, 4, v{X}
    v_and_b32 v{Y}, 3, v{J}
    v_lshl_add_u32 v{X}, v{Y}, 2, v{X}
    s_lshl_b32 s{sT0}, s{sW}, 9
    s_add_u32 s{sT0}, s{sT0}, {L_OB}
    v_add_u32 v{vOW}, s{sT0}, v{X}
    v_lshrrev_b32 v{X}, 2, v{J}
    v_lshlrev_b32 v{X}, 1, v{X}
    v_lshl_add_u32 v{X}, v{G}, 3, v{X}
    v_and_b32 v{Y}, 1, v{J}
    v_add_u32 v{X}, v{X}, v{Y}
    v_lshlrev_b32 v{X}, 3, v{X}
    v_and_b32 v{Y}, 2, v{J}
    v_lshl_add_u32 v{X}, v{Y}, 1, v{X}
    s_mul_i32 s{sT0}, s{sW}, 1792
    s_sub_u32 s{sT0}, 8192, s{sT0}
    v_add_u32 v{vPS9}, s{sT0}, v{X}
    v_lshrrev_b32 v{X}, 3, v{J}
    v_lshl_add_u32 v{X}, v{X}, 2, v{G}
    v_mul_u32_u24 v{X}, {PST}, v{X}
    v_and_b32 v{Y}, 7, v{J}
    v_lshl_add_u32 v{Y}, v{Y}, 4, v{X}
    s_lshl_b32 s{sT0}, s{sRHO}, 7
    v_add_u32 v{vRED}, s{sT0}, v{Y}
    v_lshrrev_b32 v{Y}, 2, v{J}
    v_cmp_eq_u32 s[{sS0M}:{sS0M+1}], 0, v{Y}
    v_cmp_eq_u32 s[{sS1M}:{sS1M+1}], 1, v{Y}''')
    O, Q, SRC, T1, Q2, R2, H2 = 66, 67, 68, 69, 70, 71, 72
    a(f''' s_lshl_b32 s{sT0}, s{sRHO}, 7
    v_and_b32 v{X}, 7, v{J}
    v_lshlrev_b32 v{X}, 4, v{X}
    v_and_b32 v{Y}, 1, v{G}
    v_lshl_add_u32 v{X}, v{Y}, 3, v{X}
    v_add_u32 v{O}, s{sT0}, v{X}
    v_bfe_u32 v{X}, v{O}, 8, 2
    v_bfe_u32 v{Y}, v{O}, 3, 1
    v_lshl_add_u32 v{RW}, v{X}, 1, v{Y}
    v_lshrrev_b32 v{Q}, 11, v{O}
    v_lshlrev_b32 v{Q}, 4, v{Q}
    v_bfe_u32 v{X}, v{O}, 4, 4
    v_add_u32 v{Q}, v{Q}, v{X}
    v_bfe_u32 v{T1}, v{O}, 10, 1
    v_bfe_u32 v{X}, v{O}, 8, 2
    v_bfe_u32 v{Y}, v{O}, 5, 1
    v_lshl_add_u32 v{Q2}, v{X}, 1, v{Y}
    v_add_u32 v{Q2}, 64, v{Q2}
    v_bfe_u32 v{X}, v{O}, 6, 2
    v_bfe_u32 v{Y}, v{O}, 3, 1
    v_lshl_add_u32 v{R2}, v{X}, 1, v{Y}
    v_bfe_u32 v{H2}, v{O}, 4, 1
    v_cmp_le_u32 vcc, 0x2000, v{O}
    v_cndmask_b32 v{Q}, v{Q}, v{Q2}, vcc
    v_cndmask_b32 v{RW}, v{RW}, v{R2}, vcc
    v_cndmask_b32 v{T1}, v{T1}, v{H2}, vcc
    v_lshrrev_b32 v{X}, 1, v{RW}
    v_lshlrev_b32 v{X}, 2, v{X}
    v_and_b32 v{Y}, 1, v{Q}
    v_lshl_add_u32 v{X}, v{Y}, 1, v{X}
    v_and_b32 v{Y}, 1, v{RW}
    v_add_u32 v{X}, v{X}, v{Y}
    v_lshlrev_b32 v{X}, 4, v{X}
    v_lshrrev_b32 v{Y}, 1, v{Q}
    v_lshl_add_u32 v{X}, v{Y}, 8, v{X}
    v_lshl_add_u32 v{vMST}, v{T1}, 3, v{X}
    v_mul_u32_u24 v{SRC}, 1152, v{RW}
    v_lshl_add_u32 v{SRC}, v{Q}, 4, v{SRC}
    v_lshl_add_u32 v{SRC}, v{T1}, 3, v{SRC}
    v_cmp_gt_u32 s[80:81], 8, v{J}
    v_cmp_gt_u32 s[82:83], 2, v{G}
    s_and_b64 vcc, s[80:81], s[82:83]
    s_cmp_lt_u32 s{sRHO}, 72
    s_cselect_b64 vcc, vcc, 0
    s_cselect_b64 s[80:81], -1, 0
    v_mov_b32 v{X}, {OOB}
    v_cndmask_b32 v{vMST}, v{X}, v{vMST}, vcc
    v_cndmask_b32 v{SRC}, v{X}, v{SRC}, vcc
    v_cndmask_b32 v{vRED}, v{X}, v{vRED}, s[80:81]''')
    a(f''' v_and_b32 v{X}, 1, v{J}
    v_cmp_eq_u32 s[{sEV}:{sEV+1}], 0, v{X}
    s_mov_b32 s{sC}, 0x3e0293ee
    s_cmp_ge_u32 s{sRHO}, 64
    s_cselect_b32 s{sXM}, 1, 0
    s_mov_b32 s{sPR}, {WS_PART}
    s_mov_b32 s{sPR+1}, {WS_PART+8*PST}
    s_mov_b32 s{sPR+2}, {WS_PART+16*PST}
    s_mov_b32 s{sPR+3}, {WS_PART+24*PST}
    s_mul_i32 s{sPW}, s{sH}, {PST}
    s_add_u32 s{sPW}, s{sPW}, {WS_PART}
    s_add_u32 s{sPW}, s{sPW}, s{sOWN}
    s_lshl_b32 s{sKX}, s{sH}, 14
    s_add_u32 s{sTK}, s{sKX}, {WS_KV + (2<<19)}
    s_add_u32 s{sKX}, s{sKX}, s{sOWN}
    s_add_u32 s{sKX}, s{sKX}, {WS_KV}
    s_add_u32 s{sVX}, s{sKX}, 8192
    s_lshl_b32 s{sPUB}, s{sR}, 10
    s_add_u32 s{sPUB}, s{sPUB}, {WS_PUB}''')
    mark(a, 1, sDBG, 20, 21)
    if os.environ.get('NOWORK'): a('s_waitcnt vmcnt(0)\ns_branch L_end')
    a(f's_barrier\nv_mov_b32 v{X}, 4')
    a.label('L_bar_wait')
    a(f's_mov_b32 s{sSPIN}, 0')
    a.label('L_bar_loop')
    a(f''' buffer_load_dword v{Y}, v{X}, s[{sDBG}:{sDBG+3}], 0 offen sc1
    s_waitcnt vmcnt(0)
    v_readfirstlane_b32 s{sT0}, v{Y}
    s_add_u32 s{sSPIN}, s{sSPIN}, 1
    s_cmp_gt_u32 s{sSPIN}, 2000000
    s_cbranch_scc1 L_end
    s_cmp_lt_u32 s{sT0}, 32
    s_cbranch_scc1 L_bar_loop
    v_mov_b32 v{X}, {Wk.D_INIT*4}''')
    a.label('L_ini_loop')
    a(f''' buffer_load_dword v{Y}, v{X}, s[{sDBG}:{sDBG+3}], 0 offen sc1
    s_waitcnt vmcnt(0)
    v_readfirstlane_b32 s{sT0}, v{Y}
    s_add_u32 s{sSPIN}, s{sSPIN}, 1
    s_cmp_gt_u32 s{sSPIN}, 2000000
    s_cbranch_scc1 L_end
    s_cmp_lt_u32 s{sT0}, 224
    s_cbranch_scc1 L_ini_loop
    s_mov_b32 s{sRDY}, 0
    s_memtime s[{sTM+2}:{sTM+3}]
    s_mov_b32 s{sS}, 0
    s_mov_b32 s{sSPIN}, 0''')
    a(f"""s_waitcnt lgkmcnt(0)
    s_mov_b32 s{sMEMr}, {OOB}
    s_mov_b32 s{sMEMw}, {WS_MEM}
    s_cmp_ge_u32 s{sRHO}, 72
    s_cbranch_scc1 L_step_n""")
    mark(a, 2, sDBG, 20, 21)
    step(a, True)
    a('s_branch L_fin')
    a.label('L_step_n')
    a(f'v_lshlrev_b32 v{vRED}, 3, v{vL16}\ns_cmp_eq_u32 s{sRHO}, 127\ns_cselect_b32 s{sXM}, {Wk.D_PROG*4}, s{sWS+2}')
    step(a, False)
    a(f'v_mov_b32 v20, 100\nbuffer_store_dword v20, off, s[{sDBG}:{sDBG+3}], s{sXM} sc1')
    a.label('L_fin')
    mark(a, 3, sDBG, 20, 21)
    a(f'buffer_store_dwordx4 {vr(PUB,4)}, v{vL16}, s[{sWS}:{sWS+3}], s{sPUB} offen sc1')
    a(f''' s_memtime s[84:85]
    s_waitcnt lgkmcnt(0)
    s_cmp_lg_u32 s{sR}, 0
    s_cbranch_scc1 L_end
    s_sub_u32 s{sT0}, s{sTM+2}, s{sTM}
    s_sub_u32 s{sT1}, s84, s{sTM+2}
    v_mov_b32 v30, s{sT0}
    v_mov_b32 v31, s{sT1}
    v_mov_b32 v32, s{sSPIN}
    v_mov_b32 v33, 0
    v_mov_b32 v29, 16
    s_mov_b64 exec, 1
    buffer_store_dwordx4 v[30:33], v29, s[{sDBG}:{sDBG+3}], 0 offen
    s_waitcnt vmcnt(0)''')
    a('s_branch L_end')

def smf(a, d, A, B):
    kind, b = B
    a(f'v_smfmac_f32_16x16x64_bf16 {vr(d,4)}, {vr(A,4)}, {rstr(kind,b,8)}, v{vIDX}')

STAMPS=[12,14,16,18,20,22,24,26,28,30,80,82,84,86,88,90,92,94,96,98]
nst_=[0]
def stamp(a, name):
    if not PROBE: return
    k=nst_[0]; nst_[0]+=1
    a(f's_memtime s[{STAMPS[k]}:{STAMPS[k]+1}]')
    print('stamp',k,name)
def stamp_dump(a, sfx):
    if not PROBE: return
    a(f"""s_cmp_lg_u32 s{sS}, 40
    s_cbranch_scc1 L_nodump{sfx}
    s_waitcnt lgkmcnt(0)
    v_mov_b32 v48, 0""")
    for k in range(nst_[0]): a(f'v_writelane_b32 v48, s{STAMPS[k]}, {k}')
    a(f"""s_lshl_b32 s{sT0}, s{sR}, 8
    s_add_u32 s{sT0}, s{sT0}, {200*MiB}
    v_lshrrev_b32 v49, 2, v{vL16}
    buffer_store_dword v48, v49, s[{sWS}:{sWS+3}], s{sT0} offen""")
    a.label('L_nodump'+sfx)
    nst_[0] = 0

import step8
def step(a, red):
    step8.step(a, red, globals())
```

```python
import os
import worker as Wk
from asmdsl import *
def step(a, RED, g):
    globals().update({k: v for k, v in g.items() if not k.startswith('__') and k != 'step'})
    env = os.environ
    W = f's[{sWS}:{sWS+3}]'
    sfx = '_r' if RED else '_x'
    A01 = 16; AFW = [24, 28, 32]; WIN = [36, 44]
    lds = []
    def L(tag, n=1): lds.extend([tag]*n)
    def waitfor(tag):
        if tag not in lds: return
        idx = max(i for i, t in enumerate(lds) if t == tag)
        rem = len(lds) - 1 - idx
        a(f's_waitcnt lgkmcnt({min(rem,15)})')
        del lds[:idx+1]
    where = {}
    def wl(f, buf):
        base = LOC[f][1]; assert LOC[f][0] == 'l'
        a(f'ds_read_b128 {vr(buf,4)}, v{vWL} offset:{base}\nds_read_b128 {vr(buf+4,4)}, v{vWL} offset:{base+1024}')
        L(f, 2); where[f] = buf
    def mm(acc, A, f):
        if LOC[f][0] == 'l':
            waitfor(f); smf(a, acc, A, ('v', where[f]))
        else: smf(a, acc, A, LOC[f])
    def hs(X): return f'v_add_f32 v{X}, v{X}, v{X+2}\nv_add_f32 v{X+1}, v{X+1}, v{X+3}'
    def h1(X, r): return f'v_add_f32 v{X+r}, v{X+r}, v{X+r+2}'
    def z4(X): return f'v_mov_b64 {vr(X,2)}, 0\nv_mov_b64 {vr(X+2,2)}, 0'
    a.label('L_loop'+sfx)
    a(f's_add_u32 s{sT0}, s{sS}, 2\ns_cmp_ge_u32 s{sT0}, s{sRDY}\ns_cbranch_scc1 L_rdy{sfx}')
    a.label('L_rdy_done'+sfx)
    if int(env.get('STEPT', '0')) and RED:
        a(f"""s_memtime s[96:97]
        s_memrealtime s[98:99]
        s_waitcnt lgkmcnt(0)
        s_lshl_b32 s{sT1}, s{sS}, 3
        s_lshl_b32 s{sT2}, s{sR}, 10
        s_add_u32 s{sT1}, s{sT1}, s{sT2}
        s_add_u32 s{sT1}, s{sT1}, {201*MiB}
        v_mov_b32 v{T}, s96
        v_mov_b32 v{T+1}, s98
        v_mov_b32 v{T+2}, 0
        s_mov_b64 exec, 1
        buffer_store_dwordx2 {vr(T,2)}, v{T+2}, {W}, s{sT1} offen
        s_mov_b64 exec, -1""")
    stamp(a, 'top')
    OWNA, CK = AFW[2], AFW[2]+1
    def pm_loads():
        a(f""" buffer_load_dwordx4 {vr(A01,4)}, v{vL16}, {W}, s{sMW2} offen sc1
        buffer_load_dwordx4 {vr(A01+4,4)}, v{vL16}, {W}, s{sMW2} offen offset:1024 sc1
        buffer_load_dword v{T+3}, v{vTMP}, {W}, s{sMEMw} offen sc1""")
    a(f's_add_u32 s{sMW2}, s{sMEMw}, s{sOWN}\nv_lshrrev_b32 v{vTMP}, 2, v{vL16}\nv_add_u32 v{vTMP}, s{sL4}, v{vTMP}')
    early = int(env.get('EARLY', '1'))
    if early: pm_loads()
    a(f""" s_mov_b32 s{sMEMp}, s{sMEMr}
    s_mov_b32 s{sMEMr}, s{sMEMw}
    s_and_b32 s{sEP}, s{sS}, 1""")
    wl(('qk',0,0), WIN[0]); wl(('qk',0,1), WIN[1]); wl(('qk',0,2), AFW[0])
    for i in range(0, 24, 2): a(f'v_mov_b64 {vr(ACC+i,2)}, 0')
    a(f'v_add_u32 v{OWNA}, s{sOWN}, v{vL16}')
    for p in range(3): a(f'v_add_u32 v{T+p}, s{sOWN+1+p}, v{vL16}')
    a('s_waitcnt lgkmcnt(0)'); lds.clear()
    if not early: pm_loads()
    a.label('L_pm_chk'+sfx)
    a(f""" s_waitcnt vmcnt(0)
    ds_write_b128 v{OWNA}, {vr(A01,4)}
    v_max3_u32 v{CK}, v{A01}, v{A01+1}, v{A01+2}
    v_max3_u32 v{CK+1}, v{A01+3}, v{A01+4}, v{A01+5}
    ds_write_b128 v{OWNA}, {vr(A01+4,4)} offset:1024
    v_max3_u32 v{CK}, v{CK}, v{A01+6}, v{A01+7}
    v_max3_u32 v{CK}, v{CK}, v{CK+1}, v{T+3}
    ds_write_b32 v{vTMP}, v{T+3}
    v_cmp_eq_u32 vcc, -1, v{CK}
    s_cbranch_vccnz L_pm{sfx}""")
    a.label('L_pm_done'+sfx)
    a('s_mov_b64 exec, -1')
    stamp(a, 'mem ok')
    L('mw', 3)
    Q0, Q1, K0, K1 = ACC, ACC+4, ACC+8, ACC+12
    AC = [Q0, Q1, K0, K1]
    mm(Q0, A01, ('qk',0,0)); wl(('qk',1,3), WIN[0])
    mm(Q1, A01, ('qk',0,1)); wl(('qk',2,3), WIN[1])
    mm(K0, A01, ('qk',0,2)); mm(K1, A01, ('qk',0,3))
    waitfor('mw')
    a('s_barrier')
    stamp(a, 'post B1')
    afb = {}
    def afread(slot, buf, tmp=None):
        if slot == 8: a(f'ds_read_b128 {vr(buf,4)}, v{vL16} offset:8192')
        else: a(f'ds_read_b128 {vr(buf,4)}, v{T-1+(slot>>1) if tmp is None else tmp} offset:{(slot&1)*1024}')
        L(('af', slot)); afb[slot] = buf
    for i in range(3): afread(2+i, AFW[i])
    for t in range(3): mm(AC[t], A01+4, ('qk',1,t))
    mm(ACV, A01, ('v',0,0)); mm(ACV+4, A01, ('v',0,1))
    mm(ACV, A01+4, ('v',1,0)); mm(ACV+4, A01+4, ('v',1,1))
    mm(K1, A01+4, ('qk',1,3)); wl(('qk',3,3), WIN[0])
    KX = A01
    PZ = PUB
    fill = [f'buffer_load_dwordx4 {vr(KX,4)}, v{vL16}, {W}, s{sKX} offen', f's_add_u32 s{sT2}, s{sTK}, 8192', f's_add_u32 s{sT1}, s{sS}, 1',
            f'buffer_load_dwordx4 {vr(KX+4,4)}, v{vL16}, {W}, s{sKX} offen offset:1024', f's_and_b32 s{sT1}, s{sT1}, 3', f's_mul_i32 s{sMEMw}, s{sT1}, {PSZ}']
    if RED: fill += [f'v_mov_b64 {vr(PZ,2)}, -1', f'buffer_store_dwordx2 {vr(PZ,2)}, v{vMST}, {W}, s{sMEMp} offen {SC}']
    fill += [f's_add_u32 s{sMEMw}, s{sMEMw}, {WS_MEM}', f's_add_u32 s{sKX}, s{sKX}, {1<<19}']
    nvm_after_k = 1 if RED else 0
    for slot in range(2, 6):
        waitfor(('af', slot))
        for t in range(4):
            mm(AC[t], afb[slot], ('qk', slot, t))
            if t < 3 and fill: a(fill.pop(0))
        wl(('qk', slot+2, 3), WIN[(slot+1) % 2])
        afread(slot+3, afb[slot])
    assert not fill
    stamp(a, 's5 done')
    BQ0, BQ1 = WIN[0], WIN[0]+4
    VW = WIN[1]
    waitfor(('af', 6))
    mm(Q0, afb[6], ('qk',6,0)); mm(Q1, afb[6], ('qk',6,1)); mm(K1, afb[6], ('qk',6,3)); wl(('qk',8,3), WIN[1])
    waitfor(('af', 7))
    mm(Q0, afb[7], ('qk',7,0)); mm(Q1, afb[7], ('qk',7,1)); mm(K1, afb[7], ('qk',7,3))
    waitfor(('af', 8))
    mm(Q0, afb[8], ('qk',8,0)); a(f'v_mov_b64 {vr(BQ0,2)}, 0')
    mm(Q1, afb[8], ('qk',8,1)); a(f'v_mov_b64 {vr(BQ0+2,2)}, 0')
    mm(K0, afb[6], ('qk',6,2)); a(f'v_mov_b64 {vr(BQ1,2)}, 0')
    mm(K0, afb[7], ('qk',7,2)); a(f'v_mov_b64 {vr(BQ1+2,2)}, 0')
    mm(K0, afb[8], ('qk',8,2)); a(h1(Q0,0))
    mm(K1, afb[8], ('qk',8,3)); wl(('v',6,1), VW); a(h1(Q0,1))
    stamp(a, 'k done')
    vops = [(7,0),(7,1),(6,0),(8,0),(6,1),(2,0),(2,1),(8,1),(3,0),(4,0),(4,1),(3,1),(5,0),(5,1)]
    after = {1: ('af', 2, 7), 4: ('af', 3, 6), 6: ('af', 4, 7), 7: ('af', 5, 8)}
    nextl = {(6,1): (8,1), (8,1): (3,1), (3,1): (5,1)}
    bufs = dict(afb)
    st = {'i': 0}
    def vstep():
        i = st['i']
        if i >= len(vops): return
        slot, t = vops[i]
        waitfor(('af', slot))
        mm(ACV+4*t, afb[slot], ('v', slot, t))
        if (slot, t) in nextl: wl(('v',)+nextl[(slot, t)], VW)
        if i in after:
            _, sl, src = after[i]
            if sl % 2 == 0: a(f'v_add_u32 v{vTMP}, s{sOWN+(sl>>1)}, v{vL16}')
            afread(sl, bufs[src], vTMP)
        st['i'] += 1
    a(f""" {hs(Q1)}
    v_cvt_pk_bf16_f32 v{Q0+2}, v{Q0}, v{Q1}
    v_cvt_pk_bf16_f32 v{Q0+3}, v{Q0+1}, v{Q1+1}
    ds_write2_b32 v{vQKW}, v{Q0+2}, v{Q0+3} offset0:0 offset1:16
    s_mov_b64 exec, s[{sHF0}:{sHF0+1}]
    ds_read_b128 {vr(BQ0,4)}, v{vBQ}
    s_mov_b64 exec, s[{sHF1}:{sHF1+1}]
    ds_read_b128 {vr(BQ1,4)}, v{vBQ}
    s_mov_b64 exec, -1"""); L('qw'); L('bq', 2)
    a(f""" {hs(K0)}
    {hs(K1)}
    v_cvt_pk_bf16_f32 v{PUB}, v{K0}, v{K1}
    v_cvt_pk_bf16_f32 v{PUB+1}, v{K0+1}, v{K1+1}
    ds_write2_b32 v{vQKW}, v{PUB}, v{PUB+1} offset0:128 offset1:144"""); L('kw')
    AK0, AK1 = K0, K1
    S0, S1 = Q0, Q1
    a(f'ds_read_b128 {vr(AK0,4)}, v{vAKM}\nds_read_b128 {vr(AK1,4)}, v{vAKM} offset:64'); L('ak', 2)
    vstep()
    waitfor('bq')
    a(f's_waitcnt vmcnt({nvm_after_k})')
    VX = A01
    a(f""" v_mfma_f32_16x16x32_bf16 {vr(S0,4)}, {vr(KX,4)}, {vr(BQ0,4)}, 0
    v_add_u32 v{T}, s{sXW}, v{vL16}
    v_mfma_f32_16x16x32_bf16 {vr(S0,4)}, {vr(KX+4,4)}, {vr(BQ1,4)}, {vr(S0,4)}
    v_add_u32 v{T+1}, s{sX5}, v{vL16}""")
    waitfor('ak')
    stamp(a, 'ak ok')
    a(f""" v_mfma_f32_16x16x32_bf16 {vr(S1,4)}, {vr(AK0,4)}, {vr(BQ0,4)}, 0
    buffer_load_dwordx4 {vr(VX,4)}, v{vL16}, {W}, s{sVX} offen
    v_mfma_f32_16x16x32_bf16 {vr(S1,4)}, {vr(AK1,4)}, {vr(BQ1,4)}, {vr(S1,4)}
    buffer_load_dwordx4 {vr(VX+4,4)}, v{vL16}, {W}, s{sVX} offen offset:1024""")
    vstep()
    a(f'ds_write_b128 v{T}, {vr(S0,4)}'); L('sx')
    vstep()
    a(f'ds_write_b32 v{T+1}, v{S1}'); L('sx')
    vstep()
    a(f'buffer_store_dwordx4 {vr(PUB,4)}, v{vL16}, {W}, s{sPUB} offen sc1')
    vstep()
    waitfor('sx')
    stamp(a, 'pre B2')
    a('s_barrier')
    stamp(a, 'post B2')
    R = ACC
    S5 = BQ0
    O0 = BQ1; O1 = T
    for w in range(4):
        a(f'ds_read_b128 {vr(R+4*w,4)}, v{vL16} offset:{L_XW+w*1024}')
    a(f'ds_read_b128 {vr(S5,4)}, v{vL16} offset:{L_SX5}'); L('sr', 5)
    vstep(); a(f'v_mov_b64 {vr(O0,2)}, 0')
    if not RED: a(f'buffer_load_dword v{vMST}, v{vRED}, {W}, s{sTK} offen')
    vstep(); a(f'v_mov_b64 {vr(O0+2,2)}, 0')
    vstep(); a(f'v_mov_b64 {vr(O1,2)}, 0')
    if not RED: a(f'buffer_load_dword v{vMST}, v{vRED}, {W}, s{sT2} offen\ns_add_u32 s{sTK}, s{sTK}, {1<<19}')
    if not RED:
        a(f"""v_mov_b32 v{O1+2}, s{sS}
        buffer_store_dword v{O1+2}, off, s[{sDBG}:{sDBG+3}], s{sXM} sc1""")
    vstep(); a(f'v_mov_b64 {vr(O1+2,2)}, 0\ns_add_u32 s{sVX}, s{sVX}, {1<<19}\ns_add_u32 s{sPUB}, s{sPUB}, {1<<17}')
    waitfor('sr')
    stamp(a, 'sr ok')
    Mx, M2 = R+4, R+5
    PA = R+8; ONES = R+12
    for r in range(0, 4, 2):
        a(f'v_pk_add_f32 {vr(R+r,2)}, {vr(R+r,2)}, {vr(R+4+r,2)}\nv_pk_add_f32 {vr(R+8+r,2)}, {vr(R+8+r,2)}, {vr(R+12+r,2)}')
    a(f'v_pk_add_f32 {vr(S5,2)}, {vr(S5,2)}, {vr(S5+2,2)}')
    for r in range(0, 4, 2):
        a(f'v_pk_add_f32 {vr(R+r,2)}, {vr(R+r,2)}, {vr(R+8+r,2)}')
    a(f""" v_add_f32 v{S5}, v{S5}, v{S5+1}
    v_max3_f32 v{Mx}, v{R}, v{R+1}, v{R+2}
    v_max3_f32 v{Mx}, v{Mx}, v{R+3}, v{S5}""")
    vstep()
    a(f""" v_mov_b64 {vr(ONES,2)}, s[{sONE}:{sONE+1}]
    v_max_f32_dpp v{Mx}, v{Mx}, v{Mx} quad_perm:[2,3,0,1] row_mask:0xf bank_mask:0xf
    v_mov_b32 v{M2}, v{Mx}""")
    vstep()
    a(f""" v_mov_b64 {vr(ONES+2,2)}, s[{sONE}:{sONE+1}]
    v_permlane16_swap_b32 v{M2}, v{Mx}
    v_max_f32 v{Mx}, v{Mx}, v{M2}
    v_mov_b32 v{M2}, v{Mx}""")
    vstep()
    a(f""" v_mov_b32 v{PA+3}, 0
    v_permlane32_swap_b32 v{M2}, v{Mx}
    v_max_f32 v{Mx}, v{Mx}, v{M2}""")
    vstep()
    a(f'v_mul_f32 v{Mx}, s{sC}, v{Mx}')
    for x in (R, R+1, R+2, R+3, S5):
        a(f'v_fma_f32 v{x}, v{x}, s{sC}, -v{Mx}')
    vstep()
    assert st['i'] == len(vops), st
    stamp(a, 'v issued')
    wl(('o8',1), VW)
    for i, x in enumerate((R, R+1, R+2, R+3, S5)):
        a(f'v_exp_f32 v{x}, v{x}')
    V0, V1 = ACV, ACV+4
    LS = AFW[2]
    a(f""" v_cvt_pk_bf16_f32 v{PA}, v{R}, v{R+1}
    v_cvt_pk_bf16_f32 v{PA+1}, v{R+2}, v{R+3}
    v_cvt_pk_bf16_f32 v{PA+2}, v{S5}, v{PA+3}
    s_waitcnt vmcnt({1 if RED else 4})""")
    stamp(a, 'P ready')
    accs = {'t8': S5, 0: O0, 1: O1, 2: LS, 3: ACV}
    a(f""" v_smfmac_f32_16x16x32_bf16 {vr(O0,4)}, {vr(PA,2)}, {vr(VX,4)}, v{vIDX}
    {hs(V0)}
    v_smfmac_f32_16x16x32_bf16 {vr(O1,4)}, {vr(PA,2)}, {vr(VX+4,4)}, v{vIDX}
    {hs(V1)}
    v_mfma_f32_16x16x32_bf16 {vr(LS,4)}, {vr(PA,4)}, {vr(ONES,4)}, 0
    v_cvt_pk_bf16_f32 v{V0}, v{V0}, v{V0+1}
    v_cvt_pk_bf16_f32 v{V0+1}, v{V1}, v{V1+1}
    v_cvt_pk_bf16_f32 v{V0+2}, v{V1}, v{V1+1}
    v_mov_b32 v{V0+3}, 0
    v_mov_b32 v{V1}, 0""")
    wl(('o',0,1), AFW[0])
    a(f'v_smfmac_f32_16x16x32_bf16 {vr(O0,4)}, {vr(PA+2,2)}, {vr(V0,4)}, v{vIDX} abid:2')
    wl(('o',0,3), A01)
    a(f""" {h1(LS,0)}
    v_smfmac_f32_16x16x32_bf16 {vr(O1,4)}, {vr(PA+2,2)}, {vr(V0+2,4)}, v{vIDX} abid:2
    {h1(LS,1)}
    v_rcp_f32 v{LS}, v{LS}
    v_rcp_f32 v{LS+1}, v{LS+1}
    v_mov_b64 {vr(PUB+2,2)}, {vr(V0,2)}
    s_cmp_eq_u32 s{sS}, {NSTEPS-1}
    s_cbranch_scc1 L_exit{sfx}
    {z4(accs['t8'])}
    {hs(O0)}
    {hs(O1)}
    v_pk_mul_f32 {vr(O0,2)}, {vr(O0,2)}, {vr(LS,2)}
    v_pk_mul_f32 {vr(O1,2)}, {vr(O1,2)}, {vr(LS,2)}
    v_cvt_pk_bf16_f32 v{LS+2}, v{O0}, v{O1}
    v_cvt_pk_bf16_f32 v{LS+3}, v{O0+1}, v{O1+1}
    ds_write2_b32 v{vOW}, v{LS+2}, v{LS+3} offset0:0 offset1:4
    v_and_b32 v{vTMP}, 32, v{vL16}
    v_lshl_add_u32 v{vTMP}, v{vTMP}, 5, v{vOA}
    {z4(accs[0])}
    {z4(accs[1])}
    s_waitcnt lgkmcnt(0)"""); lds.clear()
    stamp(a, 'pre B3')
    a('s_barrier')
    stamp(a, 'post B3')
    OA = [R, R+4, R+8, R+12]; OX = [ACV, ACV+4]
    for i in range(2):
        a(f'ds_read_b128 {vr(OX[i],4)}, v{vTMP} offset:{i*512}'); L(('oa', 'x%d' % i))
    for i in range(4):
        a(f'ds_read_b128 {vr(OA[i],4)}, v{vOA} offset:{i*512}'); L(('oa', i))
    a(z4(accs[2]))
    X8 = accs['t8']
    EV = f's[{sEV}:{sEV+1}]'
    def tag(r): return f'v_and_or_b32 v{r}, v{r}, -2, s{sEP}'
    post = {}
    post['t8'] = [h1(X8,0), h1(X8,1), f'v_cndmask_b32 v{X8+2}, v{X8}, v{X8+1}, {EV}',
        f'v_mov_b64 {vr(accs[3],2)}, 0',
        f'v_mov_b32_dpp v{X8+3}, v{X8+2} quad_perm:[1,0,3,2] row_mask:0xf bank_mask:0xf',
        f'v_cndmask_b32 v{X8}, v{X8+3}, v{X8}, {EV}', f'v_cndmask_b32 v{X8+1}, v{X8+1}, v{X8+3}, {EV}',
        f'v_cvt_pk_bf16_f32 v{X8}, v{X8}, v{X8+1}', tag(X8),
        f'buffer_store_dword v{X8}, v{vPS9}, {W}, s{sPW} offen {SC}', f'v_mov_b64 {vr(accs[3]+2,2)}, 0']
    for c in range(4):
        A = accs[c]; Dd = accs[c & 2]
        if c & 1 == 0:
            post[c] = [f'v_cvt_pk_bf16_f32 v{A}, v{A}, v{A+2}', f'v_cvt_pk_bf16_f32 v{A+2}, v{A+1}, v{A+3}', tag(A), tag(A+2)]
        else:
            post[c] = [f'v_cvt_pk_bf16_f32 v{Dd+1}, v{A}, v{A+2}', f'v_cvt_pk_bf16_f32 v{Dd+3}, v{A+1}, v{A+3}',
                       f'buffer_store_dwordx4 {vr(Dd,4)}, v{vL16}, {W}, s{sPW} offen offset:{(c>>1)*1024} {SC}']
    ops = [('t8', 'x0', ('o8',0)), ('t8', 'x1', ('o8',1))] + [(c, r, ('o',c,r)) for c in range(4) for r in range(4)]
    q = []
    def pop(k):
        while q and k > 0:
            x = q.pop(0); a(x)
            if not x.startswith('buffer'): k -= 1
    pend = []
    for n, (acc, af, f) in enumerate(ops):
        waitfor(('oa', af))
        if n == 0: stamp(a, 'OA ok')
        mm(accs[acc], OX[int(af[1])] if isinstance(af, str) else OA[af], f)
        for (acc2, n2) in list(pend):
            if n - n2 >= 3: q += post[acc2]; pend.remove((acc2, n2))
        if n+1 == len(ops) or ops[n+1][0] != acc: pend.append((acc, n))
        pop(1 if len(q) < 5 else 2)
    for (acc2, n2) in pend: q += post[acc2]
    pop(100)
    stamp(a, 'Wo done')
    tail = []
    if RED:
        A1, B0, D, TT = 16, 52, 72, 20
        a(f""" v_mov_b32 v{A1+2}, 0x3f80
        v_mov_b32 v{A1+3}, 0x3f800000
        v_cndmask_b32 v{A1+2}, v{A1+3}, v{A1+2}, {EV}
        v_cndmask_b32 v{A1}, 0, v{A1+2}, s[{sS0M}:{sS0M+1}]
        v_cndmask_b32 v{A1+1}, 0, v{A1+2}, s[{sS1M}:{sS1M+1}]
        v_mov_b64 {vr(A1+2,2)}, {vr(A1,2)}
        {z4(D)}
        v_mov_b64 {vr(TT,2)}, 0""")
        for _ in range(int(env.get('DELAY1', '7'))): a('s_nop 15')
        stamp(a, 'pp issue')
        ld = [f'buffer_load_dwordx4 {vr(B0+4*i,4)}, v{vRED}, {W}, s{sPR+i} offen sc1' for i in range(4)]
        for x in ld: a(x)
        tt = 0xf6
        def bt(i): return f'v_bitop3_b32 v{TT+(i&1)}, v{TT+(i&1)}, v{B0+i}, s{sEP} bitop3:{tt:#x}'
        a('s_waitcnt vmcnt(3)')
        for i in range(4): a(bt(i))
        a('s_waitcnt vmcnt(2)')
        smf(a, D, A1, ('v', B0))
        for i in range(4, 8): a(bt(i))
        a('s_waitcnt vmcnt(1)')
        for i in range(8, 12): a(bt(i))
        a('s_waitcnt vmcnt(0)')
        smf(a, D, A1, ('v', B0+8))
        for i in range(12, 16): a(bt(i))
        fin = f""" v_and_or_b32 v{TT}, v{TT+1}, s{sXM}, v{TT}
        v_and_b32 v{TT}, 1, v{TT}
        v_cmp_ne_u32 vcc, 0, v{TT}"""
        a(fin); a('s_cbranch_vccnz L_pp_retry')
        a.label('L_pp_done')
        stamp(a, 'part ok')
        for i in range(4):
            a(f'v_add_f32_dpp v{D+i}, v{D+i}, v{D+i} row_ror:8 row_mask:0xf bank_mask:0xf')
        a(f""" v_cvt_pk_bf16_f32 v{D}, v{D}, v{D+1}
        v_cvt_pk_bf16_f32 v{D+1}, v{D+2}, v{D+3}
        buffer_store_dwordx2 {vr(D,2)}, v{vMST}, {W}, s{sMEMw} offen {SC}""")
    else:
        stamp(a, 'x'); stamp(a, 'part ok')
    if int(env.get('B4', '1')): a('s_barrier')
    for _ in range(int(env.get('DELAY2', '0'))): a('s_nop 15')
    stamp(a, 'end')
    stamp_dump(a, sfx)
    a(f"""s_add_u32 s{sS}, s{sS}, 1
    s_cmp_lt_u32 s{sS}, {NSTEPS}
    s_cbranch_scc1 L_loop{sfx}
    s_branch L_exit{sfx}""")
    a.label('L_pm'+sfx)
    a('s_mov_b64 exec, vcc')
    pm_loads()
    a(f""" s_add_u32 s{sSPIN}, s{sSPIN}, 1
    s_cmp_gt_u32 s{sSPIN}, 4000000
    s_cbranch_scc1 L_pm_done{sfx}
    s_branch L_pm_chk{sfx}""")
    if RED:
        a.label('L_pp_retry')
        a('s_mov_b64 exec, vcc')
        for x in ld: a(x)
        a(f""" v_mov_b64 {vr(TT,2)}, 0
        s_add_u32 s{sSPIN}, s{sSPIN}, 1
        s_cmp_gt_u32 s{sSPIN}, 4000000
        s_cbranch_scc1 L_pp_fin
        s_waitcnt vmcnt(0)""")
        for i in range(16): a(bt(i))
        a(fin); a('s_cbranch_vccnz L_pp_retry')
        a.label('L_pp_fin')
        a(f's_mov_b64 exec, -1\n{z4(D)}')
        smf(a, D, A1, ('v', B0)); smf(a, D, A1, ('v', B0+8))
        a('s_nop 7\ns_branch L_pp_done')
    a.label('L_rdy'+sfx)
    a(f""" v_lshrrev_b32 v{T}, 2, v{vL16}
    v_and_b32 v{T}, 60, v{T}
    buffer_load_dword v{T+1}, v{T}, s[{sDBG}:{sDBG+3}], 0 offen offset:{Wk.D_KV*4} sc1
    s_add_u32 s{sSPIN}, s{sSPIN}, 1
    s_waitcnt vmcnt(0)
    v_cmp_gt_u32 vcc, 128, v{T+1}
    s_or_b32 s{sT1}, vcc_lo, 0x10000
    s_ff1_i32_b32 s{sT1}, s{sT1}
    s_lshl_b32 s{sRDY}, s{sT1}, 2
    s_cmp_eq_u32 s{sT1}, 16
    s_cselect_b32 s{sRDY}, 100, s{sRDY}
    s_cmp_gt_u32 s{sSPIN}, 4000000
    s_cbranch_scc1 L_rdy_done{sfx}
    s_cmp_ge_u32 s{sT0}, s{sRDY}
    s_cbranch_scc1 L_rdy{sfx}
    s_branch L_rdy_done{sfx}""")
    a.label('L_exit'+sfx)
```

```python
import os
from asmdsl import *
MiB = 1 << 20
WS_KV, WS_QX, WS_PUB = 0, 32*MiB, 48*MiB
WS_PQ, WS_G, WS_KVP, WS_XP = 60*MiB, 64*MiB, 65*MiB, 72*MiB
PST = 9344
OOB = 0x40000000
D_TK0, D_BAR = 0, 1
D_INIT, D_BKV = 2, 3
D_KV, D_Q = 40, 25
D_PROG = 24
D_TK = 32
D_X = 8
sWS, sX, sWC, sDBG, sOUT, sMI = 8, 12, 16, 20, 24, 28
sH, sW, sI, sT0, sT1, sT2, sT3, sTEAM = 32, 33, 34, 35, 36, 37, 38, 39
sSEL0, sSEL1, sSEG, sEND, sDST, sSTR, sCOL, sCNT, sCI, sBUF = 40, 41, 42, 43, 44, 45, 46, 47, 48, 49
sU0, sU1, sBLK, sPH, sSPIN, sDSTEP = 50, 51, 52, 53, 54, 55
P = 64
def ptr(i): return P + 2*i
XROW = 1168
XBUF = 32*XROW

def wstamp(a, k):
    if not int(os.environ.get('WST', '0')): return
    a(f"""s_memrealtime s[96:97]
    s_waitcnt lgkmcnt(0)
    s_lshl_b32 s98, s{sI}, 6
    s_add_u32 s98, s98, {200*MiB + 4*k}
    v_mov_b32 v2, 0
    v_mov_b32 v3, s96
    buffer_store_dword v3, v2, s[{sWS}:{sWS+3}], s98 offen""")
def srd(a, s, lo, nbytes):
    a(f's_mov_b32 s{s}, s{lo}\ns_mov_b32 s{s+1}, s{lo+1}\ns_mov_b32 s{s+2}, {nbytes}\ns_mov_b32 s{s+3}, 0x00020000')

def signal(a, idx_sgpr_or_const, val, tag):
    a('s_waitcnt vmcnt(0)\ns_barrier')
    a(f's_cmp_lg_u32 s{sW}, 0\ns_cbranch_scc1 L_sig{tag}')
    a(f'v_mov_b32 v2, {idx_sgpr_or_const}\nv_mov_b32 v3, {val}\ns_mov_b64 exec, 1')
    a(f'buffer_atomic_add v3, v2, s[{sDBG}:{sDBG+3}], 0 offen\ns_mov_b64 exec, -1')
    a.label(f'L_sig{tag}')

vL16, vJ, vG = 0, 4, 5
vXA = 6
vRA = 16
vRC = 20
vVO, vSW, vSR = 56, 57, 58
WF = 64
AFB = 24
ACC = 40
XB = 36864
L_SCR = 3*XB
RDT = 208
sM0B, sRB = 56+2, 56+3

def lw_issue(a, kind):
    a(f's_mov_b32 s{sT0}, s{sCOL}\ns_lshl_b32 s{sT1}, s{sSTR}, 4')
    for n in range(36):
        d = vr(WF+4*n,4) if kind == 'v' else ar(4*n,4)
        a(f'buffer_load_dwordx4 {d}, v{vVO}, s[{sWC}:{sWC+3}], s{sT0} offen')
        if n < 35: a(f's_add_u32 s{sT0}, s{sT0}, s{sT1}')
def lw_finish(a):
    for kind in 'av':
        for n in range(9):
            a(f's_waitcnt vmcnt({min(63, 32-4*n + (36 if kind == "a" else 0))})')
            for i in range(4):
                d = vr(WF+16*n+4*i,4) if kind == 'v' else ar(16*n+4*i,4)
                a(f'ds_write_b128 v{vSW}, {d} offset:{i*1024}')
            for h in range(2):
                for i in range(8): a(f'ds_read_b32 v{RDT+8*h+i}, v{vSR} offset:{(32*h+i)*64}')
            a('s_waitcnt lgkmcnt(0)')
            for h in range(2):
                for t in range(2):
                    for p in range(4):
                        d = (2*n+h)*8 + t*4 + p
                        dv = WF+d if kind == 'v' else AFB+(d & 7)
                        a(f'v_perm_b32 v{dv}, v{RDT+8*h+2*p+1}, v{RDT+8*h+2*p}, s{sSEL1 if t else sSEL0}')
                        if kind == 'a': a(f'v_accvgpr_write_b32 a{d}, v{dv}')
def load_weights(a, dst_kind, dst, tag_):
    lw_issue(a, dst_kind)
    if dst_kind == 'v': a('s_branch L_lwf' if tag_ != 'bk' else 's_nop 0')

def dma(a, i):
    return (f's_add_u32 m0, s{sM0B}, {i*4096}\ns_nop 0\n'
            f'buffer_load_dwordx4 v{vXA+i}, s[{sX}:{sX+3}], s{sBUF} offen lds')

def rowaddr(a, kind):
    X, Y, Z = 2, 3, AFB
    if kind == 'T':
        a(f'''v_lshrrev_b32 v{X}, 2, v{vJ}
        v_lshlrev_b32 v{X}, 3, v{X}
        v_bfe_u32 v{Y}, v{vJ}, 1, 1
        v_lshl_add_u32 v{X}, v{Y}, 2, v{X}
        v_and_b32 v{Y}, 1, v{vJ}
        v_add_u32 v{X}, v{X}, v{Y}''')
        d = 2
    else:
        a(f'''v_lshrrev_b32 v{X}, 2, v{vJ}
        v_lshlrev_b32 v{X}, 3, v{X}
        v_and_b32 v{Y}, 3, v{vJ}
        v_add_u32 v{X}, v{X}, v{Y}''')
        d = 4
    a(f'''v_mul_u32_u24 v{X}, 1152, v{X}
    v_lshrrev_b32 v{Y}, 1, v{vJ}
    v_xor_b32 v{Y}, v{Y}, v{vG}
    v_lshl_add_u32 v{vRA}, v{Y}, 4, v{X}
    v_xor_b32 v{Y}, 4, v{Y}
    v_lshl_add_u32 v{vRA+1}, v{Y}, 4, v{X}
    v_add_u32 v{vRA+2}, {d*1152}, v{vRA}
    v_add_u32 v{vRA+3}, {d*1152}, v{vRA+1}''')
    for i in range(9):
        a(f'''s_lshl_b32 s{sT0}, s{sW}, 6
        s_add_u32 s{sT0}, s{sT0}, {i*256}
        v_lshrrev_b32 v{X}, 4, v{vL16}
        v_add_u32 v{X}, s{sT0}, v{X}            ; p
        v_mul_u32_u24 v{Y}, 3641, v{X}
        v_lshrrev_b32 v{Y}, 18, v{Y}            ; row''')
        if kind == 'T': a(f'v_bfe_u32 v{Z}, v{Y}, 2, 3')
        else: a(f'v_lshrrev_b32 v{Z}, 3, v{Y}\nv_bfe_u32 v{Y}, v{Y}, 1, 1\nv_lshl_add_u32 v{Z}, v{Z}, 1, v{Y}')
        a(f'v_xor_b32 v{X}, v{X}, v{Z}\nv_lshlrev_b32 v{vXA+i}, 4, v{X}')

LOG2E = 0x3fb8aa3b
def phi_pair(a, x0, x1, t0, t1, dst):
    a(f'''v_cvt_pk_bf16_f32 v{t0}, v{x0}, v{x1}
    v_lshlrev_b32 v{x0}, 16, v{t0}
    v_and_b32 v{x1}, 0xffff0000, v{t0}
    v_mul_f32 v{t0}, s{sT3}, v{x0}
    v_mul_f32 v{t1}, s{sT3}, v{x1}
    v_exp_f32 v{t0}, v{t0}
    v_exp_f32 v{t1}, v{t1}
    v_cmp_lt_f32 vcc, 0, v{x0}
    v_add_f32 v{x0}, 1.0, v{x0}
    v_cndmask_b32 v{x0}, v{t0}, v{x0}, vcc
    v_cmp_lt_f32 vcc, 0, v{x1}
    v_add_f32 v{x1}, 1.0, v{x1}
    v_cndmask_b32 v{x1}, v{t1}, v{x1}, vcc
    v_add_f32 v{x0}, s{sT2}, v{x0}
    v_add_f32 v{x1}, s{sT2}, v{x1}
    v_cvt_pk_bf16_f32 v{dst}, v{x0}, v{x1}''')

sDST2, sPEND, sSTEP = 60, 61, 62
def gemm_loop(a, kind):
    W = f's[{sWS}:{sWS+3}]'
    L = 'L_g' + kind
    types = {'KV': 'TV', 'QQ': 'TT', 'BQ': 'PP', 'BKV': 'VV'}[kind]
    acc = {(T, t): (ACC + (T*2+t)*4 if t < 2 else 224 + (T*2+t-2)*4) for T in range(2) for t in range(4)}
    if kind == 'BKV':
        KVA = 160
        for i in range(16): a(f'v_accvgpr_write_b32 a{KVA+i}, 0')
        a(f'v_cmp_eq_u32 s[56:57], 9, v{vJ}')
    def wfrag(f, t):
        return vr(WF + f*8 + t*4, 4) if t < 2 else ar(f*8 + (t-2)*4, 4)
    nst = 0 if kind == 'BKV' else 4
    wstamp(a, 3)
    a(f'''s_mul_i32 s{sBUF}, s{sSEG}, {XB}
    s_mul_i32 s{sEND}, s{sSTEP}, {XB}
    s_lshl_b32 s{sM0B}, s{sW}, 10
    s_mov_b32 s{sRB}, 0
    s_mov_b32 s{sCNT}, 0
    s_mov_b32 s{sPEND}, 0
    s_mov_b32 s{sT3}, {LOG2E}
    s_mov_b32 s{sT2}, 0x358637bd''')
    for k in range(2):
        for i in range(9): a(dma(a, i))
        a(f's_add_u32 s{sBUF}, s{sBUF}, s{sEND}\ns_add_u32 s{sM0B}, s{sM0B}, {XB}')
    a('s_waitcnt vmcnt(9)')
    wstamp(a, 4)
    a.label(f'{L}_top')
    a('s_barrier')
    for i in range(4): a(f'v_add_u32 v{vRC+i}, s{sRB}, v{vRA+i}')
    AB = [AFB, AFB+8, 240, 248]
    PD = 2
    def rd(f):
        for T in range(2):
            a(f'ds_read_b128 {vr(AB[f%4]+T*4,4)}, v{vRC+2*T+(f&1)} offset:{(f>>1)*128}')
    for f in range(PD): rd(f)
    if kind != 'BKV':
        a(f'''s_cmp_eq_u32 s{sPEND}, 0
        s_cbranch_scc1 {L}_np
        s_cmp_lg_u32 s{sW}, 0
        s_cbranch_scc1 {L}_np
        s_lshr_b32 s{sT0}, s{sPEND}, 8
        s_and_b32 s{sT1}, s{sPEND}, 0xff
        v_mov_b32 v2, s{sT0}
        v_mov_b32 v3, s{sT1}
        s_mov_b64 exec, 1
        buffer_atomic_add v3, v2, s[{sDBG}:{sDBG+3}], 0 offen
        s_mov_b64 exec, -1''')
        a.label(f'{L}_np')
        a(f's_mov_b32 s{sPEND}, 0')
    for f in range(18):
        if f+PD < 18: rd(f+PD)
        a(f's_waitcnt lgkmcnt({2*min(PD, 17-f)})')
        k = 0
        for T in range(2):
            for t in range(4):
                xa = vr(AB[f%4]+T*4, 4)
                A, B = (wfrag(f, t), xa) if types[t>>1] in 'TP' else (xa, wfrag(f, t))
                c = '0' if f == 0 else vr(acc[(T, t)], 4)
                a(f'v_mfma_f32_16x16x32_bf16 {vr(acc[(T,t)],4)}, {A}, {B}, {c}')
                k += 1
                if k == 1 and f % 2 == 0: a(dma(a, f//2))
    a(f'''s_add_u32 s{sBUF}, s{sBUF}, s{sEND}
    s_add_u32 s{sM0B}, s{sM0B}, {XB}
    s_sub_u32 s{sT0}, s{sM0B}, {3*XB}
    s_cmp_ge_u32 s{sM0B}, {3*XB}
    s_cselect_b32 s{sM0B}, s{sT0}, s{sM0B}
    s_add_u32 s{sRB}, s{sRB}, {XB}
    s_cmp_ge_u32 s{sRB}, {3*XB}
    s_cselect_b32 s{sRB}, 0, s{sRB}''')
    O = RDT
    if kind != 'BKV':
        a(f'''s_lshr_b32 s{sT0}, s{sSEG}, {2 if kind == 'KV' else 6}
        s_cmp_eq_u32 s{sT0}, s{sBLK}
        s_cbranch_scc1 {L}_same
        s_add_u32 s{sT1}, s{sBLK}, s{sCI}
        s_lshl_b32 s{sT1}, s{sT1}, 10
        s_or_b32 s{sPEND}, s{sT1}, s{sCNT}
        s_cmp_eq_u32 s{sCNT}, 0
        s_cselect_b32 s{sPEND}, 0, s{sPEND}
        s_mov_b32 s{sCNT}, 0
        s_mov_b32 s{sBLK}, s{sT0}''')
        a.label(f'{L}_same')
        a(f's_add_u32 s{sCNT}, s{sCNT}, 1')
        for hh in range(2):
            ty = types[hh]; t0 = 2*hh; dst = (sDST, sDST2)[hh]; Oh = O + 8*hh
            if ty == 'T' or ty == 'P':
                for T in range(2):
                    for r in range(4):
                        if ty == 'T': a(f'v_cvt_pk_bf16_f32 v{Oh+T*4+r}, v{acc[(T,t0)]+r}, v{acc[(T,t0+1)]+r}')
                        else: phi_pair(a, acc[(T,t0)]+r, acc[(T,t0+1)]+r, 2, 3, Oh+T*4+r)
                    a(f'buffer_store_dwordx4 {vr(Oh+T*4,4)}, v{vL16}, {W}, s{dst} offen offset:{T*1024} sc1')
            else:
                for t in range(2):
                    for T in range(2):
                        for p in range(2): a(f'v_cvt_pk_bf16_f32 v{Oh+t*4+2*p+T}, v{acc[(T,t0+t)]+2*p}, v{acc[(T,t0+t)]+2*p+1}')
                    a(f'buffer_store_dwordx4 {vr(Oh+t*4,4)}, v{vL16}, {W}, s{dst} offen offset:{t*1024} sc1')
        a(f's_add_u32 s{sDST}, s{sDST}, s{sDSTEP}\ns_add_u32 s{sDST2}, s{sDST2}, s{sDSTEP}')
    else:
        for t in range(2):
            for T in range(2):
                for h in range(2): phi_pair(a, acc[(T,t)]+2*h, acc[(T,t)]+2*h+1, 2, 3, O+t*4+T*2+h)
        for t in range(2, 4):
            for T in range(2):
                for h in range(2): a(f'v_cvt_pk_bf16_f32 v{O+t*4+T*2+h}, v{acc[(T,t)]+2*h}, v{acc[(T,t)]+2*h+1}')
        a('v_mov_b32 v2, 0x3f803f80')
        for i in range(4): a(f'v_cndmask_b32 v{O+8+i}, v{O+8+i}, v2, s[56:57]')
        for x in range(2):
            for y in range(2):
                d = ar(KVA + (x*2+y)*4, 4)
                a(f'v_mfma_f32_16x16x32_bf16 {d}, {vr(O+x*4,4)}, {vr(O+8+y*4,4)}, {d}')
    a(f's_add_u32 s{sSEG}, s{sSEG}, s{sSTEP}')
    a(f's_waitcnt vmcnt({9+nst})')
    a(f's_cmp_lt_u32 s{sSEG}, 64\ns_cbranch_scc1 {L}_top')
    if kind == 'BKV':
        a('s_nop 7')
        for i in range(4):
            a(f'buffer_store_dwordx4 {ar(KVA+4*i,4)}, v{vL16}, {W}, s{sDST} offen offset:{i*1024} sc1')
        signal(a, D_BKV*4, 1, 'bkvf')
    else:
        a(f's_lshr_b32 s{sT0}, s{sPEND}, 8\ns_and_b32 s{sT1}, s{sPEND}, 0xff')
        signal(a, f's{sT0}', f's{sT1}', kind+'a')
        a(f's_add_u32 s{sT0}, s{sBLK}, s{sCI}\ns_lshl_b32 s{sT0}, s{sT0}, 2')
        signal(a, f's{sT0}', f's{sCNT}', kind+'b')

def worker_gemm(a):
    W = f's[{sWS}:{sWS+3}]'
    srd(a, sX, ptr(0), 2048*1152); srd(a, sMI, ptr(10), 1152)
    a(f'''s_mov_b32 s{sSEL0}, 0x05040100
    s_mov_b32 s{sSEL1}, 0x07060302
    v_and_b32 v{vJ}, 15, v0
    v_lshrrev_b32 v{vG}, 4, v0
    v_mov_b32 v1, v0
    v_lshlrev_b32 v{vL16}, 4, v0
    s_lshl_b32 s{sT0}, s{sW}, 12
    s_add_u32 s{sT0}, s{sT0}, {L_SCR}
    v_add_u32 v{vSW}, s{sT0}, v{vL16}
    v_lshlrev_b32 v{vSR}, 9, v{vG}
    v_lshl_add_u32 v{vSR}, v{vJ}, 2, v{vSR}
    v_add_u32 v{vSR}, s{sT0}, v{vSR}
    s_lshl_b32 s{sT1}, s{sI}, 2
    s_add_u32 s{sT1}, s{sT1}, s{sW}''')
    wstamp(a, 0)
    a('v_mov_b32 v24, -1\nv_mov_b32 v25, -1\nv_mov_b32 v26, -1\nv_mov_b32 v27, -1')
    a(f's_lshl_b32 s{sT0}, s{sT1}, 10\ns_add_u32 s{sT0}, s{sT0}, {WS_PUB}')
    for k in range(10):
        if k == 9: a(f's_cmp_ge_u32 s{sT1}, {8320-9*896}\ns_cbranch_scc1 L_pz_done')
        a(f'buffer_store_dwordx4 v[24:27], v{vL16}, {W}, s{sT0} offen sc1')
        a(f's_add_u32 s{sT0}, s{sT0}, {896*1024}')
    a.label('L_pz_done')
    a(f's_cmp_ge_u32 s{sT1}, 256\ns_cbranch_scc1 L_g_done')
    a(f'''v_lshrrev_b32 v2, 3, v1
    v_and_b32 v3, 7, v1
    v_lshlrev_b32 v3, 4, v3
    v_mul_u32_u24 v6, 1152, v2
    v_add_u32 v6, v6, v3
    s_mul_i32 s{sT0}, s{sT1}, {8*1152}''')
    for i in range(9):
        a(f'buffer_load_dwordx4 {vr(64+4*i,4)}, v6, s[{sX}:{sX+3}], s{sT0} offen offset:{i*128}')
        a(f'buffer_load_dwordx4 {vr(100+4*i,4)}, v3, s[{sMI}:{sMI+3}], 0 offen offset:{i*128}')
    a('v_mov_b32 v7, 0\nv_mov_b32 v8, 0\ns_waitcnt vmcnt(0)')
    for i in range(36):
        a(f'v_dot2_f32_bf16 v{7+(i&1)}, v{64+i}, v{100+i}, v{7+(i&1)}')
    a(f'''s_nop 3
    v_add_f32 v7, v7, v8
    s_nop 1
    v_add_f32_dpp v7, v7, v7 quad_perm:[1,0,3,2] row_mask:0xf bank_mask:0xf
    s_nop 1
    v_add_f32_dpp v7, v7, v7 quad_perm:[2,3,0,1] row_mask:0xf bank_mask:0xf
    s_nop 1
    v_add_f32_dpp v7, v7, v7 row_half_mirror row_mask:0xf bank_mask:0xf
    v_mul_f32 v7, 0xbfb8aa3b, v7
    v_exp_f32 v7, v7
    v_add_f32 v7, 1.0, v7
    v_rcp_f32 v7, v7
    v_lshlrev_b32 v2, 2, v2
    s_lshl_b32 s{sT0}, s{sT1}, 5
    s_add_u32 s{sT0}, s{sT0}, {WS_G}
    buffer_store_dword v7, v2, {W}, s{sT0} offen sc1''')
    a.label('L_g_done')
    wstamp(a, 1)
    signal(a, D_INIT*4, 1, 'init')
    wstamp(a, 2)
    if os.environ.get('FAKEW'):
        a(f's_and_b32 s{sT0}, s{sI}, 15\ns_lshl_b32 s{sT0}, s{sT0}, 2\ns_add_u32 s{sT0}, s{sT0}, {D_KV*4}')
        signal(a, f's{sT0}', 128, 'fake')
        a('s_waitcnt vmcnt(0)\ns_branch L_end')
    rowaddr(a, 'T')
    a(f'''s_mov_b32 s{sSTR}, 8192
    s_mov_b32 s{sWC+2}, {576*8192}
    s_mov_b32 s{sWC+3}, 0x00020000
    s_mov_b32 s{sBLK}, 0
    v_lshrrev_b32 v2, 2, v1
    v_lshlrev_b32 v{vVO}, 13, v2
    v_and_b32 v3, 3, v1
    v_lshl_add_u32 v{vVO}, v3, 4, v{vVO}
    s_cmp_ge_u32 s{sI}, 176
    s_cbranch_scc1 L_job_b
    s_cmp_ge_u32 s{sI}, 128
    s_cbranch_scc1 L_job_q''')
    a(f'''s_lshr_b32 s{sH}, s{sI}, 2
    s_and_b32 s{sSEG}, s{sI}, 3
    s_mov_b32 s{sSTEP}, 4
    s_lshl_b32 s{sCOL}, s{sH}, 8
    s_lshl_b32 s{sT0}, s{sW}, 6
    s_add_u32 s{sCOL}, s{sCOL}, s{sT0}
    s_lshl_b32 s{sDST}, s{sSEG}, 19
    s_lshl_b32 s{sT0}, s{sH}, 14
    s_add_u32 s{sDST}, s{sDST}, s{sT0}
    s_lshl_b32 s{sT0}, s{sW}, 11
    s_add_u32 s{sDST}, s{sDST}, s{sT0}
    s_add_u32 s{sDST2}, s{sDST}, 8192
    s_mov_b32 s{sDSTEP}, {4<<19}
    s_mov_b32 s{sCI}, {D_KV}
    s_mov_b32 s{sWC}, s{ptr(4)}
    s_mov_b32 s{sWC+1}, s{ptr(4)+1}''')
    load_weights(a, 'a', 0, 'v')
    a(f's_mov_b32 s{sWC}, s{ptr(3)}\ns_mov_b32 s{sWC+1}, s{ptr(3)+1}')
    a(f's_mov_b32 s{sPH}, 0')
    load_weights(a, 'v', WF, 'k')
    a.label('L_run0')
    gemm_loop(a, 'KV')
    a('s_branch L_gemm_done')
    a.label('L_job_q')
    a(f'''s_sub_u32 s{sT1}, s{sI}, 128
    s_mul_i32 s{sH}, s{sT1}, 43691
    s_lshr_b32 s{sH}, s{sH}, 17
    s_mul_i32 s{sSEG}, s{sH}, 3
    s_sub_u32 s{sSEG}, s{sT1}, s{sSEG}
    s_lshl_b32 s{sH}, s{sH}, 1
    s_mov_b32 s{sSTEP}, 3
    s_lshl_b32 s{sCOL}, s{sH}, 8
    s_lshl_b32 s{sT0}, s{sW}, 6
    s_add_u32 s{sCOL}, s{sCOL}, s{sT0}
    s_add_u32 s{sCOL}, s{sCOL}, 256
    s_lshl_b32 s{sDST}, s{sSEG}, 18
    s_lshl_b32 s{sT0}, s{sH}, 13
    s_add_u32 s{sDST}, s{sDST}, s{sT0}
    s_lshl_b32 s{sT0}, s{sW}, 11
    s_add_u32 s{sDST}, s{sDST}, s{sT0}
    s_add_u32 s{sDST}, s{sDST}, {WS_QX}
    s_add_u32 s{sDST2}, s{sDST}, 8192
    s_mov_b32 s{sDSTEP}, {3<<18}
    s_mov_b32 s{sCI}, {D_Q}
    s_mov_b32 s{sWC}, s{ptr(2)}
    s_mov_b32 s{sWC+1}, s{ptr(2)+1}''')
    load_weights(a, 'a', 0, 'q1')
    a(f's_sub_u32 s{sCOL}, s{sCOL}, 256')
    a(f's_mov_b32 s{sPH}, 1')
    load_weights(a, 'v', WF, 'q0')
    a.label('L_run1')
    gemm_loop(a, 'QQ')
    a('s_branch L_gemm_done')
    a.label('L_job_b')
    a(f'''s_mov_b32 s{sSTR}, 3456
    s_mov_b32 s{sWC}, s{ptr(8)}
    s_mov_b32 s{sWC+1}, s{ptr(8)+1}
    s_mov_b32 s{sWC+2}, {576*3456}
    v_mul_u32_u24 v{vVO}, 3456, v2
    v_lshl_add_u32 v{vVO}, v3, 4, v{vVO}
    s_mov_b32 s{sSTEP}, 4
    s_and_b32 s{sSEG}, s{sI}, 3
    s_cmp_ge_u32 s{sI}, 192
    s_cbranch_scc1 L_bkv
    s_sub_u32 s{sT1}, s{sI}, 176
    s_lshr_b32 s{sH}, s{sT1}, 2
    s_lshl_b32 s{sH}, s{sH}, 2
    s_add_u32 s{sH}, s{sH}, s{sW}
    s_lshl_b32 s{sH}, s{sH}, 1
    s_mul_i32 s{sCOL}, s{sH}, 36
    s_add_u32 s{sCOL}, s{sCOL}, 36
    s_lshl_b32 s{sDST}, s{sSEG}, 16
    s_lshl_b32 s{sT0}, s{sH}, 11
    s_add_u32 s{sDST}, s{sDST}, s{sT0}
    s_add_u32 s{sDST}, s{sDST}, {WS_PQ}
    s_add_u32 s{sDST2}, s{sDST}, 2048
    s_mov_b32 s{sDSTEP}, {4<<16}
    s_mov_b32 s{sCI}, {D_Q}''')
    load_weights(a, 'a', 0, 'bq1')
    a(f's_sub_u32 s{sCOL}, s{sCOL}, 36')
    a(f's_mov_b32 s{sPH}, 2')
    load_weights(a, 'v', WF, 'bq0')
    a.label('L_run2')
    gemm_loop(a, 'BQ')
    a('s_branch L_gemm_done')
    a.label('L_bkv')
    a(f'''s_sub_u32 s{sT1}, s{sI}, 192
    s_lshr_b32 s{sH}, s{sT1}, 2
    s_lshl_b32 s{sH}, s{sH}, 2
    s_add_u32 s{sH}, s{sH}, s{sW}
    s_lshl_b32 s{sDST}, s{sSEG}, 17
    s_lshl_b32 s{sT0}, s{sH}, 12
    s_add_u32 s{sDST}, s{sDST}, s{sT0}
    s_add_u32 s{sDST}, s{sDST}, {WS_KVP}
    s_mul_i32 s{sCOL}, s{sH}, 36
    s_add_u32 s{sCOL}, s{sCOL}, {1152*2}''')
    load_weights(a, 'a', 0, 'bv')
    a(f's_sub_u32 s{sCOL}, s{sCOL}, {576*2}')
    a(f's_mov_b32 s{sPH}, 3')
    load_weights(a, 'v', WF, 'bk')
    a.label('L_lwf')
    lw_finish(a)
    for k in range(3): a(f's_cmp_eq_u32 s{sPH}, {k}\ns_cbranch_scc1 L_run{k}')
    gemm_loop(a, 'BKV')
    a.label('L_gemm_done')
    wstamp(a, 5)
```

```python
from asmdsl import *
from worker import *
import worker as Wk
vIDX = 1
(vQG, vKW, vAK, vOW, vOA, vOX, vPS9, vRED, vOUT, vGA, vGB, vZA) = range(6, 18)
MSK = 18
KVT = 22
ZT = 30
SEL = 34
ONES = 38
TMP = 42
KF, VF, BQ, AK, VM, OAC = 64, 96, 128, 160, 192, 224
L_KS = 0
L_O = 2048
sC, sEVm, sHF0, sHF1, sKVo, sQo, sPQo, sPUBo, sXPo, sRHO, sPW = 56, 58, 60, 62, 40+0, 41, 43, 44, 45, 46, 47
sXB, sXM, sEP, sN, sPRG = 93, 94, 95, 57, 48
import os
def smf(a, d, A, B):
    a(f'v_smfmac_f32_16x16x64_bf16 {vr(d,4)}, {vr(A,4)}, {B}, v{vIDX}')

def wait_cnt(a, byteoff, shift, mask, target, tag):
    a(f'v_mov_b32 v2, {byteoff}')
    a.label(f'L_wc{tag}')
    a(f'''buffer_load_dword v3, v2, s[{sDBG}:{sDBG+3}], 0 offen sc1
    s_waitcnt vmcnt(0)
    v_readfirstlane_b32 s{sT0}, v3
    s_add_u32 s{sSPIN}, s{sSPIN}, 1
    s_lshr_b32 s{sT0}, s{sT0}, {shift}
    s_and_b32 s{sT0}, s{sT0}, {mask}
    s_cmp_ge_u32 s{sT0}, {target}
    s_cbranch_scc1 L_wd{tag}
    s_cmp_gt_u32 s{sSPIN}, 3000000
    s_cbranch_scc1 L_wd{tag}
    s_sleep 4
    s_branch L_wc{tag}''')
    a.label(f'L_wd{tag}')

def xs_pass(a, SC):
    W = f's[{sWS}:{sWS+3}]'
    X, Y, Z, RW = 2, 3, TMP, TMP+1
    a(f's_mov_b32 s{sH}, s92\ns_mov_b32 s{sSPIN}, 0')
    srd(a, sOUT, ptr(11), 2048*1152)
    srd(a, sWC, ptr(5), 4096*1152)
    srd(a, sMI, ptr(9), 576*1152)
    VO, V8 = TMP+2, TMP+3
    a(f'''v_mul_u32_u24 v{Z}, {4*1152}, v{vG}
    v_lshl_add_u32 v{VO}, v{vJ}, 4, v{Z}
    s_lshl_b32 s{sT0}, s{sW}, 8
    v_add_u32 v{VO}, s{sT0}, v{VO}
    v_lshl_add_u32 v{V8}, v{vJ}, 1, v{Z}
    s_lshl_b32 s{sT0}, s{sW}, 5
    s_add_u32 s{sT0}, s{sT0}, 1024
    v_add_u32 v{V8}, s{sT0}, v{V8}
    s_mul_i32 s{sT1}, s{sH}, 147456
    v_mov_b32 v{X}, {OOB}
    v_cmp_eq_u32 vcc, 0, v{vG}
    v_cndmask_b32 v{VO+2}, v{X}, v{VO}, vcc
    v_cndmask_b32 v{V8+2}, v{X}, v{V8}, vcc
    s_mul_i32 s{sT3}, s{sH}, {18*1152}''')
    B0 = 64
    for rho in range(4):
        for x in range(4):
            kh, p0 = x >> 1, x & 1
            a(f's_add_u32 s{sT2}, s{sT1}, {(32*rho+16*kh+2*p0)*1152}')
            a(f'buffer_load_dwordx4 {vr(B0+rho*32+x*8,4)}, v{VO}, s[{sWC}:{sWC+3}], s{sT2} offen')
            a(f'buffer_load_dwordx4 {vr(B0+rho*32+x*8+4,4)}, v{VO}, s[{sWC}:{sWC+3}], s{sT2} offen offset:1152')
    a('s_waitcnt vmcnt(0)')
    for sg in range(2):
        for b in range(8):
            kh, p0, hf = b >> 2, (b >> 1) & 1, b & 1
            a(f's_add_u32 s{sT2}, s{sT1}, {(32*(sg+2*hf)+16*kh+2*p0)*1152}')
            a(f'buffer_load_ushort v{192+sg*16+2*b}, v{V8}, s[{sWC}:{sWC+3}], s{sT2} offen')
            a(f'buffer_load_ushort v{193+sg*16+2*b}, v{V8}, s[{sWC}:{sWC+3}], s{sT2} offen offset:1152')
    for x in range(3):
        kh, p0 = x >> 1, x & 1
        a(f's_add_u32 s{sT2}, s{sT3}, {(16*kh+2*p0)*1152}')
        o = 2 if kh else 0
        a(f'buffer_load_dwordx4 {vr(224+x*8,4)}, v{VO+o}, s[{sMI}:{sMI+3}], s{sT2} offen')
        a(f'buffer_load_dwordx4 {vr(228+x*8,4)}, v{VO+o}, s[{sMI}:{sMI+3}], s{sT2} offen offset:1152')
        a(f'buffer_load_ushort v{248+2*x}, v{V8+o}, s[{sMI}:{sMI+3}], s{sT2} offen')
        a(f'buffer_load_ushort v{249+2*x}, v{V8+o}, s[{sMI}:{sMI+3}], s{sT2} offen offset:1152')
    for rho in range(4):
        for c in range(4):
            for x in range(4):
                kh, p0 = x >> 1, x & 1
                for hf in range(2):
                    a(f'v_perm_b32 v{X}, v{B0+rho*32+x*8+4+c}, v{B0+rho*32+x*8+c}, s{sSEL1 if hf else sSEL0}')
                    a(f'v_accvgpr_write_b32 a{(c*5+rho)*8+4*kh+2*p0+hf}, v{X}')
    a('s_waitcnt vmcnt(0)')
    for sg in range(2):
        for b in range(8):
            a(f'v_lshl_or_b32 v{X}, v{193+sg*16+2*b}, 16, v{192+sg*16+2*b}\nv_accvgpr_write_b32 a{160+sg*8+b}, v{X}')
    for c in range(4):
        for x in range(4):
            kh, p0 = x >> 1, x & 1
            for hf in range(2):
                d = (c*5+4)*8+4*kh+2*p0+hf
                if x == 3: a(f'v_accvgpr_write_b32 a{d}, 0')
                else:
                    a(f'v_perm_b32 v{X}, v{228+x*8+c}, v{224+x*8+c}, s{sSEL1 if hf else sSEL0}')
                    a(f'v_accvgpr_write_b32 a{d}, v{X}')
    for b in range(8):
        x, hf = b >> 1, b & 1
        if hf or x == 3: a(f'v_accvgpr_write_b32 a{176+b}, 0')
        else: a(f'v_lshl_or_b32 v{X}, v{249+2*x}, 16, v{248+2*x}\nv_accvgpr_write_b32 a{176+b}, v{X}')
    a(f'''v_and_b32 v{X}, 2, v{vJ}
    v_mov_b32 v{vIDX}, 0x00444444
    v_mov_b32 v{Y}, 0x0049EEEE
    v_cmp_ne_u32 vcc, 0, v{X}
    v_cndmask_b32 v{vIDX}, v{vIDX}, v{Y}, vcc
    s_mov_b64 s[{sHF1}:{sHF1+1}], vcc
    s_not_b64 s[{sHF0}:{sHF0+1}], vcc
    v_lshrrev_b32 v{X}, 2, v{vJ}
    v_and_b32 v{Y}, 1, v{vJ}
    v_lshl_add_u32 v{RW}, v{X}, 1, v{Y}           ; row(j) 0..7
    v_cmp_eq_u32 s[{sEVm}:{sEVm+1}], 0, v{Y}
    s_mov_b32 s{sC}, 0x3e0293ee
    s_lshl_b32 s{sRHO}, s{sW}, 5
    s_add_u32 s{sRHO}, s{sRHO}, s{sH}''')
    a(f'''v_lshrrev_b32 v{X}, 2, v{RW}
    v_and_b32 v{Y}, 1, v{RW}
    v_lshl_add_u32 v{X}, v{X}, 1, v{Y}
    s_lshl_b32 s{sT0}, s{sW}, 2
    v_add_u32 v{X}, s{sT0}, v{X}
    v_lshl_add_u32 v{X}, v{vG}, 4, v{X}
    v_lshlrev_b32 v{X}, 4, v{X}
    v_bfe_u32 v{Y}, v{RW}, 1, 1
    v_lshl_add_u32 v{vQG}, v{Y}, 10, v{X}
    v_lshlrev_b32 v{X}, 7, v{vG}
    v_lshl_add_u32 v{X}, v{vJ}, 2, v{X}
    s_lshl_b32 s{sT0}, s{sW}, 9
    v_add_u32 v{vKW}, s{sT0}, v{X}
    v_lshrrev_b32 v{X}, 2, v{vJ}
    v_lshlrev_b32 v{X}, 7, v{X}
    v_lshl_add_u32 v{vAK}, v{vG}, 4, v{X}
    v_lshl_add_u32 v{X}, v{vG}, 3, v{RW}
    v_lshlrev_b32 v{X}, 4, v{X}
    v_add_u32 v{vOA}, {L_O}, v{X}
    v_and_b32 v{Y}, 2, v{vJ}
    v_lshl_add_u32 v{vOX}, v{Y}, 9, v{vOA}
    ; OW = L_O + w*2560 + ((j>>2)*8 + 2g)*16 + (j&3)*4
    v_lshrrev_b32 v{X}, 2, v{vJ}
    v_lshlrev_b32 v{X}, 3, v{X}
    v_lshl_add_u32 v{X}, v{vG}, 1, v{X}
    v_lshlrev_b32 v{X}, 4, v{X}
    v_and_b32 v{Y}, 3, v{vJ}
    v_lshl_add_u32 v{X}, v{Y}, 2, v{X}
    s_mul_i32 s{sT0}, s{sW}, 2560
    s_add_u32 s{sT0}, s{sT0}, {L_O}
    v_add_u32 v{vOW}, s{sT0}, v{X}
    ; PS9
    v_lshrrev_b32 v{X}, 2, v{vJ}
    v_lshlrev_b32 v{X}, 1, v{X}
    v_lshl_add_u32 v{X}, v{vG}, 3, v{X}
    v_and_b32 v{Y}, 1, v{vJ}
    v_add_u32 v{X}, v{X}, v{Y}
    v_lshlrev_b32 v{X}, 3, v{X}
    v_and_b32 v{Y}, 2, v{vJ}
    v_lshl_add_u32 v{X}, v{Y}, 1, v{X}
    s_mul_i32 s{sT0}, s{sW}, 1792
    s_sub_u32 s{sT0}, 8192, s{sT0}
    v_add_u32 v{vPS9}, s{sT0}, v{X}
    ; RED
    v_lshrrev_b32 v{X}, 3, v{vJ}
    v_lshl_add_u32 v{X}, v{X}, 2, v{vG}
    v_mul_u32_u24 v{X}, {PST}, v{X}
    v_and_b32 v{Y}, 7, v{vJ}
    v_lshl_add_u32 v{Y}, v{Y}, 4, v{X}
    s_lshl_b32 s{sT0}, s{sRHO}, 7
    v_add_u32 v{vRED}, s{sT0}, v{Y}
    s_lshl_b32 s{sT0}, s{sW}, 5
    v_lshlrev_b32 v{X}, 3, v{vG}
    v_add_u32 v{vGA}, s{sT0}, v{X}
    v_lshlrev_b32 v{X}, 2, v{RW}
    v_add_u32 v{vGB}, s{sT0}, v{X}
    v_lshlrev_b32 v{X}, 8, v{vG}
    v_add_u32 v{vZA}, {9*16}, v{X}
    ; SEL
    v_mov_b32 v{X}, 0x3f80
    v_mov_b32 v{Y}, 0x3f800000
    v_cndmask_b32 v{X}, v{Y}, v{X}, s[{sEVm}:{sEVm+1}]
    v_lshrrev_b32 v{Y}, 2, v{vJ}
    v_cmp_eq_u32 vcc, 0, v{Y}
    v_cndmask_b32 v{SEL}, 0, v{X}, vcc
    v_cmp_eq_u32 vcc, 1, v{Y}
    v_cndmask_b32 v{SEL+1}, 0, v{X}, vcc
    v_mov_b32 v{SEL+2}, v{SEL}
    v_mov_b32 v{SEL+3}, v{SEL+1}''')
    for i in range(4): a(f'v_mov_b32 v{ONES+i}, 0x3f803f80')
    a(f'''v_and_b32 v{X}, 2, v{vJ}
    v_lshl_add_u32 v{X}, v{vG}, 3, v{X}
    s_lshl_b32 s{sT0}, s{sW}, 3
    v_add_u32 v{Y}, s{sT0}, v{RW}
    v_mov_b32 v{TMP+4}, 0xf149f2ca''')
    for r in range(4):
        a(f'v_add_u32 v{TMP+5}, {4*(r>>1)+(r&1)}, v{X}\nv_cmp_le_u32 vcc, v{TMP+5}, v{Y}\nv_cndmask_b32 v{MSK+r}, v{TMP+4}, 0, vcc')
    O, Q, T1, Q2, R2, H2, RR = TMP+4, TMP+5, TMP+6, TMP+7, TMP+8, TMP+9, TMP+10
    a(f'''s_lshl_b32 s{sT0}, s{sRHO}, 7
    v_and_b32 v{X}, 7, v{vJ}
    v_lshlrev_b32 v{X}, 4, v{X}
    v_and_b32 v{Y}, 1, v{vG}
    v_lshl_add_u32 v{X}, v{Y}, 3, v{X}
    v_add_u32 v{O}, s{sT0}, v{X}
    v_bfe_u32 v{X}, v{O}, 8, 2
    v_bfe_u32 v{Y}, v{O}, 3, 1
    v_lshl_add_u32 v{RR}, v{X}, 1, v{Y}
    v_lshrrev_b32 v{Q}, 11, v{O}
    v_lshlrev_b32 v{Q}, 4, v{Q}
    v_bfe_u32 v{X}, v{O}, 4, 4
    v_add_u32 v{Q}, v{Q}, v{X}
    v_bfe_u32 v{T1}, v{O}, 10, 1
    v_bfe_u32 v{X}, v{O}, 8, 2
    v_bfe_u32 v{Y}, v{O}, 5, 1
    v_lshl_add_u32 v{Q2}, v{X}, 1, v{Y}
    v_add_u32 v{Q2}, 64, v{Q2}
    v_bfe_u32 v{X}, v{O}, 6, 2
    v_bfe_u32 v{Y}, v{O}, 3, 1
    v_lshl_add_u32 v{R2}, v{X}, 1, v{Y}
    v_bfe_u32 v{H2}, v{O}, 4, 1
    v_cmp_le_u32 vcc, 0x2000, v{O}
    v_cndmask_b32 v{Q}, v{Q}, v{Q2}, vcc
    v_cndmask_b32 v{RR}, v{RR}, v{R2}, vcc
    v_cndmask_b32 v{T1}, v{T1}, v{H2}, vcc
    v_mul_u32_u24 v{vOUT}, 1152, v{RR}
    v_lshl_add_u32 v{vOUT}, v{Q}, 4, v{vOUT}
    v_lshl_add_u32 v{vOUT}, v{T1}, 3, v{vOUT}
    v_cmp_gt_u32 s[96:97], 8, v{vJ}
    v_cmp_gt_u32 s[98:99], 2, v{vG}
    s_and_b64 vcc, s[96:97], s[98:99]
    v_mov_b32 v{X}, {OOB}
    v_cndmask_b32 v{vOUT}, v{X}, v{vOUT}, vcc''')
    for i in range(0, 32, 2): a(f'v_mov_b64 {vr(VM+i,2)}, 0\nv_mov_b64 {vr(BQ+i,2)}, 0')
    TB = 2*4*32*PST
    a(f'''s_mul_i32 s{sXB}, s{sTEAM}, {TB}
    s_add_u32 s{sXB}, s{sXB}, {WS_XP}
    s_cmp_ge_u32 s{sRHO}, 64
    s_cselect_b32 s{sXM}, 1, 0
    v_mov_b64 {vr(TMP,2)}, -1
    v_mov_b64 {vr(TMP+2,2)}, -1
    s_cmp_ge_u32 s{sRHO}, 72
    s_cbranch_scc1 L_xinv
    s_mov_b32 s{sT1}, s{sXB}''')
    for i in range(32):
        a(f'buffer_store_dwordx4 {vr(TMP,4)}, v{vRED}, {W}, s{sT1} offen {SC}\ns_add_u32 s{sT1}, s{sT1}, {8*PST}')
    a.label('L_xinv')
    a(f's_lshl_b32 s{sT2}, s{sTEAM}, 2\ns_add_u32 s{sT2}, s{sT2}, {D_X*4}')
    signal(a, f's{sT2}', 1, 'xt')
    a(f'''v_lshrrev_b32 v{X}, 4, v{vL16}
    v_mov_b32 v{TMP}, 0
    v_lshrrev_b32 v{Y}, 3, v{X}
    v_mov_b32 v{TMP+1}, 128
    v_cmp_eq_u32 vcc, 5, v{Y}
    v_cndmask_b32 v{TMP}, v{TMP}, v{TMP+1}, vcc
    v_cmp_eq_u32 vcc, 6, v{Y}
    v_cndmask_b32 v{TMP}, v{TMP}, v{TMP+1}, vcc
    v_mov_b32 v{TMP+1}, 1280
    v_cmp_eq_u32 vcc, {D_Q}, v{X}
    v_cndmask_b32 v{TMP}, v{TMP}, v{TMP+1}, vcc
    v_mov_b32 v{TMP+1}, 224
    v_cmp_eq_u32 vcc, {D_INIT}, v{X}
    v_cndmask_b32 v{TMP}, v{TMP}, v{TMP+1}, vcc
    v_mov_b32 v{TMP+1}, 32
    v_cmp_eq_u32 vcc, {D_BKV}, v{X}
    v_cndmask_b32 v{TMP}, v{TMP}, v{TMP+1}, vcc
    s_add_u32 s{sT2}, s{sTEAM}, {D_X}
    v_cmp_eq_u32 vcc, s{sT2}, v{X}
    v_cndmask_b32 v{TMP}, v{TMP}, v{TMP+1}, vcc
    v_lshlrev_b32 v{X}, 2, v{X}
    s_cmp_lg_u32 s{sW}, 0
    s_cbranch_scc1 L_xw_done''')
    a.label('L_xw')
    a(f'''buffer_load_dword v{Y}, v{X}, s[{sDBG}:{sDBG+3}], 0 offen sc1
    s_add_u32 s{sSPIN}, s{sSPIN}, 1
    s_waitcnt vmcnt(0)
    v_cmp_lt_u32 vcc, v{Y}, v{TMP}
    s_cbranch_vccz L_xw_done
    s_cmp_gt_u32 s{sSPIN}, 1000000
    s_cbranch_scc1 L_xw_done
    s_sleep 32
    s_branch L_xw''')
    a.label('L_xw_done')
    a('s_barrier')
    a(f's_lshl_b32 s{sT1}, s{sH}, 12\ns_add_u32 s{sT1}, s{sT1}, {WS_KVP}')
    for p in range(4):
        for ab in range(4):
            a(f'buffer_load_dwordx4 {vr(KF+p*16+ab*4,4)}, v{vL16}, {W}, s{sT1} offen offset:{ab*1024} sc1')
        for x in range(2):
            a(f'buffer_load_dwordx4 {vr(AK+p*8+x*4,4)}, v{vZA}, {W}, s{sT1} offen offset:{x*2048} sc1')
        a(f's_add_u32 s{sT1}, s{sT1}, {1<<17}')
    a('s_waitcnt vmcnt(0)')
    for p in range(1, 4):
        for i in range(16): a(f'v_add_f32 v{KF+i}, v{KF+i}, v{KF+p*16+i}')
        for i in range(8): a(f'v_add_f32 v{AK+i}, v{AK+i}, v{AK+p*8+i}')
    for r in range(4):
        a(f'v_lshlrev_b32 v{X}, 2, v{vG}\nv_add_u32 v{X}, {r}, v{X}\nv_cmp_gt_u32 vcc, 9, v{X}')
        for b in range(2):
            a(f'v_cvt_pk_bf16_f32 v{Y}, v{KF+b*4+r}, v{KF+8+b*4+r}\nv_cndmask_b32 v{KVT+b*4+r}, 0, v{Y}, vcc')
        a(f'v_cvt_pk_bf16_f32 v{Y}, v{AK+r}, v{AK+4+r}\nv_cndmask_b32 v{ZT+r}, 0, v{Y}, vcc')
    a(f's_mov_b32 s{sSEG}, s{sTEAM}')
    mark(a, 5, sDBG)
    PQ, GA, GB, PB = TMP, TMP+4, TMP+6, TMP+8
    def offs(seg):
        a(f'''s_lshl_b32 s{sT0}, s{seg}, 5
        s_add_u32 s{sT0}, s{sT0}, s{sH}
        s_lshl_b32 s{sKVo}, s{sT0}, 14
        s_lshl_b32 s{sQo}, s{sT0}, 13
        s_add_u32 s{sQo}, s{sQo}, {WS_QX}
        s_lshl_b32 s{sPQo}, s{sT0}, 11
        s_add_u32 s{sPQo}, s{sPQo}, {WS_PQ}
        s_lshl_b32 s{sT3}, s{seg}, 7
        s_add_u32 s{sT3}, s{sT3}, {WS_G}''')
    def loads():
        for i in range(16):
            if i % 4 == 0 and i: a(f's_add_u32 s{sKVo}, s{sKVo}, 4096')
            a(f'buffer_load_dwordx4 {vr(KF+4*i,4)}, v{vL16}, {W}, s{sKVo} offen offset:{(i%4)*1024} sc1')
        for hf in range(2):
            a(f's_mov_b64 exec, s[{(sHF0,sHF1)[hf]}:{(sHF0,sHF1)[hf]+1}]')
            for kk in range(4):
                if kk == 2: a(f's_add_u32 s{sT1}, s{sQo}, 4096')
                a(f'buffer_load_dwordx4 {vr(BQ+(kk*2+hf)*4,4)}, v{vQG}, {W}, s{sQo if kk<2 else sT1} offen offset:{(kk&1)*2048} sc1')
        a(f'''s_mov_b64 exec, -1
        buffer_load_dwordx4 {vr(PQ,4)}, v{vQG}, {W}, s{sPQo} offen sc1
        buffer_load_dwordx2 {vr(GA,2)}, v{vGA}, {W}, s{sT3} offen sc1
        buffer_load_dword v{GB}, v{vGB}, {W}, s{sT3} offen sc1''')
    offs(sSEG); loads()
    a(f's_mov_b32 s{sN}, 0\ns_mov_b32 s{sPRG}, 0')
    a.label('L_xs')
    a(f'''s_lshl_b32 s{sT0}, s{sSEG}, 5
    s_add_u32 s{sT0}, s{sT0}, s{sH}
    s_lshl_b32 s{sPUBo}, s{sT0}, 12
    s_add_u32 s{sPUBo}, s{sPUBo}, {WS_PUB}
    s_and_b32 s{sT0}, s{sN}, 1
    s_mul_i32 s{sXPo}, s{sT0}, {4*32*PST}
    s_add_u32 s{sXPo}, s{sXPo}, s{sXB}
    s_bfe_u32 s{sEP}, s{sN}, 0x10001
    s_mul_i32 s{sPW}, s{sH}, {PST}
    s_add_u32 s{sPW}, s{sPW}, s{sXPo}
    s_lshl_b32 s{sT1}, s{sW}, 11
    s_add_u32 s{sPW}, s{sPW}, s{sT1}
    s_lshl_b32 s{sT1}, s{sW}, 10
    s_add_u32 s{sT1}, s{sT1}, s{sPUBo}
    s_add_u32 s{sT2}, s{sPUBo}, {1<<17}
    s_waitcnt vmcnt(0)''')
    S0, S1 = TMP+10, TMP+14
    for kk in range(4):
        for hf in range(2):
            c = vr(MSK,4) if kk+hf == 0 else vr(S0,4)
            a(f'v_mfma_f32_16x16x32_bf16 {vr(S0,4)}, {vr(KF+(kk*2+hf)*4,4)}, {vr(BQ+(kk*2+hf)*4,4)}, {c}')
    N0, N1, DN = OAC, OAC+4, OAC+8
    a(f'''v_mfma_f32_16x16x32_bf16 {vr(N0,4)}, {vr(KVT,4)}, {vr(PQ,4)}, 0
    v_mfma_f32_16x16x32_bf16 {vr(N1,4)}, {vr(KVT+4,4)}, {vr(PQ,4)}, 0
    v_mfma_f32_16x16x32_bf16 {vr(DN,4)}, {vr(ZT,4)}, {vr(PQ,4)}, 0
    v_sub_f32 v{GB}, 1.0, v{GB}
    v_add_f32 v{DN}, 0x358637bd, v{DN}
    v_rcp_f32 v{DN}, v{DN}
    v_mul_f32 v{DN}, v{DN}, v{GB}''')
    for r in range(4):
        a(f'v_mul_f32 v{N0+r}, v{N0+r}, v{DN}\nv_mul_f32 v{N1+r}, v{N1+r}, v{DN}\nv_cvt_pk_bf16_f32 v{PQ+r}, v{N0+r}, v{N1+r}')
    for i in range(0, 32, 2): a(f'v_mov_b64 {vr(OAC+i,2)}, 0')
    a(f's_add_u32 s{sT3}, s{sSEG}, 1\ns_cmp_le_u32 s{sT3}, s{sPRG}\ns_cbranch_scc1 L_xp')
    a.label('L_xg')
    a(f'''buffer_load_dword v{X}, off, s[{sDBG}:{sDBG+3}], 0 offset:{D_PROG*4} sc1
    s_add_u32 s{sSPIN}, s{sSPIN}, 1
    s_waitcnt vmcnt(0)
    v_readfirstlane_b32 s{sPRG}, v{X}
    s_cmp_gt_u32 s{sSPIN}, 3000000
    s_cbranch_scc1 L_xp
    s_cmp_le_u32 s{sT3}, s{sPRG}
    s_cbranch_scc1 L_xp
    s_sleep {int(os.environ.get('XSL','10'))}
    s_branch L_xg''')
    a.label('L_xp')
    a(f'buffer_load_dwordx2 {vr(PB,2)}, v{vL16}, {W}, s{sT1} offen sc1')
    for w2 in range(4):
        for tv in range(2):
            a(f'buffer_load_dword v{VM+(w2*2+tv)*4}, v{vL16}, {W}, s{sT2} offen offset:{w2*1024+8+tv*4} sc1')
    a(f'''s_add_u32 s{sSPIN}, s{sSPIN}, 1
    s_waitcnt vmcnt(0)
    v_max3_u32 v{X}, v{PB}, v{PB+1}, v{VM}
    v_max3_u32 v{X}, v{X}, v{VM+4}, v{VM+8}
    v_max3_u32 v{X}, v{X}, v{VM+12}, v{VM+16}
    v_max3_u32 v{X}, v{X}, v{VM+20}, v{VM+24}
    v_max_u32 v{X}, v{X}, v{VM+28}
    v_cmp_eq_u32 vcc, -1, v{X}
    s_cbranch_vccz L_xp_ok
    s_cmp_gt_u32 s{sSPIN}, 3000000
    s_cbranch_scc1 L_xp_ok
    s_sleep 4
    s_branch L_xp''')
    a.label('L_xp_ok')
    a(f'ds_write2_b32 v{vKW}, v{PB}, v{PB+1} offset0:0 offset1:16')
    a('s_waitcnt lgkmcnt(0)\ns_barrier')
    for kk in range(4):
        for hf in range(2):
            a(f'ds_read_b128 {vr(AK+(kk*2+hf)*4,4)}, v{vAK} offset:{L_KS+kk*512+hf*64}')
    a(f's_mul_i32 s{sT0}, s{sW}, 2560\nv_add_u32 v{X}, s{sT0}, v{vOA}\nds_write_b128 v{X}, {vr(PQ,4)} offset:2048')
    for kk in range(4):
        for hf in range(2):
            a(f's_waitcnt lgkmcnt({8-(kk*2+hf)})')
            c = '0' if kk+hf == 0 else vr(S1,4)
            a(f'v_mfma_f32_16x16x32_bf16 {vr(S1,4)}, {vr(AK+(kk*2+hf)*4,4)}, {vr(BQ+(kk*2+hf)*4,4)}, {c}')
    Mx, M2 = X, Y
    PA = TMP+18
    a(f'''v_max3_f32 v{Mx}, v{S0}, v{S0+1}, v{S0+2}
    v_max3_f32 v{Mx}, v{Mx}, v{S0+3}, v{S1}
    v_max_f32_dpp v{Mx}, v{Mx}, v{Mx} quad_perm:[2,3,0,1] row_mask:0xf bank_mask:0xf
    v_mov_b32 v{M2}, v{Mx}
    v_permlane16_swap_b32 v{M2}, v{Mx}
    v_max_f32 v{Mx}, v{Mx}, v{M2}
    v_mov_b32 v{M2}, v{Mx}
    v_permlane32_swap_b32 v{M2}, v{Mx}
    v_max_f32 v{Mx}, v{Mx}, v{M2}
    v_mul_f32 v{Mx}, s{sC}, v{Mx}''')
    for xx in (S0, S0+1, S0+2, S0+3, S1): a(f'v_fma_f32 v{xx}, v{xx}, s{sC}, -v{Mx}')
    for xx in (S0, S0+1, S0+2, S0+3, S1): a(f'v_exp_f32 v{xx}, v{xx}')
    LS = S1
    a(f'''v_mov_b32 v{PA+3}, 0
    v_cvt_pk_bf16_f32 v{PA}, v{S0}, v{S0+1}
    v_cvt_pk_bf16_f32 v{PA+1}, v{S0+2}, v{S0+3}
    v_cvt_pk_bf16_f32 v{PA+2}, v{S1}, v{PA+3}
    v_mfma_f32_16x16x32_bf16 {vr(LS,4)}, {vr(PA,4)}, {vr(ONES,4)}, 0''')
    for t in range(8):
        a(f'v_smfmac_f32_16x16x32_bf16 {vr(OAC+4*t,4)}, {vr(PA,2)}, {vr(VF+4*t,4)}, v{vIDX}')
    for t in range(8):
        a(f'v_smfmac_f32_16x16x32_bf16 {vr(OAC+4*t,4)}, {vr(PA+2,2)}, {vr(VM+4*t,4)}, v{vIDX} abid:2')
    a(f'''v_add_f32 v{LS}, v{LS}, v{LS+2}
    v_add_f32 v{LS+1}, v{LS+1}, v{LS+3}
    v_rcp_f32 v{LS}, v{LS}
    v_rcp_f32 v{LS+1}, v{LS+1}
    v_mul_f32 v{LS}, v{LS}, v{GA}
    v_mul_f32 v{LS+1}, v{LS+1}, v{GA+1}''')
    for w2 in range(4):
        A, B = OAC+8*w2, OAC+8*w2+4
        for r in range(2):
            a(f'''v_add_f32 v{A+r}, v{A+r}, v{A+r+2}
            v_add_f32 v{B+r}, v{B+r}, v{B+r+2}
            v_mul_f32 v{A+r}, v{A+r}, v{LS+r}
            v_mul_f32 v{B+r}, v{B+r}, v{LS+r}
            v_cvt_pk_bf16_f32 v{A+2+r}, v{A+r}, v{B+r}''')
        a(f'ds_write2_b32 v{vOW}, v{A+2}, v{A+3} offset0:{w2*128} offset1:{w2*128+4}' if w2 < 2 else
          f'ds_write_b32 v{vOW}, v{A+2} offset:{w2*512}\nds_write_b32 v{vOW}, v{A+3} offset:{w2*512+16}')
    a('s_waitcnt lgkmcnt(0)\ns_barrier')
    EV = f's[{sEVm}:{sEVm+1}]'
    def tag(r): return f'v_and_or_b32 v{r}, v{r}, -2, s{sEP}'
    OAB = [184, 212]
    def oread(rg):
        OA = OAB[rg & 1]
        for i in range(5): a(f'ds_read_b128 {ar(OA+4*i,4)}, v{vOA} offset:{rg*2560+i*512}')
        for i in range(2): a(f'ds_read_b128 {ar(OA+20+4*i,4)}, v{vOX} offset:{rg*2560+i*512}')
    def smfa(d, A, B): a(f'v_smfmac_f32_16x16x64_bf16 {vr(d,4)}, {ar(A,4)}, {B}, v{vIDX}')
    oread(0)
    for rg in range(4):
        OA = OAB[rg & 1]
        AC = OAC if rg & 1 else AK
        for i in range(0, 20, 2): a(f'v_mov_b64 {vr(AC+i,2)}, 0')
        a('s_waitcnt lgkmcnt(0)')
        if rg < 3: oread(rg+1)
        X8 = AC+16
        smfa(X8, OA+20, ar(160,8)); smfa(X8, OA+24, ar(168,8)); smfa(X8, OA+16, ar(176,8))
        for c in range(4):
            for rho in range(5): smfa(AC+4*c, OA+4*rho, ar((c*5+rho)*8, 8))
        a(f'''v_add_f32 v{X8}, v{X8}, v{X8+2}
        v_add_f32 v{X8+1}, v{X8+1}, v{X8+3}
        v_cndmask_b32 v{X8+2}, v{X8}, v{X8+1}, {EV}
        v_mov_b32_dpp v{X8+3}, v{X8+2} quad_perm:[1,0,3,2] row_mask:0xf bank_mask:0xf
        v_cndmask_b32 v{X8}, v{X8+3}, v{X8}, {EV}
        v_cndmask_b32 v{X8+1}, v{X8+1}, v{X8+3}, {EV}
        v_cvt_pk_bf16_f32 v{X8}, v{X8}, v{X8+1}
        {tag(X8)}
        buffer_store_dword v{X8}, v{vPS9}, {W}, s{sPW} offen {SC}''')
        for hh in range(2):
            A, B = AC+8*hh, AC+8*hh+4
            a(f'''v_cvt_pk_bf16_f32 v{A}, v{A}, v{A+2}
            v_cvt_pk_bf16_f32 v{A+2}, v{A+1}, v{A+3}
            v_cvt_pk_bf16_f32 v{A+1}, v{B}, v{B+2}
            v_cvt_pk_bf16_f32 v{A+3}, v{B+1}, v{B+3}
            {tag(A)}
            {tag(A+2)}
            buffer_store_dwordx4 {vr(A,4)}, v{vL16}, {W}, s{sPW} offen offset:{hh*1024} {SC}''')
        a(f's_add_u32 s{sPW}, s{sPW}, {32*PST}')
    a(f's_cmp_ge_u32 s{sRHO}, 72\ns_cbranch_scc1 L_xs_next')
    RB = [AK, AK+16, OAC, OAC+16]
    D, TT = TMP+10, TMP+14
    a(f's_mul_i32 s{sT1}, s{sSEG}, {32*1152}')
    for rg in range(4):
        a.label(f'L_xr{rg}')
        a(f's_mov_b32 s{sT2}, s{sXPo}')
        for i in range(4):
            a(f'buffer_load_dwordx4 {vr(RB[rg]+4*i,4)}, v{vRED}, {W}, s{sT2} offen sc1')
            a(f's_add_u32 s{sT2}, s{sT2}, {8*PST}')
        a(f'''v_mov_b64 {vr(D,2)}, 0
        v_mov_b64 {vr(D+2,2)}, 0
        v_mov_b64 {vr(TT,2)}, 0
        s_add_u32 s{sSPIN}, s{sSPIN}, 1
        s_waitcnt vmcnt(0)''')
        smf(a, D, SEL, vr(RB[rg], 8)); smf(a, D, SEL, vr(RB[rg]+8, 8))
        for i in range(16): a(f'v_bitop3_b32 v{TT+(i&1)}, v{TT+(i&1)}, v{RB[rg]+i}, s{sEP} bitop3:0xf6')
        a(f'''v_and_or_b32 v{TT}, v{TT+1}, s{sXM}, v{TT}
        v_and_b32 v{TT}, 1, v{TT}
        v_cmp_ne_u32 vcc, 0, v{TT}
        s_cbranch_vccz L_xr{rg}_ok
        s_cmp_gt_u32 s{sSPIN}, 3000000
        s_cbranch_scc0 L_xr{rg}''')
        a.label(f'L_xr{rg}_ok')
        a(f's_mov_b32 s{sXPo}, s{sT2}')
        for i in range(4): a(f'v_add_f32_dpp v{D+i}, v{D+i}, v{D+i} row_ror:8 row_mask:0xf bank_mask:0xf')
        a(f'''v_cvt_pk_bf16_f32 v{D}, v{D}, v{D+1}
        v_cvt_pk_bf16_f32 v{D+1}, v{D+2}, v{D+3}
        buffer_store_dwordx2 {vr(D,2)}, v{vOUT}, s[{sOUT}:{sOUT+3}], s{sT1} offen
        s_add_u32 s{sT1}, s{sT1}, {8*1152}''')
    a.label('L_xs_next')
    a(f's_add_u32 s{sSEG}, s{sSEG}, 7\ns_add_u32 s{sN}, s{sN}, 1\ns_cmp_ge_u32 s{sSEG}, 64\ns_cbranch_scc1 L_xs_end')
    offs(sSEG); loads()
    a('s_branch L_xs')
    a.label('L_xs_end')
```

```python
import sys, os
from asmdsl import *
import worker as Wk, xs, chain8, gen_w
a = Asm()
gen_w.prologue(a)
a('s_cmp_lg_u32 s3, 0\ns_cbranch_scc1 L_worker')
chain8.chain(a)
a.label('L_worker')
if os.environ.get('NOWORK'): a('s_branch L_end')
gen_w.worker_entry(a)
Wk.worker_gemm(a)
mark(a, 4, Wk.sDBG)
if os.environ.get('NOXS'): a('s_branch L_end')
xs.xs_pass(a, '')
mark(a, 6, Wk.sDBG)
gen_w.epilogue(a)
open(sys.argv[1], 'w').write(a.text())
```

```python
import re

REG_RE = re.compile(r'\b([vas])(\d+)\b|\b([vas])\[(\d+):(\d+)\]|\b(vcc|exec|m0|scc)\b')

def regs_of(tok):
    out = []
    for m in REG_RE.finditer(tok):
        if m.group(1):
            out.append((m.group(1), int(m.group(2))))
        elif m.group(3):
            out += [(m.group(3), i) for i in range(int(m.group(4)), int(m.group(5)) + 1)]
        else:
            out.append((m.group(6), 0))
    return out

TRANS = ('v_exp_f32', 'v_log_f32', 'v_rcp_f32', 'v_rsq_f32', 'v_sqrt_f32', 'v_sin_f32', 'v_cos_f32', 'v_rcp_iflag_f32')

def mfma_passes(op):
    if '32x32' in op: return 8
    if '16x16' in op: return 4
    if '4x4x4' in op: return 2
    raise ValueError(op)

class Ins:
    def __init__(self, text):
        self.text = text
        t = text.split(';')[0].strip()
        self.op = t.split()[0] if t else ''
        rest = t[len(self.op):].strip()
        ops = [o.strip() for o in re.split(r',(?![^\[]*\])', rest)] if rest else []
        self.ops = ops
        op = self.op
        self.w = []; self.r = []
        self.kind = 'other'
        self.states = 1
        self.srcC = []; self.srcAB = []
        self.dpp = ('_dpp' in op) or any(k in rest for k in ('row_ror', 'row_shr', 'row_shl', 'quad_perm', 'row_mirror', 'row_half_mirror', 'row_bcast', 'row_newbcast'))
        if op.endswith(':') or op.startswith('.') or op == '':
            self.kind = 'label'; self.states = 0
            return
        if op == 's_nop':
            self.kind = 'nop'; self.states = int(ops[0], 0) + 1
            return
        if op.startswith('v_mfma') or op.startswith('v_smfmac'):
            self.kind = 'mfma'; self.passes = mfma_passes(op)
            self.w = regs_of(ops[0])
            self.srcAB = regs_of(ops[1]) + regs_of(ops[2])
            if op.startswith('v_smfmac'):
                self.srcC = regs_of(ops[0]); self.srcAB += regs_of(ops[3].split()[0])
            else:
                self.srcC = regs_of(ops[3].split()[0])
            self.r = self.srcAB + self.srcC
            return
        if op.startswith('v_'):
            self.kind = 'valu'
            if op.startswith('v_permlane') and 'swap' in op:
                self.w = regs_of(ops[0]) + regs_of(ops[1]); self.r = list(self.w); self.perm = True
                return
            if op.startswith('v_cmp'):
                self.w = regs_of(ops[0]); self.r = sum((regs_of(o) for o in ops[1:]), [])
                if op.startswith('v_cmpx'): self.w.append(('exec', 0))
                return
            self.w = regs_of(ops[0])
            srcs = ops[1:]
            if op.startswith(('v_add_co', 'v_sub_co', 'v_addc_co', 'v_subb_co', 'v_subrev_co')):
                self.w += regs_of(ops[1]); srcs = ops[2:]
            self.r = sum((regs_of(o.split()[0]) if o else [] for o in srcs), [])
            if op.startswith(('v_fmac', 'v_pk_fmac', 'v_dot2c', 'v_writelane')) or self.dpp:
                self.r += regs_of(ops[0])
            return
        if op.startswith('buffer_') or op.startswith('global_'):
            self.kind = 'vmem'
            isload = '_load' in op
            islds = re.search(r'\blds\b', rest) is not None
            allr = [regs_of(o.split()[0]) if o else [] for o in ops]
            if op.startswith('buffer_'):
                if op.startswith('buffer_inv') or op.startswith('buffer_wbl2'):
                    return
                if islds:
                    self.r = sum(allr, []) + [('m0', 0)]
                elif isload:
                    self.w = allr[0]; self.r = sum(allr[1:], [])
                    if 'd16' in op: self.r += allr[0]
                else:
                    self.r = sum(allr, [])
                    self.store_data = allr[0]
                    if 'atomic' in op and 'sc0' in rest: self.w = allr[0]
            else:
                if isload and not islds and 'load_lds' not in op:
                    self.w = allr[0]; self.r = sum(allr[1:], [])
                elif 'atomic' in op and 'sc0' in rest:
                    self.w = allr[0]; self.r = sum(allr[1:], [])
                else:
                    self.r = sum(allr, [])
                    self.store_data = allr[1] if len(allr) > 1 else []
            self.wide_store = (not isload) and ('x4' in op or 'x3' in op)
            return
        if op.startswith('ds_'):
            self.kind = 'ds'
            allr = [regs_of(o.split()[0]) if o else [] for o in ops]
            if op.startswith(('ds_read', 'ds_bpermute', 'ds_permute', 'ds_swizzle')) or '_rtn' in op:
                self.w = allr[0]; self.r = sum(allr[1:], [])
                if 'd16' in op: self.r += allr[0]
            else:
                self.r = sum(allr, [])
            return
        if op.startswith('s_'):
            self.kind = 'salu'
            if op.startswith(('s_cmp', 's_bitcmp')):
                self.r = sum((regs_of(o) for o in ops), []); self.w = [('scc', 0)]
            elif op.startswith(('s_cbranch', 's_branch', 's_waitcnt', 's_barrier', 's_endpgm', 's_sleep', 's_setprio')):
                pass
            else:
                if ops:
                    self.w = regs_of(ops[0]); self.r = sum((regs_of(o.split()[0]) if o else [] for o in ops[1:]), [])
                if 'saveexec' in op: self.w.append(('exec', 0))
            return

def need(prod, cons):
    n = 0
    pw = set(prod.w); cr = set(cons.r); cw = set(cons.w)
    if prod.kind == 'valu':
        vw = {x for x in pw if x[0] in 'va'}
        sw = {x for x in pw if x[0] == 's' or x[0] == 'vcc'}
        if cons.kind == 'mfma' and vw & cr: n = max(n, 2)
        if cons.kind == 'valu':
            if getattr(cons, 'perm', False) and vw & cr: n = max(n, 2)
            if cons.dpp and vw & cr: n = max(n, 2)
            if cons.op.startswith(('v_readlane', 'v_readfirstlane')) and vw & cr: n = max(n, 1)
            if prod.op.replace('_e32', '').replace('_e64', '') in TRANS and vw & cr and cons.op.replace('_e32', '').replace('_e64', '') not in TRANS: n = max(n, 1)
            if sw & cr: n = max(n, 4 if cons.op.startswith(('v_readlane', 'v_writelane')) else 2)
            if ('exec', 0) in pw:
                if cons.dpp: n = max(n, 5)
                if getattr(cons, 'perm', False) or cons.op.startswith(('v_readlane', 'v_readfirstlane', 'v_writelane')): n = max(n, 4)
        if cons.kind == 'vmem' and sw & cr: n = max(n, 5)
        if cons.kind == 'salu' and sw & cr: n = max(n, 1)
        if ('exec', 0) in pw and cons.kind == 'mfma': n = max(n, 4)
    if prod.kind == 'mfma':
        P = prod.passes
        tab_c_overlap = {2: 4, 4: 6, 8: 10, 16: 18}[P]
        tab_ab = {2: 5, 4: 8, 8: 12, 16: 20}[P]
        if cons.kind == 'mfma':
            c = set(cons.srcC)
            if pw & c:
                if list(prod.w) == list(cons.srcC) and cons.passes == P:
                    n = max(n, 2 if P == 2 else 0)
                else:
                    n = max(n, tab_c_overlap)
            if pw & set(cons.srcAB): n = max(n, tab_ab)
            if pw & cw and not (pw & c): n = max(n, tab_c_overlap)
        elif cons.kind in ('valu', 'vmem', 'ds'):
            if pw & (cr | cw): n = max(n, tab_ab)
        if cons.kind == 'valu' and set(prod.srcC) & cw:
            n = max(n, {2: 1, 4: 3, 8: 7, 16: 15}[P])
    if prod.kind == 'vmem' and getattr(prod, 'wide_store', False):
        if set(prod.store_data) & cw:
            n = max(n, 2 if cons.kind == 'valu' else 1)
    if prod.kind == 'salu' and ('m0', 0) in pw and ('m0', 0) in cr:
        n = max(n, 1)
    if prod.kind == 'salu' and ('exec', 0) in pw:
        pass
    return n

class Asm:
    def __init__(self):
        self.lines = []
    def __call__(self, text):
        for t in text.strip().split('\n'):
            t = t.strip()
            if not t: continue
            self.emit(t)
    def raw(self, t):
        i = Ins(''); i.text = t; self.lines.append(i)
    def emit(self, t):
        if t.startswith(';'):
            self.raw(t); return
        ins = Ins(t)
        if ins.kind not in ('label', 'nop'):
            dist = 0; req = 0; mdist = 0; seen = False
            for p in reversed(self.lines[-40:]):
                if p.kind == 'label':
                    continue
                k = need(p, ins) if p.kind != 'nop' else 0
                d = dist
                if p.kind == 'mfma' and ins.kind != 'mfma':
                    d = max(dist, mdist)
                if k > d: req = max(req, k - d)
                dist += p.states
                if p.kind == 'mfma':
                    mdist = (mdist if seen else dist - 1) + 4; seen = True
                if dist >= 20: break
            while req > 0:
                k = min(req, 16)
                self.lines.append(Ins('s_nop %d' % (k - 1)))
                req -= k
        self.lines.append(ins)
    def label(self, name):
        self.emit(name + ':')
    def text(self):
        out = []
        for i in self.lines:
            if i.kind == 'label' : out.append(i.text)
            else: out.append('    ' + i.text)
        return '\n'.join(out) + '\n'

def vr(b, n=1):
    return 'v%d' % b if n == 1 else 'v[%d:%d]' % (b, b + n - 1)
def ar(b, n=1):
    return 'a%d' % b if n == 1 else 'a[%d:%d]' % (b, b + n - 1)
def sr(b, n=1):
    return 's%d' % b if n == 1 else 's[%d:%d]' % (b, b + n - 1)

import os as _os
def mark(a, idx, sdbg, va=2, vb=3, inv=False):
    if not int(_os.environ.get('MARK', '0')): return
    if idx in (1, 4, 5): return
    a(f"""s_memrealtime s[96:97]
    s_mov_b64 s[98:99], exec
    s_waitcnt lgkmcnt(0)
    {'s_not_b32 s96, s96' if inv else 's_nop 0'}
    v_mov_b32 v{va}, {(56+idx)*4}
    v_mov_b32 v{vb}, s96
    s_mov_b64 exec, 1
    buffer_atomic_umax v{vb}, v{va}, s[{sdbg}:{sdbg+3}], 0 offen
    s_mov_b64 exec, s[98:99]""")
```

```python
import sys, os
from asmdsl import *
NSTEPS=int(os.environ.get('NSTEPS','64')); NOPOISON=int(os.environ.get('NOPOISON','0')); PROBE=int(os.environ.get('PROBE','0'))
NAME = 'gated_mix__memory_aug_recurrent_mem_tr__linear_attn_block__prompt'
MiB = 1 << 20
WS_KV, WS_QX, WS_PUB = 0, 32*MiB, 48*MiB
WS_PART, WS_MEM = 58*MiB, 59*MiB
PSZ = 9216
PST = 9344
L_MEMS = 0; L_XW = 9216; L_SX5 = 13312; L_OB = 14336; L_W = 16384
OOB = 0x40000000
SC = 'sc1'
SPINMAX = 300000
sWS, sWQ, sWK, sWV, sWO, sM0, sDBG = 8, 12, 16, 20, 24, 28, 32
sH, sW, sS, sT0, sT1, sT2, sT3, sR = 36, 37, 38, 39, 40, 41, 42, 43
sMEMr, sMEMw, sMEMp, sPW, sXW, sX5, sKX, sVX, sPUB, sEP, sMW2, sL4 = 44, 45, 46, 47, 48, 49, 50, 51, 52, 53, 54, 55
sC, sSEL0, sSEL1, sSPIN = 56, 57, 58, 59
sTM = 60
sPR = 64; sOWN = 68
sRHO = 72
sTK, sXM, sRDY = 73, 74, 75
sS0M, sS1M = 100, 2
sEV = 76
sHF0, sHF1, sONE = 4, 6, 78
(vL16, vIDX, vWL, vQKW, vBQ, vAKM, vOW, vPS9, vRED, vMST, vTMP, vOA) = range(12)
PUB = 12
AF = 16; ACC = 52; ACV = 68; T = 76
LDSF = [('qk',0,0),('qk',0,1),('qk',0,2)] + [('qk',sl,3) for sl in range(1,9)] + [('v',6,1),('v',8,1),('v',3,1),('v',5,1)] + [('o8',1),('o',0,1),('o',0,3)]
assert len(LDSF) == 18
ALLF = [('qk',sl,t) for sl in range(9) for t in range(4)] + [('v',sl,t) for sl in range(9) for t in range(2)] + [('o',c,r) for c in range(4) for r in range(4)] + [('o8',0),('o8',1)]
LOC = {}
_res = [f for f in ALLF if f not in LDSF]
assert len(_res) == 54
_wo = sorted([f for f in _res if f[0] == 'o'], key=lambda f: (f[2], f[1])) + [f for f in _res if f[0] == 'o8']
_ot = [f for f in _res if f[0] in ('qk', 'v')]
for i, f in enumerate(_wo): LOC[f] = ('v', 80 + i*8)
for i, f in enumerate(_ot): LOC[f] = ('a', i*8) if i < 32 else ('v', 200 + (i-32)*8)
assert len(_wo) == 15 and len(_ot) == 39
for i, f in enumerate(LDSF): LOC[f] = ('l', i*2048)
BUFTOP = 80 + 15*8
def rstr(kind, b, n):
    return ar(b, n) if kind == 'a' else vr(b, n)
def srd(a, s, lo, nbytes):
    a(f's_mov_b32 s{s}, s{lo}\ns_mov_b32 s{s+1}, s{lo+1}\ns_mov_b32 s{s+2}, {nbytes}\ns_mov_b32 s{s+3}, 0x00020000')

def chain(a):
    import worker as Wk
    p = Wk.ptr
    srd(a, sM0, p(1), 9216); srd(a, sWQ, p(2), 576*8192); srd(a, sWK, p(3), 576*8192); srd(a, sWV, p(4), 576*8192)
    srd(a, sWO, p(5), 4096*1152); srd(a, sDBG, p(12), 256); srd(a, sWS, p(13), 256*MiB)
    a(f'v_readfirstlane_b32 s{sW}, v1')
    mark(a, 0, sDBG, 20, 21, True)
    a(f''' s_mov_b32 s{sH}, s92
    s_memtime s[{sTM}:{sTM+1}]
    s_lshl_b32 s{sR}, s{sH}, 2
    s_add_u32 s{sR}, s{sR}, s{sW}
    s_lshr_b32 s{sRHO}, s{sH}, 3
    s_lshl_b32 s{sRHO}, s{sRHO}, 4
    s_and_b32 s{sT0}, s{sH}, 7
    s_add_u32 s{sRHO}, s{sRHO}, s{sT0}
    s_lshl_b32 s{sT0}, s{sW}, 3
    s_add_u32 s{sRHO}, s{sRHO}, s{sT0}
    s_lshl_b32 s{sT0}, s{sW}, 5
    s_add_u32 s{sT0}, s{sT0}, s{sH}
    s_cmp_ge_u32 s{sW}, 2
    s_cselect_b32 s{sRHO}, s{sT0}, s{sRHO}
    s_mov_b32 s{sSEL0}, 0x05040100
    s_mov_b32 s{sSEL1}, 0x07060302''')
    a(f'v_lshlrev_b32 v{vL16}, 4, v0')
    J, G, LANE, X, Y, RW = 60, 61, 62, 63, 64, 65
    a(f''' v_lshrrev_b32 v{LANE}, 4, v{vL16}
    v_and_b32 v{J}, 15, v{LANE}
    v_lshrrev_b32 v{G}, 4, v{LANE}
    v_and_b32 v{X}, 2, v{LANE}
    v_mov_b32 v{vIDX}, 0x00444444
    v_mov_b32 v{Y}, 0x0049EEEE
    v_cmp_ne_u32 vcc, 0, v{X}
    v_cndmask_b32 v{vIDX}, v{vIDX}, v{Y}, vcc
    s_mov_b64 s[{sHF1}:{sHF1+1}], vcc
    s_not_b64 s[{sHF0}:{sHF0+1}], vcc
    s_mov_b32 s{sONE}, 0x3f803f80
    s_mov_b32 s{sONE+1}, 0x3f803f80
    s_lshl_b32 s{sOWN}, s{sW}, 11
    s_xor_b32 s{sOWN+1}, s{sOWN}, 2048
    s_xor_b32 s{sOWN+2}, s{sOWN}, 4096
    s_xor_b32 s{sOWN+3}, s{sOWN}, 6144
    s_lshl_b32 s{sL4}, s{sW}, 8
    s_add_u32 s{sL4}, s{sL4}, 8192
    s_lshl_b32 s{sXW}, s{sW}, 10
    s_add_u32 s{sXW}, s{sXW}, {L_XW}
    s_lshl_b32 s{sX5}, s{sW}, 2
    s_add_u32 s{sX5}, s{sX5}, {L_SX5}
    v_lshlrev_b32 v{X}, 7, v{G}
    v_lshl_add_u32 v{X}, v{J}, 2, v{X}
    v_add_u32 v{vQKW}, s{sXW}, v{X}
    v_lshrrev_b32 v{X}, 2, v{J}
    v_and_b32 v{Y}, 1, v{J}
    v_lshl_add_u32 v{RW}, v{X}, 1, v{Y}
    v_lshlrev_b32 v{X}, 6, v{RW}
    v_lshl_add_u32 v{X}, v{G}, 4, v{X}
    v_add_u32 v{vBQ}, s{sXW}, v{X}
    v_lshrrev_b32 v{X}, 2, v{J}
    v_lshlrev_b32 v{X}, 7, v{X}
    v_lshl_add_u32 v{X}, v{G}, 4, v{X}
    v_add_u32 v{X}, 512, v{X}
    v_add_u32 v{vAKM}, s{sXW}, v{X}
    v_lshl_add_u32 v{X}, v{G}, 3, v{RW}
    v_lshlrev_b32 v{X}, 4, v{X}
    v_add_u32 v{vOA}, {L_OB}, v{X}
    v_lshrrev_b32 v{X}, 2, v{J}
    v_lshlrev_b32 v{X}, 3, v{X}
    v_lshl_add_u32 v{X}, v{G}, 1, v{X}
    v_lshlrev_b32 v{X}, 4, v{X}
    v_and_b32 v{Y}, 3, v{J}
    v_lshl_add_u32 v{X}, v{Y}, 2, v{X}
    s_lshl_b32 s{sT0}, s{sW}, 9
    s_add_u32 s{sT0}, s{sT0}, {L_OB}
    v_add_u32 v{vOW}, s{sT0}, v{X}
    v_lshrrev_b32 v{X}, 2, v{J}
    v_lshlrev_b32 v{X}, 1, v{X}
    v_lshl_add_u32 v{X}, v{G}, 3, v{X}
    v_and_b32 v{Y}, 1, v{J}
    v_add_u32 v{X}, v{X}, v{Y}
    v_lshlrev_b32 v{X}, 3, v{X}
    v_and_b32 v{Y}, 2, v{J}
    v_lshl_add_u32 v{X}, v{Y}, 1, v{X}
    s_mul_i32 s{sT0}, s{sW}, 1792
    s_sub_u32 s{sT0}, 8192, s{sT0}
    v_add_u32 v{vPS9}, s{sT0}, v{X}
    v_lshrrev_b32 v{X}, 3, v{J}
    v_lshl_add_u32 v{X}, v{X}, 2, v{G}
    v_mul_u32_u24 v{X}, {PST}, v{X}
    v_and_b32 v{Y}, 7, v{J}
    v_lshl_add_u32 v{Y}, v{Y}, 4, v{X}
    s_lshl_b32 s{sT0}, s{sRHO}, 7
    v_add_u32 v{vRED}, s{sT0}, v{Y}
    v_lshrrev_b32 v{Y}, 2, v{J}
    v_cmp_eq_u32 s[{sS0M}:{sS0M+1}], 0, v{Y}
    v_cmp_eq_u32 s[{sS1M}:{sS1M+1}], 1, v{Y}''')
    O, Q, SRC, T1, Q2, R2, H2 = 66, 67, 68, 69, 70, 71, 72
    a(f''' s_lshl_b32 s{sT0}, s{sRHO}, 7
    v_and_b32 v{X}, 7, v{J}
    v_lshlrev_b32 v{X}, 4, v{X}
    v_and_b32 v{Y}, 1, v{G}
    v_lshl_add_u32 v{X}, v{Y}, 3, v{X}
    v_add_u32 v{O}, s{sT0}, v{X}
    v_bfe_u32 v{X}, v{O}, 8, 2
    v_bfe_u32 v{Y}, v{O}, 3, 1
    v_lshl_add_u32 v{RW}, v{X}, 1, v{Y}
    v_lshrrev_b32 v{Q}, 11, v{O}
    v_lshlrev_b32 v{Q}, 4, v{Q}
    v_bfe_u32 v{X}, v{O}, 4, 4
    v_add_u32 v{Q}, v{Q}, v{X}
    v_bfe_u32 v{T1}, v{O}, 10, 1
    v_bfe_u32 v{X}, v{O}, 8, 2
    v_bfe_u32 v{Y}, v{O}, 5, 1
    v_lshl_add_u32 v{Q2}, v{X}, 1, v{Y}
    v_add_u32 v{Q2}, 64, v{Q2}
    v_bfe_u32 v{X}, v{O}, 6, 2
    v_bfe_u32 v{Y}, v{O}, 3, 1
    v_lshl_add_u32 v{R2}, v{X}, 1, v{Y}
    v_bfe_u32 v{H2}, v{O}, 4, 1
    v_cmp_le_u32 vcc, 0x2000, v{O}
    v_cndmask_b32 v{Q}, v{Q}, v{Q2}, vcc
    v_cndmask_b32 v{RW}, v{RW}, v{R2}, vcc
    v_cndmask_b32 v{T1}, v{T1}, v{H2}, vcc
    v_mul_u32_u24 v{SRC}, 1152, v{RW}
    v_lshl_add_u32 v{SRC}, v{Q}, 4, v{SRC}
    v_lshl_add_u32 v{SRC}, v{T1}, 3, v{SRC}
    v_lshrrev_b32 v{X}, 10, v{O}
    v_bfe_u32 v{Y}, v{O}, 5, 3
    v_lshl_add_u32 v{X}, v{X}, 3, v{Y}
    v_bfe_u32 v{Y}, v{O}, 4, 1
    v_cndmask_b32 v{Q}, v{X}, v{Q}, vcc
    v_cndmask_b32 v{T1}, v{Y}, v{T1}, vcc
    v_lshrrev_b32 v{X}, 1, v{RW}
    v_lshlrev_b32 v{X}, 2, v{X}
    v_and_b32 v{Y}, 1, v{Q}
    v_lshl_add_u32 v{X}, v{Y}, 1, v{X}
    v_and_b32 v{Y}, 1, v{RW}
    v_add_u32 v{X}, v{X}, v{Y}
    v_lshlrev_b32 v{X}, 4, v{X}
    v_lshrrev_b32 v{Y}, 1, v{Q}
    v_lshl_add_u32 v{X}, v{Y}, 8, v{X}
    v_lshl_add_u32 v{vMST}, v{T1}, 3, v{X}
    v_cmp_gt_u32 s[80:81], 8, v{J}
    v_cmp_gt_u32 s[82:83], 2, v{G}
    s_and_b64 vcc, s[80:81], s[82:83]
    s_cmp_lt_u32 s{sRHO}, 72
    s_cselect_b64 vcc, vcc, 0
    s_cselect_b64 s[80:81], -1, 0
    v_mov_b32 v{X}, {OOB}
    v_cndmask_b32 v{vMST}, v{X}, v{vMST}, vcc
    v_cndmask_b32 v{SRC}, v{X}, v{SRC}, vcc
    v_cndmask_b32 v{vRED}, v{X}, v{vRED}, s[80:81]''')
    a(f''' v_and_b32 v{X}, 1, v{J}
    v_cmp_eq_u32 s[{sEV}:{sEV+1}], 0, v{X}
    s_mov_b32 s{sC}, 0x3e0293ee
    s_cmp_ge_u32 s{sRHO}, 64
    s_cselect_b32 s{sXM}, 1, 0
    s_mov_b32 s{sPR}, {WS_PART}
    s_mov_b32 s{sPR+1}, {WS_PART+8*PST}
    s_mov_b32 s{sPR+2}, {WS_PART+16*PST}
    s_mov_b32 s{sPR+3}, {WS_PART+24*PST}
    s_mul_i32 s{sPW}, s{sH}, {PST}
    s_add_u32 s{sPW}, s{sPW}, {WS_PART}
    s_add_u32 s{sPW}, s{sPW}, s{sOWN}
    s_lshl_b32 s{sKX}, s{sH}, 14
    s_add_u32 s{sTK}, s{sKX}, {WS_KV + (2<<19)}
    s_add_u32 s{sKX}, s{sKX}, s{sOWN}
    s_add_u32 s{sKX}, s{sKX}, {WS_KV}
    s_add_u32 s{sVX}, s{sKX}, 8192
    s_lshl_b32 s{sPUB}, s{sR}, 10
    s_add_u32 s{sPUB}, s{sPUB}, {WS_PUB}''')
    a(f'buffer_load_dwordx2 v[28:29], v{SRC}, s[{sM0}:{sM0+3}], 0 offen\nv_mov_b32 v30, v{vMST}\nv_mov_b32 v31, v{vRED}')
    a('v_mov_b32 v24, -1\nv_mov_b32 v25, -1\nv_mov_b32 v26, -1\nv_mov_b32 v27, -1')
    a(f'v_lshrrev_b32 v0, 4, v{vL16}')
    J, G, LANE, X, Y, Z, VO = 4, 5, 6, 7, 8, 9, 10
    a(f''' v_mov_b32 v{LANE}, v0
    v_and_b32 v{J}, 15, v{LANE}
    v_lshrrev_b32 v{G}, 4, v{LANE}
    v_lshlrev_b32 v{vL16}, 4, v{LANE}
    v_lshrrev_b32 v{X}, 1, v{G}
    v_lshlrev_b32 v{X}, 4, v{X}
    v_and_b32 v{Y}, 1, v{G}
    v_lshlrev_b32 v{Y}, 2, v{Y}
    v_add_u32 v{X}, v{X}, v{Y}
    v_lshlrev_b32 v{VO}, 13, v{X}
    v_lshl_add_u32 v{VO}, v{J}, 2, v{VO}
    v_mul_u32_u24 v{Z}, 1152, v{X}
    s_mul_i32 s{sT0}, s{sW}, 36864
    s_add_u32 s{sT0}, s{sT0}, {L_W}
    v_add_u32 v{vWL}, s{sT0}, v{vL16}''')
    SW, SR, WO4, WO8, SR2, SE, SO = 11, 12, 13, 14, 15, 3, 1
    a(f''' v_lshlrev_b32 v{SR}, 7, v{X}
    v_lshl_add_u32 v{SR}, v{J}, 2, v{SR}
    s_and_b32 s{sT0}, s{sW}, 1
    s_lshl_b32 s{sT0}, s{sT0}, 6
    v_add_u32 v{SR}, s{sT0}, v{SR}
    s_lshl_b32 s{sT0}, s{sW}, 12
    s_and_b32 s{sT1}, s{sT0}, 0x2000
    v_add_u32 v{SE}, s{sT1}, v{SR}
    v_add_u32 v{SO}, 4096, v{SE}
    v_xor_b32 v{SR2}, 4096, v{SR}
    v_add_u32 v{SR}, s{sT0}, v{SR}
    v_xor_b32 v{SR2}, 4096, v{SR}
    v_add_u32 v{SW}, s{sT0}, v{vL16}
    v_lshrrev_b32 v{X}, 3, v{LANE}
    v_lshlrev_b32 v{VO}, 13, v{X}
    v_and_b32 v{Y}, 7, v{LANE}
    v_lshl_add_u32 v{VO}, v{Y}, 4, v{VO}
    v_lshrrev_b32 v{X}, 5, v{LANE}
    v_lshl_add_u32 v{X}, v{X}, 15, v{VO}
    s_lshl_b32 s{sT3}, s{sH}, 8
    s_lshr_b32 s{sT0}, s{sW}, 1
    s_lshl_b32 s{sT0}, s{sT0}, 7
    s_add_u32 s{sT3}, s{sT3}, s{sT0}
    v_mul_u32_u24 v{Z}, {4*1152}, v{G}
    v_lshl_add_u32 v{WO4}, v{J}, 4, v{Z}
    s_lshl_b32 s{sT0}, s{sW}, 8
    v_add_u32 v{WO4}, s{sT0}, v{WO4}
    v_lshl_add_u32 v{WO8}, v{J}, 1, v{Z}
    s_lshl_b32 s{sT0}, s{sW}, 5
    s_add_u32 s{sT0}, s{sT0}, 1024
    v_add_u32 v{WO8}, s{sT0}, v{WO8}
    s_mul_i32 s{sT1}, s{sH}, 147456''')
    vq = ['m0']
    def vwait(tag):
        idx = max(i for i, t in enumerate(vq) if t == tag)
        a(f's_waitcnt vmcnt({min(len(vq)-1-idx, 63)})')
        del vq[:idx+1]
    RAW = 128
    for rho in range(4):
        for x in range(4):
            kh, p0 = x >> 1, x & 1
            a(f's_add_u32 s{sT2}, s{sT1}, {(32*rho+16*kh+2*p0)*1152}')
            a(f'buffer_load_dwordx4 {vr(RAW+rho*32+x*8,4)}, v{WO4}, s[{sWO}:{sWO+3}], s{sT2} offen')
            a(f'buffer_load_dwordx4 {vr(RAW+rho*32+x*8+4,4)}, v{WO4}, s[{sWO}:{sWO+3}], s{sT2} offen offset:1152')
            vq += [('wo', rho)]*2
    for i in range(4):
        a(f'buffer_store_dwordx4 v[24:27], v31, s[{sWS}:{sWS+3}], s{sPR+i} offen {SC}'); vq.append('pz')
    for slot in range(1, 4):
        a(f's_mov_b32 s{sT0}, {WS_MEM + slot*PSZ}')
        a(f'buffer_store_dwordx2 v[24:25], v30, s[{sWS}:{sWS+3}], s{sT0} offen {SC}'); vq.append('pz')
    jobs = [(m, pp, sg, kh) for m in (0, 1, 2) for pp in (0, 1) for sg in (0, 1) for kh in (0, 1)] + [(m, 8, 0, 0) for m in range(3)]
    def fr(m, slot, t): return ('qk', slot, 2*m+t) if m < 2 else ('v', slot, t)
    def parts(j):
        m, pp, sg, kh = j
        if pp == 8: return [(SE, 8, 0), (SO, 8, 1)]
        return [(SR, 4*pp+sg, kh), (SR2, 4*pp+2+sg, kh)]
    def late(j):
        return any(LOC[fr(j[0], slot, t)][0] == 'v' for (_, slot, _) in parts(j) for t in range(2))
    jobs = [j for j in jobs if not late(j)] + [j for j in jobs if late(j)]
    nlate = sum(map(late, jobs))
    free = [48, 64]
    bufn = {}
    for p in range(2): a(f's_xor_b32 s{84+p}, s{sW}, {2*p}\ns_lshl_b32 s{84+p}, s{84+p}, 20\ns_add_u32 s{84+p}, s{84+p}, s{sT3}')
    a(f's_and_b32 s86, s{sW}, 1\ns_lshl_b32 s86, s86, 18\ns_add_u32 s86, s86, s{sT3}')
    nxt = [0]
    written = set()
    def issue():
        n = nxt[0]
        if n >= len(jobs) or not free: return False
        m, pp, sg, kh = jobs[n]
        def ok(b):
            if b < 200: return True
            for k in range(n+1):
                for (_, slot, _) in parts(jobs[k]):
                    for t in range(2):
                        kind, base = LOC[fr(jobs[k][0], slot, t)]
                        if kind == 'v' and base < b+16 and base+8 > b: return False
            return True
        cand = [b for b in free if ok(b)]
        if not cand: return False
        buf = cand[-1]; free.remove(buf); bufn[n] = buf
        s = (sWQ, sWK, sWV)[m]
        for i in range(4):
            if pp < 8: a(f's_add_u32 s{sT2}, s{84+pp}, {(sg*4+64*kh+16*i)*8192}')
            else: a(f's_add_u32 s{sT2}, s86, {(512+8*i)*8192}')
            a(f'buffer_load_dwordx4 {vr(buf+4*i,4)}, v{X if pp < 8 else VO}, s[{s}:{s+3}], s{sT2} offen')
        vq.extend([('j', n)]*4)
        nxt[0] += 1
        return True
    P, RD = 16, 32
    def consume(n):
        m = jobs[n][0]
        buf = bufn[n]
        vwait(('j', n))
        a('s_barrier')
        if n == 2:
            assert 'seed' not in vq
            a(f'''s_cmp_lg_u32 s{sW}, 0
            s_cbranch_scc1 L_arr
            v_mov_b32 v{RD}, 1
            s_mov_b64 exec, 1
            buffer_atomic_add v{RD}, off, s[{sDBG}:{sDBG+3}], 0 offset:4
            s_mov_b64 exec, -1''')
            a.label('L_arr')
        for i in range(4): a(f'ds_write_b128 v{SW}, {vr(buf+4*i,4)} offset:{i*1024}')
        a('s_waitcnt lgkmcnt(0)\ns_barrier')
        for q, (adr, slot, kh) in enumerate(parts(jobs[n])):
            for b in range(4):
                p0, hf = b >> 1, b & 1
                for u in range(2):
                    a(f'ds_read_b32 v{RD+8*q+2*b+u}, v{adr} offset:{(8*hf+2*p0+u)*128}')
        free.append(buf)
        while issue(): pass
        a('s_waitcnt lgkmcnt(0)')
        for q, (adr, slot, kh) in enumerate(parts(jobs[n])):
            for t in range(2):
                kind, base = LOC[fr(m, slot, t)]
                dst = base+4*kh if kind == 'v' else P + 8*q + 4*t
                for b in range(4):
                    a(f'v_perm_b32 v{dst+b}, v{RD+8*q+2*b+1}, v{RD+8*q+2*b}, s{sSEL1 if t else sSEL0}')
                if kind == 'a':
                    for b in range(4): a(f'v_accvgpr_write_b32 a{base+4*kh+b}, v{dst+b}')
                if kind == 'l':
                    a(f'ds_write_b128 v{vWL}, {vr(dst, 4)} offset:{base + kh*1024}')
    while issue(): pass
    vwait('m0')
    a(f's_mov_b32 s{sT0}, {WS_MEM}\nbuffer_store_dwordx2 v[28:29], v30, s[{sWS}:{sWS+3}], s{sT0} offen {SC}'); vq.append('seed')
    for rho in range(4):
        vwait(('wo', rho))
        for c in range(4):
            kind, base = LOC[('o', c, rho)]
            dst = base if kind == 'v' else P
            for x in range(4):
                kh, p0 = x >> 1, x & 1
                for hf in range(2):
                    a(f'v_perm_b32 v{dst+4*kh+2*p0+hf}, v{RAW+rho*32+x*8+4+c}, v{RAW+rho*32+x*8+c}, s{sSEL1 if hf else sSEL0}')
            if kind == 'l':
                for hh in range(2): a(f'ds_write_b128 v{vWL}, {vr(dst+4*hh,4)} offset:{base+hh*1024}')
        if rho == 2: free.append(208)
        if rho == 3: free.extend([224, 240])
        while issue(): pass
    for n in range(len(jobs)):
        consume(n)
    assert nxt[0] == len(jobs)
    for sg in range(2):
        for b in range(8):
            kh, p0, hf = b >> 2, (b >> 1) & 1, b & 1
            a(f's_add_u32 s{sT2}, s{sT1}, {(32*(sg+2*hf)+16*kh+2*p0)*1152}')
            a(f'buffer_load_ushort v{32+sg*16+2*b}, v{WO8}, s[{sWO}:{sWO+3}], s{sT2} offen')
            a(f'buffer_load_ushort v{33+sg*16+2*b}, v{WO8}, s[{sWO}:{sWO+3}], s{sT2} offen offset:1152')
    a('s_waitcnt vmcnt(0) lgkmcnt(0)')
    for sg in range(2):
        kind, base = LOC[('o8', sg)]
        dst = base if kind == 'v' else P
        for b in range(8): a(f'v_lshl_or_b32 v{dst+b}, v{33+sg*16+2*b}, 16, v{32+sg*16+2*b}')
        if kind == 'l':
            for hh in range(2): a(f'ds_write_b128 v{vWL}, {vr(dst+4*hh,4)} offset:{base+hh*1024}')
    a('s_waitcnt lgkmcnt(0)')
    J, G, LANE, X, Y, RW = 60, 61, 62, 63, 64, 65
    a(f''' v_lshrrev_b32 v{LANE}, 4, v{vL16}
    v_and_b32 v{J}, 15, v{LANE}
    v_lshrrev_b32 v{G}, 4, v{LANE}
    v_and_b32 v{X}, 2, v{LANE}
    v_mov_b32 v{vIDX}, 0x00444444
    v_mov_b32 v{Y}, 0x0049EEEE
    v_cmp_ne_u32 vcc, 0, v{X}
    v_cndmask_b32 v{vIDX}, v{vIDX}, v{Y}, vcc
    s_mov_b64 s[{sHF1}:{sHF1+1}], vcc
    s_not_b64 s[{sHF0}:{sHF0+1}], vcc
    s_mov_b32 s{sONE}, 0x3f803f80
    s_mov_b32 s{sONE+1}, 0x3f803f80
    s_lshl_b32 s{sOWN}, s{sW}, 11
    s_xor_b32 s{sOWN+1}, s{sOWN}, 2048
    s_xor_b32 s{sOWN+2}, s{sOWN}, 4096
    s_xor_b32 s{sOWN+3}, s{sOWN}, 6144
    s_lshl_b32 s{sL4}, s{sW}, 8
    s_add_u32 s{sL4}, s{sL4}, 8192
    s_lshl_b32 s{sXW}, s{sW}, 10
    s_add_u32 s{sXW}, s{sXW}, {L_XW}
    s_lshl_b32 s{sX5}, s{sW}, 2
    s_add_u32 s{sX5}, s{sX5}, {L_SX5}
    v_lshlrev_b32 v{X}, 7, v{G}
    v_lshl_add_u32 v{X}, v{J}, 2, v{X}
    v_add_u32 v{vQKW}, s{sXW}, v{X}
    v_lshrrev_b32 v{X}, 2, v{J}
    v_and_b32 v{Y}, 1, v{J}
    v_lshl_add_u32 v{RW}, v{X}, 1, v{Y}
    v_lshlrev_b32 v{X}, 6, v{RW}
    v_lshl_add_u32 v{X}, v{G}, 4, v{X}
    v_add_u32 v{vBQ}, s{sXW}, v{X}
    v_lshrrev_b32 v{X}, 2, v{J}
    v_lshlrev_b32 v{X}, 7, v{X}
    v_lshl_add_u32 v{X}, v{G}, 4, v{X}
    v_add_u32 v{X}, 512, v{X}
    v_add_u32 v{vAKM}, s{sXW}, v{X}
    v_lshl_add_u32 v{X}, v{G}, 3, v{RW}
    v_lshlrev_b32 v{X}, 4, v{X}
    v_add_u32 v{vOA}, {L_OB}, v{X}
    v_lshrrev_b32 v{X}, 2, v{J}
    v_lshlrev_b32 v{X}, 3, v{X}
    v_lshl_add_u32 v{X}, v{G}, 1, v{X}
    v_lshlrev_b32 v{X}, 4, v{X}
    v_and_b32 v{Y}, 3, v{J}
    v_lshl_add_u32 v{X}, v{Y}, 2, v{X}
    s_lshl_b32 s{sT0}, s{sW}, 9
    s_add_u32 s{sT0}, s{sT0}, {L_OB}
    v_add_u32 v{vOW}, s{sT0}, v{X}
    v_lshrrev_b32 v{X}, 2, v{J}
    v_lshlrev_b32 v{X}, 1, v{X}
    v_lshl_add_u32 v{X}, v{G}, 3, v{X}
    v_and_b32 v{Y}, 1, v{J}
    v_add_u32 v{X}, v{X}, v{Y}
    v_lshlrev_b32 v{X}, 3, v{X}
    v_and_b32 v{Y}, 2, v{J}
    v_lshl_add_u32 v{X}, v{Y}, 1, v{X}
    s_mul_i32 s{sT0}, s{sW}, 1792
    s_sub_u32 s{sT0}, 8192, s{sT0}
    v_add_u32 v{vPS9}, s{sT0}, v{X}
    v_lshrrev_b32 v{X}, 3, v{J}
    v_lshl_add_u32 v{X}, v{X}, 2, v{G}
    v_mul_u32_u24 v{X}, {PST}, v{X}
    v_and_b32 v{Y}, 7, v{J}
    v_lshl_add_u32 v{Y}, v{Y}, 4, v{X}
    s_lshl_b32 s{sT0}, s{sRHO}, 7
    v_add_u32 v{vRED}, s{sT0}, v{Y}
    v_lshrrev_b32 v{Y}, 2, v{J}
    v_cmp_eq_u32 s[{sS0M}:{sS0M+1}], 0, v{Y}
    v_cmp_eq_u32 s[{sS1M}:{sS1M+1}], 1, v{Y}''')
    O, Q, SRC, T1, Q2, R2, H2 = 66, 67, 68, 69, 70, 71, 72
    a(f''' s_lshl_b32 s{sT0}, s{sRHO}, 7
    v_and_b32 v{X}, 7, v{J}
    v_lshlrev_b32 v{X}, 4, v{X}
    v_and_b32 v{Y}, 1, v{G}
    v_lshl_add_u32 v{X}, v{Y}, 3, v{X}
    v_add_u32 v{O}, s{sT0}, v{X}
    v_bfe_u32 v{X}, v{O}, 8, 2
    v_bfe_u32 v{Y}, v{O}, 3, 1
    v_lshl_add_u32 v{RW}, v{X}, 1, v{Y}
    v_lshrrev_b32 v{Q}, 11, v{O}
    v_lshlrev_b32 v{Q}, 4, v{Q}
    v_bfe_u32 v{X}, v{O}, 4, 4
    v_add_u32 v{Q}, v{Q}, v{X}
    v_bfe_u32 v{T1}, v{O}, 10, 1
    v_bfe_u32 v{X}, v{O}, 8, 2
    v_bfe_u32 v{Y}, v{O}, 5, 1
    v_lshl_add_u32 v{Q2}, v{X}, 1, v{Y}
    v_add_u32 v{Q2}, 64, v{Q2}
    v_bfe_u32 v{X}, v{O}, 6, 2
    v_bfe_u32 v{Y}, v{O}, 3, 1
    v_lshl_add_u32 v{R2}, v{X}, 1, v{Y}
    v_bfe_u32 v{H2}, v{O}, 4, 1
    v_cmp_le_u32 vcc, 0x2000, v{O}
    v_cndmask_b32 v{Q}, v{Q}, v{Q2}, vcc
    v_cndmask_b32 v{RW}, v{RW}, v{R2}, vcc
    v_cndmask_b32 v{T1}, v{T1}, v{H2}, vcc
    v_mul_u32_u24 v{SRC}, 1152, v{RW}
    v_lshl_add_u32 v{SRC}, v{Q}, 4, v{SRC}
    v_lshl_add_u32 v{SRC}, v{T1}, 3, v{SRC}
    v_lshrrev_b32 v{X}, 10, v{O}
    v_bfe_u32 v{Y}, v{O}, 5, 3
    v_lshl_add_u32 v{X}, v{X}, 3, v{Y}
    v_bfe_u32 v{Y}, v{O}, 4, 1
    v_cndmask_b32 v{Q}, v{X}, v{Q}, vcc
    v_cndmask_b32 v{T1}, v{Y}, v{T1}, vcc
    v_lshrrev_b32 v{X}, 1, v{RW}
    v_lshlrev_b32 v{X}, 2, v{X}
    v_and_b32 v{Y}, 1, v{Q}
    v_lshl_add_u32 v{X}, v{Y}, 1, v{X}
    v_and_b32 v{Y}, 1, v{RW}
    v_add_u32 v{X}, v{X}, v{Y}
    v_lshlrev_b32 v{X}, 4, v{X}
    v_lshrrev_b32 v{Y}, 1, v{Q}
    v_lshl_add_u32 v{X}, v{Y}, 8, v{X}
    v_lshl_add_u32 v{vMST}, v{T1}, 3, v{X}
    v_cmp_gt_u32 s[80:81], 8, v{J}
    v_cmp_gt_u32 s[82:83], 2, v{G}
    s_and_b64 vcc, s[80:81], s[82:83]
    s_cmp_lt_u32 s{sRHO}, 72
    s_cselect_b64 vcc, vcc, 0
    s_cselect_b64 s[80:81], -1, 0
    v_mov_b32 v{X}, {OOB}
    v_cndmask_b32 v{vMST}, v{X}, v{vMST}, vcc
    v_cndmask_b32 v{SRC}, v{X}, v{SRC}, vcc
    v_cndmask_b32 v{vRED}, v{X}, v{vRED}, s[80:81]''')
    a(f''' v_and_b32 v{X}, 1, v{J}
    v_cmp_eq_u32 s[{sEV}:{sEV+1}], 0, v{X}
    s_mov_b32 s{sC}, 0x3e0293ee
    s_cmp_ge_u32 s{sRHO}, 64
    s_cselect_b32 s{sXM}, 1, 0
    s_mov_b32 s{sPR}, {WS_PART}
    s_mov_b32 s{sPR+1}, {WS_PART+8*PST}
    s_mov_b32 s{sPR+2}, {WS_PART+16*PST}
    s_mov_b32 s{sPR+3}, {WS_PART+24*PST}
    s_mul_i32 s{sPW}, s{sH}, {PST}
    s_add_u32 s{sPW}, s{sPW}, {WS_PART}
    s_add_u32 s{sPW}, s{sPW}, s{sOWN}
    s_lshl_b32 s{sKX}, s{sH}, 14
    s_add_u32 s{sTK}, s{sKX}, {WS_KV + (2<<19)}
    s_add_u32 s{sKX}, s{sKX}, s{sOWN}
    s_add_u32 s{sKX}, s{sKX}, {WS_KV}
    s_add_u32 s{sVX}, s{sKX}, 8192
    s_lshl_b32 s{sPUB}, s{sR}, 10
    s_add_u32 s{sPUB}, s{sPUB}, {WS_PUB}''')
    mark(a, 1, sDBG, 20, 21)
    if os.environ.get('NOWORK'): a('s_waitcnt vmcnt(0)\ns_branch L_end')
    a('s_barrier')
    a(f's_mov_b32 s{sSPIN}, 0')
    a.label('L_bar_loop')
    a(f''' buffer_load_dwordx4 v[20:23], off, s[{sDBG}:{sDBG+3}], 0 sc1
    s_waitcnt vmcnt(0)
    v_readfirstlane_b32 s{sT0}, v21
    v_readfirstlane_b32 s{sT1}, v22
    v_readfirstlane_b32 s{sT2}, v20
    s_add_u32 s{sSPIN}, s{sSPIN}, 1
    s_cmp_gt_u32 s{sSPIN}, {SPINMAX}
    s_cbranch_scc1 L_end
    s_cmp_lt_u32 s{sT0}, 32
    s_cbranch_scc1 L_bar_loop
    s_cmp_lt_u32 s{sT1}, 96
    s_cbranch_scc1 L_bar_loop
    s_mov_b32 s{sRDY}, 0
    s_mov_b32 s{sT0}, 2''')
    step10.rdy(a, '_i', globals())
    a.label('L_rdy_done_i')
    a(f''' v_lshlrev_b32 v20, 3, v{vL16}
    s_lshl_b32 s{sT0}, s{sW}, 13
    s_and_b32 s{sT1}, s{sT0}, 0x2000
    s_lshr_b32 s{sT0}, s{sW}, 1
    s_lshl_b32 s{sT0}, s{sT0}, 19
    s_add_u32 s{sT0}, s{sT0}, s{sT1}
    s_add_u32 s{sT0}, s{sT0}, s{sTK}
    s_sub_u32 s{sT0}, s{sT0}, {2<<19}
    buffer_load_dword v21, v20, s[{sWS}:{sWS+3}], s{sT0} offen
    s_memtime s[{sTM+2}:{sTM+3}]
    s_mov_b32 s{sS}, 0
    s_mov_b32 s{sSPIN}, 0
    s_waitcnt lgkmcnt(0)
    s_mov_b32 s{sMEMr}, {OOB}
    s_mov_b32 s{sMEMw}, {WS_MEM}
    s_cmp_ge_u32 s{sRHO}, 72
    s_cbranch_scc1 L_step_n''')
    mark(a, 2, sDBG, 20, 21)
    slow = f's_cmp_lt_u32 s{sT2}, {1000 if os.environ.get("FORCESLOW") else 32}'
    a(slow + '\ns_cbranch_scc1 L_slow_r')
    step(a, True, '')
    a('s_branch L_fin')
    a.label('L_slow_r')
    step(a, True, 'sc1')
    a('s_branch L_fin')
    a.label('L_step_n')
    a(f'v_lshlrev_b32 v{vRED}, 3, v{vL16}\ns_cmp_eq_u32 s{sRHO}, 127\ns_cselect_b32 s{sXM}, {Wk.D_PROG*4}, s{sWS+2}')
    a(slow + '\ns_cbranch_scc1 L_slow_n')
    step(a, False, '')
    a('s_branch L_fin_n')
    a.label('L_slow_n')
    step(a, False, 'sc1')
    a.label('L_fin_n')
    a(f'v_mov_b32 v20, 100\nbuffer_store_dword v20, off, s[{sDBG}:{sDBG+3}], s{sXM} sc1')
    a.label('L_fin')
    mark(a, 3, sDBG, 20, 21)
    a(f'buffer_store_dwordx4 {vr(PUB,4)}, v{vL16}, s[{sWS}:{sWS+3}], s{sPUB} offen sc1')
    a(f''' s_memtime s[84:85]
    s_waitcnt lgkmcnt(0)
    s_cmp_lg_u32 s{sR}, 0
    s_cbranch_scc1 L_end
    s_sub_u32 s{sT0}, s{sTM+2}, s{sTM}
    s_sub_u32 s{sT1}, s84, s{sTM+2}
    v_mov_b32 v30, s{sT0}
    v_mov_b32 v31, s{sT1}
    v_mov_b32 v32, s{sSPIN}
    v_mov_b32 v33, 0
    v_mov_b32 v29, 16
    s_mov_b64 exec, 1
    buffer_store_dwordx4 v[30:33], v29, s[{sDBG}:{sDBG+3}], 0 offen
    s_waitcnt vmcnt(0)''')
    a('s_branch L_end')

def smf(a, d, A, B):
    kind, b = B
    a(f'v_smfmac_f32_16x16x64_bf16 {vr(d,4)}, {vr(A,4)}, {rstr(kind,b,8)}, v{vIDX}')

STAMPS=[12,14,16,18,20,22,24,26,28,30,80,82,84,86,88,90,92,94,96,98]
nst_=[0]
def stamp(a, name):
    if not PROBE: return
    k=nst_[0]; nst_[0]+=1
    a(f's_memtime s[{STAMPS[k]}:{STAMPS[k]+1}]')
    print('stamp',k,name)
def stamp_dump(a, sfx):
    if not PROBE: return
    a(f"""s_cmp_lg_u32 s{sS}, 40
    s_cbranch_scc1 L_nodump{sfx}
    s_waitcnt lgkmcnt(0)
    v_mov_b32 v60, 0""")
    for k in range(nst_[0]): a(f'v_writelane_b32 v60, s{STAMPS[k]}, {k}')
    a(f"""s_lshl_b32 s{sT0}, s{sR}, 8
    s_add_u32 s{sT0}, s{sT0}, {200*MiB}
    v_lshrrev_b32 v61, 2, v{vL16}
    buffer_store_dword v60, v61, s[{sWS}:{sWS+3}], s{sT0} offen""")
    a.label('L_nodump'+sfx)
    nst_[0] = 0

import step10
def step(a, red, sc):
    g = dict(globals()); g['SC'] = sc
    step10.step(a, red, g)
```

```python
import sys
from asmdsl import *
import worker as Wk
NAME = 'gated_mix__memory_aug_recurrent_mem_tr__linear_attn_block__prompt'
def prologue(a):
    a.raw('; @launch grid=(256,1,1) block=(256,1,1) lds=163840')
    a.raw('.amdgcn_target "amdgcn-amd-amdhsa--gfx950"\n.text\n.globl %s_kernel\n.p2align 8\n.type %s_kernel,@function' % (NAME, NAME))
    a.label(NAME + '_kernel')
    a('s_cmp_ge_u32 s2, 256\ns_cbranch_scc1 L_end')
    a('''s_load_dwordx16 s[64:79], s[0:1], 0
    s_load_dwordx8 s[80:87], s[0:1], 64
    s_load_dwordx4 s[88:91], s[0:1], 96
    s_getreg_b32 s3, hwreg(HW_REG_XCC_ID)
    s_and_b32 s3, s3, 7
    v_lshrrev_b32 v1, 6, v0
    v_and_b32 v0, 63, v0
    s_waitcnt lgkmcnt(0)''')
def epilogue(a):
    a.label('L_end')
    a('s_endpgm')
    a.raw(f'''.section .rodata,"a"
.p2align 6
.amdhsa_kernel {NAME}_kernel
  .amdhsa_next_free_vgpr 512
  .amdhsa_next_free_sgpr 102
  .amdhsa_accum_offset 256
  .amdhsa_group_segment_fixed_size 0
  .amdhsa_kernarg_size 112
  .amdhsa_user_sgpr_count 2
  .amdhsa_user_sgpr_kernarg_segment_ptr 1
  .amdhsa_system_sgpr_workgroup_id_x 1
.end_amdhsa_kernel''')
def roles(a):
    import os
    W = Wk
    fx = os.environ.get('FX')
    if fx == 'wg': a('s_lshr_b32 s3, s2, 5')
    if fx == 'uneven': a('s_min_u32 s3, s3, 5')
    if fx == 'uneven2': a('s_max_u32 s3, s3, 2')
    W.srd(a, 4, W.ptr(12), 256)
    a(f'''v_readfirstlane_b32 s93, v1
    s_lshl_b32 s94, s3, 2
    s_add_u32 s94, s94, {W.D_TK*4}
    s_cmp_eq_u32 s3, 0
    s_cselect_b32 s94, 0, s94
    v_mov_b32 v11, 1
    v_mov_b32 v12, 0
    s_cmp_lg_u32 s93, 0
    s_cbranch_scc1 L_wtk
    s_mov_b64 exec, 1
    buffer_atomic_add v11, off, s[4:7], s94 sc0
    s_waitcnt vmcnt(0)
    ds_write_b32 v12, v11
    s_waitcnt lgkmcnt(0)
    s_mov_b64 exec, -1''')
    a.label('L_wtk')
    a(f'''s_barrier
    ds_read_b32 v11, v12
    s_waitcnt lgkmcnt(0)
    v_readfirstlane_b32 s92, v11
    s_nop 3
    s_barrier
    s_cmp_lt_u32 s92, 32
    s_cbranch_scc1 L_role_ok
    v_lshlrev_b32 v10, 2, v0
    v_add_u32 v10, {W.D_TK*4}, v10
    v_cmp_eq_u32 vcc, 0, v0
    v_cndmask_b32 v10, v10, v12, vcc
    s_mov_b32 s95, 0''')
    a.label('L_ovf')
    a('buffer_load_dword v11, v10, s[4:7], 0 offen sc1\ns_waitcnt vmcnt(0)\ns_mov_b32 s94, 0')
    for x in range(8): a(f'v_readlane_b32 s{8+x}, v11, {x}')
    for x in range(8): a(f's_add_u32 s94, s94, s{8+x}')
    a('''s_add_u32 s95, s95, 1
    s_cmp_gt_u32 s95, 300000
    s_cbranch_scc1 L_end
    s_sleep 8
    s_cmp_lt_u32 s94, 256
    s_cbranch_scc1 L_ovf
    s_sub_u32 s92, s92, 32''')
    for x in range(7):
        a(f'''s_max_u32 s94, s{8+x}, 32
        s_sub_u32 s94, s94, 32
        s_cmp_gt_u32 s3, {x}
        s_cselect_b32 s94, s94, 0
        s_add_u32 s92, s92, s94''')
    for x in range(8):
        a(f'''s_min_u32 s94, s{8+x}, 32
        s_sub_u32 s95, 32, s94
        s_mov_b32 s3, {x}
        s_cmp_lt_u32 s92, s95
        s_cbranch_scc1 L_vac
        s_sub_u32 s92, s92, s95''')
    a('s_branch L_end')
    a.label('L_vac')
    a('s_add_u32 s92, s92, s94')
    a.label('L_role_ok')
def worker_entry(a):
    W = Wk
    W.srd(a, W.sDBG, W.ptr(12), 256); W.srd(a, W.sWS, W.ptr(13), 256<<20)
    a(f'''s_mov_b32 s{W.sW}, s93
    s_sub_u32 s{W.sTEAM}, s3, 1
    s_lshl_b32 s{W.sI}, s{W.sTEAM}, 5
    s_add_u32 s{W.sI}, s{W.sI}, s92''')
if __name__ == '__main__':
    a = Asm()
    prologue(a)
    roles(a)
    a('s_cmp_eq_u32 s3, 0\ns_cbranch_scc1 L_end')
    a('s_memrealtime s[94:95]')
    worker_entry(a)
    Wk.worker_gemm(a)
    a(f'''s_memrealtime s[96:97]
    s_waitcnt lgkmcnt(0)
    s_sub_u32 s96, s96, s94
    v_mov_b32 v2, 20
    v_mov_b32 v3, s96
    s_mov_b64 exec, 1
    buffer_atomic_umax v3, v2, s[{Wk.sDBG}:{Wk.sDBG+3}], 0 offen
    s_waitcnt vmcnt(0)''')
    epilogue(a)
    open(sys.argv[1], 'w').write(a.text())
```

```python
import os
import worker as Wk
from asmdsl import *
def rdy(a, sfx, g):
    globals().update({k: v for k, v in g.items() if not k.startswith('__') and k != 'step'})
    a.label('L_rdy'+sfx)
    a(f""" v_lshrrev_b32 v{ACC}, 2, v{vL16}
    v_and_b32 v{ACC}, 60, v{ACC}
    buffer_load_dword v{ACC+1}, v{ACC}, s[{sDBG}:{sDBG+3}], 0 offen offset:{Wk.D_KV*4} sc1
    s_add_u32 s{sSPIN}, s{sSPIN}, 1
    s_waitcnt vmcnt(0)
    v_cmp_gt_u32 vcc, 128, v{ACC+1}
    s_or_b32 s{sT1}, vcc_lo, 0x10000
    s_ff1_i32_b32 s{sT1}, s{sT1}
    s_lshl_b32 s{sRDY}, s{sT1}, 2
    s_cmp_eq_u32 s{sT1}, 16
    s_cselect_b32 s{sRDY}, 100, s{sRDY}
    s_cmp_gt_u32 s{sSPIN}, {SPINMAX}
    s_cbranch_scc1 L_rdy_done{sfx}
    s_cmp_ge_u32 s{sT0}, s{sRDY}
    s_cbranch_scc1 L_rdy{sfx}
    s_branch L_rdy_done{sfx}""")

def step(a, RED, g):
    globals().update({k: v for k, v in g.items() if not k.startswith('__') and k != 'step'})
    env = os.environ
    W = f's[{sWS}:{sWS+3}]'
    sfx = ('_r' if RED else '_x') + SC
    A01 = 16; AFW = [24, 28, 32]; WIN = [36, 44]
    lds = []
    def L(tag, n=1): lds.extend([tag]*n)
    def waitfor(tag):
        if tag not in lds: return
        idx = max(i for i, t in enumerate(lds) if t == tag)
        rem = len(lds) - 1 - idx
        a(f's_waitcnt lgkmcnt({min(rem,15)})')
        del lds[:idx+1]
    where = {}
    def wl(f, buf):
        base = LOC[f][1]; assert LOC[f][0] == 'l'
        a(f'ds_read_b128 {vr(buf,4)}, v{vWL} offset:{base}\nds_read_b128 {vr(buf+4,4)}, v{vWL} offset:{base+1024}')
        L(f, 2); where[f] = buf
    def mm(acc, A, f):
        if LOC[f][0] == 'l':
            waitfor(f); smf(a, acc, A, ('v', where[f]))
        else: smf(a, acc, A, LOC[f])
    def hs(X): return f'v_add_f32 v{X}, v{X}, v{X+2}\nv_add_f32 v{X+1}, v{X+1}, v{X+3}'
    def h1(X, r): return f'v_add_f32 v{X+r}, v{X+r}, v{X+r+2}'
    def z4(X): return f'v_mov_b64 {vr(X,2)}, 0\nv_mov_b64 {vr(X+2,2)}, 0'
    def prep():
        for f, b in ((('qk',0,0), WIN[0]), (('qk',0,1), WIN[1]), (('qk',0,2), AFW[0])): wl(f, b)
        a(f's_add_u32 s{sMW2}, s{sMEMw}, s{sOWN}\nv_lshrrev_b32 v{vTMP}, 2, v{vL16}\nv_add_u32 v{vTMP}, s{sL4}, v{vTMP}')
        a(f'v_add_u32 v{AFW[2]}, s{sOWN}, v{vL16}')
        for p in range(3): a(f'v_add_u32 v{T+p}, s{sOWN+1+p}, v{vL16}')
        a('s_waitcnt lgkmcnt(0)'); lds.clear()
    prep()
    a.label('L_loop'+sfx)
    if int(env.get('STEPT', '0')) and RED:
        a(f"""s_memtime s[96:97]
        s_memrealtime s[98:99]
        s_waitcnt lgkmcnt(0)
        s_lshl_b32 s{sT1}, s{sS}, 3
        s_lshl_b32 s{sT2}, s{sR}, 10
        s_add_u32 s{sT1}, s{sT1}, s{sT2}
        s_add_u32 s{sT1}, s{sT1}, {201*MiB}
        v_mov_b32 v{ACC}, s96
        v_mov_b32 v{ACC+1}, s98
        v_mov_b32 v{ACC+2}, 0
        s_mov_b64 exec, 1
        buffer_store_dwordx2 {vr(ACC,2)}, v{ACC+2}, {W}, s{sT1} offen
        s_mov_b64 exec, -1""")
    stamp(a, 'top')
    OWNA, CK = AFW[2], AFW[2]+1
    def pm_loads():
        a(f""" buffer_load_dwordx4 {vr(A01,4)}, v{vL16}, {W}, s{sMW2} offen sc1
        buffer_load_dwordx4 {vr(A01+4,4)}, v{vL16}, {W}, s{sMW2} offen offset:1024 sc1
        buffer_load_dword v{T+3}, v{vTMP}, {W}, s{sMEMw} offen sc1""")
    early = int(env.get('EARLY', '1'))
    if early: pm_loads()
    a(f""" s_mov_b32 s{sMEMp}, s{sMEMr}
    s_mov_b32 s{sMEMr}, s{sMEMw}
    s_and_b32 s{sEP}, s{sS}, 1""")
    for f, b in ((('qk',0,0), WIN[0]), (('qk',0,1), WIN[1]), (('qk',0,2), AFW[0])): where[f] = b
    for i in range(0, 24, 2): a(f'v_mov_b64 {vr(ACC+i,2)}, 0')
    if not early: pm_loads()
    a.label('L_pm_chk'+sfx)
    a(f""" s_waitcnt vmcnt(0)
    ds_write_b128 v{OWNA}, {vr(A01,4)}
    v_max3_u32 v{CK}, v{A01}, v{A01+1}, v{A01+2}
    v_max3_u32 v{CK+1}, v{A01+3}, v{A01+4}, v{A01+5}
    ds_write_b128 v{OWNA}, {vr(A01+4,4)} offset:1024
    v_max3_u32 v{CK}, v{CK}, v{A01+6}, v{A01+7}
    v_max3_u32 v{CK}, v{CK}, v{CK+1}, v{T+3}
    ds_write_b32 v{vTMP}, v{T+3}
    v_cmp_eq_u32 vcc, -1, v{CK}
    s_cbranch_vccnz L_pm{sfx}""")
    a.label('L_pm_done'+sfx)
    a('s_mov_b64 exec, -1')
    stamp(a, 'mem ok')
    L('mw', 3)
    Q0, Q1, K0, K1 = ACC, ACC+4, ACC+8, ACC+12
    AC = [Q0, Q1, K0, K1]
    mm(Q0, A01, ('qk',0,0)); wl(('qk',1,3), WIN[0])
    mm(Q1, A01, ('qk',0,1)); wl(('qk',2,3), WIN[1])
    mm(K0, A01, ('qk',0,2)); mm(K1, A01, ('qk',0,3))
    waitfor('mw')
    a('s_barrier')
    stamp(a, 'post B1')
    afb = {}
    def afread(slot, buf, tmp=None):
        if slot == 8: a(f'ds_read_b128 {vr(buf,4)}, v{vL16} offset:8192')
        else: a(f'ds_read_b128 {vr(buf,4)}, v{T-1+(slot>>1) if tmp is None else tmp} offset:{(slot&1)*1024}')
        L(('af', slot)); afb[slot] = buf
    for i in range(3): afread(2+i, AFW[i])
    for t in range(3): mm(AC[t], A01+4, ('qk',1,t))
    mm(ACV, A01, ('v',0,0)); mm(ACV+4, A01, ('v',0,1))
    mm(ACV, A01+4, ('v',1,0)); mm(ACV+4, A01+4, ('v',1,1))
    mm(K1, A01+4, ('qk',1,3)); wl(('qk',3,3), WIN[0])
    KX = A01
    PZ = PUB
    fill = [f'buffer_load_dwordx4 {vr(KX,4)}, v{vL16}, {W}, s{sKX} offen', f's_add_u32 s{sT2}, s{sTK}, 8192', f's_add_u32 s{sT1}, s{sS}, 1',
            f'buffer_load_dwordx4 {vr(KX+4,4)}, v{vL16}, {W}, s{sKX} offen offset:1024', f's_and_b32 s{sT1}, s{sT1}, 3', f's_mul_i32 s{sMEMw}, s{sT1}, {PSZ}']
    if RED: fill += [f'v_mov_b64 {vr(PZ,2)}, -1', f'buffer_store_dwordx2 {vr(PZ,2)}, v{vMST}, {W}, s{sMEMp} offen {SC}']
    fill += [f's_add_u32 s{sMEMw}, s{sMEMw}, {WS_MEM}', f's_add_u32 s{sKX}, s{sKX}, {1<<19}']
    nvm_after_k = 1 if RED else 0
    for slot in range(2, 6):
        waitfor(('af', slot))
        for t in range(4):
            mm(AC[t], afb[slot], ('qk', slot, t))
            if t < 3 and fill: a(fill.pop(0))
        wl(('qk', slot+2, 3), WIN[(slot+1) % 2])
        afread(slot+3, afb[slot])
    assert not fill
    stamp(a, 's5 done')
    BQ0, BQ1 = WIN[0], WIN[0]+4
    VW = WIN[1]
    waitfor(('af', 6))
    mm(Q0, afb[6], ('qk',6,0)); mm(Q1, afb[6], ('qk',6,1)); mm(K1, afb[6], ('qk',6,3)); wl(('qk',8,3), WIN[1])
    waitfor(('af', 7))
    mm(Q0, afb[7], ('qk',7,0)); mm(Q1, afb[7], ('qk',7,1)); mm(K1, afb[7], ('qk',7,3))
    waitfor(('af', 8))
    mm(Q0, afb[8], ('qk',8,0)); a(f'v_mov_b64 {vr(BQ0,2)}, 0')
    mm(Q1, afb[8], ('qk',8,1)); a(f'v_mov_b64 {vr(BQ0+2,2)}, 0')
    mm(K0, afb[6], ('qk',6,2)); a(f'v_mov_b64 {vr(BQ1,2)}, 0')
    mm(K0, afb[7], ('qk',7,2)); a(f'v_mov_b64 {vr(BQ1+2,2)}, 0')
    mm(K0, afb[8], ('qk',8,2)); a(h1(Q0,0))
    mm(K1, afb[8], ('qk',8,3)); wl(('v',6,1), VW); a(h1(Q0,1))
    stamp(a, 'k done')
    vops = [(7,0),(7,1),(6,0),(8,0),(6,1),(2,0),(2,1),(8,1),(3,0),(4,0),(4,1),(3,1),(5,0),(5,1)]
    after = {1: ('af', 2, 7), 4: ('af', 3, 6), 6: ('af', 4, 7), 7: ('af', 5, 8)}
    nextl = {(6,1): (8,1), (8,1): (3,1), (3,1): (5,1)}
    bufs = dict(afb)
    st = {'i': 0}
    def vstep():
        i = st['i']
        if i >= len(vops): return
        slot, t = vops[i]
        waitfor(('af', slot))
        mm(ACV+4*t, afb[slot], ('v', slot, t))
        if (slot, t) in nextl: wl(('v',)+nextl[(slot, t)], VW)
        if i in after:
            _, sl, src = after[i]
            if sl % 2 == 0: a(f'v_add_u32 v{vTMP}, s{sOWN+(sl>>1)}, v{vL16}')
            afread(sl, bufs[src], vTMP)
        st['i'] += 1
    a(f""" {hs(Q1)}
    v_cvt_pk_bf16_f32 v{Q0+2}, v{Q0}, v{Q1}
    v_cvt_pk_bf16_f32 v{Q0+3}, v{Q0+1}, v{Q1+1}
    ds_write2_b32 v{vQKW}, v{Q0+2}, v{Q0+3} offset0:0 offset1:16
    s_mov_b64 exec, s[{sHF0}:{sHF0+1}]
    ds_read_b128 {vr(BQ0,4)}, v{vBQ}
    s_mov_b64 exec, s[{sHF1}:{sHF1+1}]
    ds_read_b128 {vr(BQ1,4)}, v{vBQ}
    s_mov_b64 exec, -1"""); L('qw'); L('bq', 2)
    a(f""" {hs(K0)}
    {hs(K1)}
    v_cvt_pk_bf16_f32 v{PUB}, v{K0}, v{K1}
    v_cvt_pk_bf16_f32 v{PUB+1}, v{K0+1}, v{K1+1}
    ds_write2_b32 v{vQKW}, v{PUB}, v{PUB+1} offset0:128 offset1:144"""); L('kw')
    AK0, AK1 = K0, K1
    S0, S1 = Q0, Q1
    a(f'ds_read_b128 {vr(AK0,4)}, v{vAKM}\nds_read_b128 {vr(AK1,4)}, v{vAKM} offset:64'); L('ak', 2)
    vstep()
    waitfor('bq')
    a(f's_waitcnt vmcnt({nvm_after_k})')
    VX = A01
    a(f""" v_mfma_f32_16x16x32_bf16 {vr(S0,4)}, {vr(KX,4)}, {vr(BQ0,4)}, 0
    v_add_u32 v{T}, s{sXW}, v{vL16}
    v_mfma_f32_16x16x32_bf16 {vr(S0,4)}, {vr(KX+4,4)}, {vr(BQ1,4)}, {vr(S0,4)}
    v_add_u32 v{T+1}, s{sX5}, v{vL16}""")
    waitfor('ak')
    stamp(a, 'ak ok')
    a(f""" v_mfma_f32_16x16x32_bf16 {vr(S1,4)}, {vr(AK0,4)}, {vr(BQ0,4)}, 0
    buffer_load_dwordx4 {vr(VX,4)}, v{vL16}, {W}, s{sVX} offen
    v_mfma_f32_16x16x32_bf16 {vr(S1,4)}, {vr(AK1,4)}, {vr(BQ1,4)}, {vr(S1,4)}
    buffer_load_dwordx4 {vr(VX+4,4)}, v{vL16}, {W}, s{sVX} offen offset:1024""")
    vstep()
    a(f'ds_write_b128 v{T}, {vr(S0,4)}'); L('sx')
    vstep()
    a(f'ds_write_b32 v{T+1}, v{S1}'); L('sx')
    vstep()
    a(f'buffer_store_dwordx4 {vr(PUB,4)}, v{vL16}, {W}, s{sPUB} offen sc1')
    vstep()
    waitfor('sx')
    stamp(a, 'pre B2')
    a('s_barrier')
    stamp(a, 'post B2')
    R = ACC
    S5 = BQ0
    O0 = BQ1; O1 = T
    for w in range(4):
        a(f'ds_read_b128 {vr(R+4*w,4)}, v{vL16} offset:{L_XW+w*1024}')
    a(f'ds_read_b128 {vr(S5,4)}, v{vL16} offset:{L_SX5}'); L('sr', 5)
    vstep(); a(f'v_mov_b64 {vr(O0,2)}, 0')
    if not RED: a(f'buffer_load_dword v{vMST}, v{vRED}, {W}, s{sTK} offen')
    vstep(); a(f'v_mov_b64 {vr(O0+2,2)}, 0')
    vstep(); a(f'v_mov_b64 {vr(O1,2)}, 0')
    if not RED: a(f'buffer_load_dword v{vMST}, v{vRED}, {W}, s{sT2} offen\ns_add_u32 s{sTK}, s{sTK}, {1<<19}')
    if not RED:
        a(f"""v_mov_b32 v{O1+2}, s{sS}
        buffer_store_dword v{O1+2}, off, s[{sDBG}:{sDBG+3}], s{sXM} sc1""")
    vstep(); a(f'v_mov_b64 {vr(O1+2,2)}, 0\ns_add_u32 s{sVX}, s{sVX}, {1<<19}\ns_add_u32 s{sPUB}, s{sPUB}, {1<<17}')
    waitfor('sr')
    stamp(a, 'sr ok')
    Mx, M2 = R+4, R+5
    PA = R+8; ONES = R+12
    for r in range(0, 4, 2):
        a(f'v_pk_add_f32 {vr(R+r,2)}, {vr(R+r,2)}, {vr(R+4+r,2)}\nv_pk_add_f32 {vr(R+8+r,2)}, {vr(R+8+r,2)}, {vr(R+12+r,2)}')
    a(f'v_pk_add_f32 {vr(S5,2)}, {vr(S5,2)}, {vr(S5+2,2)}')
    for r in range(0, 4, 2):
        a(f'v_pk_add_f32 {vr(R+r,2)}, {vr(R+r,2)}, {vr(R+8+r,2)}')
    a(f""" v_add_f32 v{S5}, v{S5}, v{S5+1}
    v_max3_f32 v{Mx}, v{R}, v{R+1}, v{R+2}
    v_max3_f32 v{Mx}, v{Mx}, v{R+3}, v{S5}""")
    vstep()
    a(f""" v_mov_b64 {vr(ONES,2)}, s[{sONE}:{sONE+1}]
    v_max_f32_dpp v{Mx}, v{Mx}, v{Mx} quad_perm:[2,3,0,1] row_mask:0xf bank_mask:0xf
    v_mov_b32 v{M2}, v{Mx}""")
    vstep()
    a(f""" v_mov_b64 {vr(ONES+2,2)}, s[{sONE}:{sONE+1}]
    v_permlane16_swap_b32 v{M2}, v{Mx}
    v_max_f32 v{Mx}, v{Mx}, v{M2}
    v_mov_b32 v{M2}, v{Mx}""")
    vstep()
    a(f""" v_mov_b32 v{PA+3}, 0
    v_permlane32_swap_b32 v{M2}, v{Mx}
    v_max_f32 v{Mx}, v{Mx}, v{M2}""")
    vstep()
    a(f'v_mul_f32 v{Mx}, s{sC}, v{Mx}')
    for x in (R, R+1, R+2, R+3, S5):
        a(f'v_fma_f32 v{x}, v{x}, s{sC}, -v{Mx}')
    vstep()
    assert st['i'] == len(vops), st
    stamp(a, 'v issued')
    wl(('o8',1), VW)
    for i, x in enumerate((R, R+1, R+2, R+3, S5)):
        a(f'v_exp_f32 v{x}, v{x}')
    V0, V1 = ACV, ACV+4
    LS = AFW[2]
    a(f""" v_cvt_pk_bf16_f32 v{PA}, v{R}, v{R+1}
    v_cvt_pk_bf16_f32 v{PA+1}, v{R+2}, v{R+3}
    v_cvt_pk_bf16_f32 v{PA+2}, v{S5}, v{PA+3}
    s_waitcnt vmcnt({1 if RED else 4})""")
    stamp(a, 'P ready')
    accs = {'t8': S5, 0: O0, 1: O1, 2: LS, 3: AFW[0]}
    a(f""" v_smfmac_f32_16x16x32_bf16 {vr(O0,4)}, {vr(PA,2)}, {vr(VX,4)}, v{vIDX}
    {hs(V0)}
    v_smfmac_f32_16x16x32_bf16 {vr(O1,4)}, {vr(PA,2)}, {vr(VX+4,4)}, v{vIDX}
    {hs(V1)}
    v_mfma_f32_16x16x32_bf16 {vr(LS,4)}, {vr(PA,4)}, {vr(ONES,4)}, 0
    v_cvt_pk_bf16_f32 v{V0}, v{V0}, v{V0+1}
    v_cvt_pk_bf16_f32 v{V0+1}, v{V1}, v{V1+1}
    v_cvt_pk_bf16_f32 v{V0+2}, v{V1}, v{V1+1}
    v_mov_b32 v{V0+3}, 0
    v_mov_b32 v{V1}, 0""")
    wl(('o',0,1), AFW[0])
    a(f'v_smfmac_f32_16x16x32_bf16 {vr(O0,4)}, {vr(PA+2,2)}, {vr(V0,4)}, v{vIDX} abid:2')
    wl(('o',0,3), A01)
    a(f""" {h1(LS,0)}
    v_smfmac_f32_16x16x32_bf16 {vr(O1,4)}, {vr(PA+2,2)}, {vr(V0+2,4)}, v{vIDX} abid:2
    {h1(LS,1)}
    v_rcp_f32 v{LS}, v{LS}
    v_rcp_f32 v{LS+1}, v{LS+1}
    v_mov_b64 {vr(PUB+2,2)}, {vr(V0,2)}
    s_cmp_eq_u32 s{sS}, {NSTEPS-1}
    s_cbranch_scc1 L_exit{sfx}
    {z4(accs['t8'])}
    {hs(O0)}
    {hs(O1)}
    v_pk_mul_f32 {vr(O0,2)}, {vr(O0,2)}, {vr(LS,2)}
    v_pk_mul_f32 {vr(O1,2)}, {vr(O1,2)}, {vr(LS,2)}
    v_cvt_pk_bf16_f32 v{LS+2}, v{O0}, v{O1}
    v_cvt_pk_bf16_f32 v{LS+3}, v{O0+1}, v{O1+1}
    ds_write2_b32 v{vOW}, v{LS+2}, v{LS+3} offset0:0 offset1:4
    v_and_b32 v{vTMP}, 32, v{vL16}
    v_lshl_add_u32 v{vTMP}, v{vTMP}, 5, v{vOA}
    {z4(accs[0])}
    {z4(accs[1])}
    s_waitcnt lgkmcnt(0)"""); lds.clear()
    stamp(a, 'pre B3')
    a('s_barrier')
    stamp(a, 'post B3')
    OA = [R, R+4, R+8, R+12]; OX = [ACV, ACV+4]
    for i in range(4):
        a(f'ds_read_b128 {vr(OA[i],4)}, v{vOA} offset:{i*512}'); L(('oa', i))
    for i in range(2):
        a(f'ds_read_b128 {vr(OX[i],4)}, v{vTMP} offset:{i*512}'); L(('oa', 'x%d' % i))
    a(z4(accs[2]))
    X8 = accs['t8']
    EV = f's[{sEV}:{sEV+1}]'
    def tag(r): return f'v_and_or_b32 v{r}, v{r}, -2, s{sEP}'
    post = {}
    post['t8'] = [h1(X8,0), h1(X8,1), f'v_cndmask_b32 v{X8+2}, v{X8}, v{X8+1}, {EV}',
        f'v_mov_b32_dpp v{X8+3}, v{X8+2} quad_perm:[1,0,3,2] row_mask:0xf bank_mask:0xf',
        f'v_cndmask_b32 v{X8}, v{X8+3}, v{X8}, {EV}', f'v_cndmask_b32 v{X8+1}, v{X8+1}, v{X8+3}, {EV}',
        f'v_cvt_pk_bf16_f32 v{X8}, v{X8}, v{X8+1}', tag(X8),
        f'buffer_store_dword v{X8}, v{vPS9}, {W}, s{sPW} offen {SC}']
    for c in range(4):
        A = accs[c]; Dd = accs[c & 2]
        if c & 1 == 0:
            post[c] = [f'v_cvt_pk_bf16_f32 v{A}, v{A}, v{A+2}', f'v_cvt_pk_bf16_f32 v{A+2}, v{A+1}, v{A+3}', tag(A), tag(A+2)]
        else:
            post[c] = [f'v_cvt_pk_bf16_f32 v{Dd+1}, v{A}, v{A+2}', f'v_cvt_pk_bf16_f32 v{Dd+3}, v{A+1}, v{A+3}',
                       f'buffer_store_dwordx4 {vr(Dd,4)}, v{vL16}, {W}, s{sPW} offen offset:{(c>>1)*1024} {SC}']
    ops = [(0,0,('o',0,0)),(1,0,('o',1,0)),(0,1,('o',0,1)),(1,1,('o',1,1)),(0,2,('o',0,2)),(0,3,('o',0,3)),(1,2,('o',1,2)),(1,3,('o',1,3))] + [('t8', 'x0', ('o8',0)), ('t8', 'x1', ('o8',1))] + [(c, r, ('o',c,r)) for c in (2,3) for r in range(4)]
    q = []
    def pop(k):
        while q and k > 0:
            x = q.pop(0); a(x)
            if not x.startswith('buffer'): k -= 1
    pend = []
    for n, (acc, af, f) in enumerate(ops):
        waitfor(('oa', af))
        if n == 0: stamp(a, 'OA ok')
        mm(accs[acc], OX[int(af[1])] if isinstance(af, str) else OA[af], f)
        if n == 3: q.append(f'v_mov_b64 {vr(accs[3],2)}, 0')
        if n == 4: q.append(f'v_mov_b64 {vr(accs[3]+2,2)}, 0')
        for (acc2, n2) in list(pend):
            if n - n2 >= 3: q += post[acc2]; pend.remove((acc2, n2))
        if all(o[0] != acc for o in ops[n+1:]): pend.append((acc, n))
        pop(1 if len(q) < 5 else 2)
    for (acc2, n2) in pend: q += post[acc2]
    pop(100)
    stamp(a, 'Wo done')
    prep()
    tail = []
    if RED:
        A1, B0, D, TT = 16, 52, 72, 20
        a(f""" v_mov_b32 v{A1+2}, 0x3f80
        v_mov_b32 v{A1+3}, 0x3f800000
        v_cndmask_b32 v{A1+2}, v{A1+3}, v{A1+2}, {EV}
        v_cndmask_b32 v{A1}, 0, v{A1+2}, s[{sS0M}:{sS0M+1}]
        v_cndmask_b32 v{A1+1}, 0, v{A1+2}, s[{sS1M}:{sS1M+1}]
        v_mov_b64 {vr(A1+2,2)}, {vr(A1,2)}
        {z4(D)}
        v_mov_b64 {vr(TT,2)}, 0""")
        if PROBE: a('s_waitcnt vmcnt(3)'); stamp(a, 'pub ack')
        if int(env.get('EW', '0')):
            a(f's_waitcnt vmcnt(2)\ns_cmp_eq_u32 s{sW}, 0\ns_cbranch_scc1 L_ew{sfx}\ns_waitcnt vmcnt(0)')
            a.label(f'L_ew{sfx}')
        else: a('s_waitcnt vmcnt(0)')
        for _ in range(int(env.get('DELAY1', '0'))): a('s_nop 7')
        stamp(a, 'pp issue')
        ld = [f'buffer_load_dwordx4 {vr(B0+4*i,4)}, v{vRED}, {W}, s{sPR+i} offen sc1' for i in range(4)]
        for x in ld: a(x)
        tt = 0xf6
        def bt(i): return f'v_bitop3_b32 v{TT+(i&1)}, v{TT+(i&1)}, v{B0+i}, s{sEP} bitop3:{tt:#x}'
        a('s_waitcnt vmcnt(3)')
        for i in range(4): a(bt(i))
        a('s_waitcnt vmcnt(2)')
        smf(a, D, A1, ('v', B0))
        for i in range(4, 8): a(bt(i))
        a('s_waitcnt vmcnt(1)')
        for i in range(8, 12): a(bt(i))
        a('s_waitcnt vmcnt(0)')
        smf(a, D, A1, ('v', B0+8))
        for i in range(12, 16): a(bt(i))
        fin = f""" v_and_or_b32 v{TT}, v{TT+1}, s{sXM}, v{TT}
        v_and_b32 v{TT}, 1, v{TT}
        v_cmp_ne_u32 vcc, 0, v{TT}"""
        a(fin); a(f's_cbranch_vccnz L_pp_retry{sfx}')
        a.label(f'L_pp_done{sfx}')
        stamp(a, 'part ok')
        for i in range(4):
            a(f'v_add_f32_dpp v{D+i}, v{D+i}, v{D+i} row_ror:8 row_mask:0xf bank_mask:0xf')
        a(f""" v_cvt_pk_bf16_f32 v{D}, v{D}, v{D+1}
        v_cvt_pk_bf16_f32 v{D+1}, v{D+2}, v{D+3}
        buffer_store_dwordx2 {vr(D,2)}, v{vMST}, {W}, s{sMEMw} offen {SC}""")
    else:
        a(f's_add_u32 s{sT0}, s{sS}, 3\ns_cmp_ge_u32 s{sT0}, s{sRDY}\ns_cbranch_scc1 L_rdy{sfx}')
        a.label('L_rdy_done'+sfx)
        stamp(a, 'x'); stamp(a, 'x'); stamp(a, 'part ok')
    ZE = int(env.get('ZE', '0'))
    if ZE:
        for i in range(0, 20, 2): a(f'v_mov_b64 {vr(ACC+i,2)}, 0')
    if int(env.get('ACKW', '0')) and RED: a('s_waitcnt vmcnt(0)')
    if int(env.get('B4', '1')): a('s_barrier')
    for _ in range(int(env.get('DELAY2', '0'))): a('s_nop 15')
    stamp(a, 'end')
    stamp_dump(a, sfx)
    a(f"""s_add_u32 s{sS}, s{sS}, 1
    s_cmp_lt_u32 s{sS}, {NSTEPS}
    s_cbranch_scc1 L_loop{sfx}
    s_branch L_exit{sfx}""")
    a.label('L_pm'+sfx)
    a('s_mov_b64 exec, vcc')
    pm_loads()
    a(f""" s_add_u32 s{sSPIN}, s{sSPIN}, 1
    s_cmp_gt_u32 s{sSPIN}, {SPINMAX}
    s_cbranch_scc1 L_pm_done{sfx}
    s_branch L_pm_chk{sfx}""")
    if RED:
        a.label(f'L_pp_retry{sfx}')
        a('s_mov_b64 exec, vcc')
        for x in ld: a(x)
        a(f""" v_mov_b64 {vr(TT,2)}, 0
        s_add_u32 s{sSPIN}, s{sSPIN}, 1
        s_cmp_gt_u32 s{sSPIN}, {SPINMAX}
        s_cbranch_scc1 L_pp_fin{sfx}
        s_waitcnt vmcnt(0)""")
        for i in range(16): a(bt(i))
        a(fin); a(f's_cbranch_vccnz L_pp_retry{sfx}')
        a.label(f'L_pp_fin{sfx}')
        a(f's_mov_b64 exec, -1\n{z4(D)}')
        smf(a, D, A1, ('v', B0)); smf(a, D, A1, ('v', B0+8))
        a(f's_nop 7\ns_branch L_pp_done{sfx}')
    if not RED: rdy(a, sfx, g)
    a.label('L_exit'+sfx)
```

```python
import os
from asmdsl import *
MiB = 1 << 20
WS_KV, WS_QX, WS_PUB = 0, 32*MiB, 48*MiB
WS_PQ, WS_G, WS_KVP, WS_XP = 60*MiB, 64*MiB, 65*MiB, 72*MiB
PST = 9344
OOB = 0x40000000
D_TK0, D_BAR = 0, 1
D_INIT, D_BKV = 2, 3
D_KV, D_Q = 40, 25
D_PROG = 24
D_TK = 32
D_X = 8
sWS, sX, sWC, sDBG, sOUT, sMI = 8, 12, 16, 20, 24, 28
sH, sW, sI, sT0, sT1, sT2, sT3, sTEAM = 32, 33, 34, 35, 36, 37, 38, 39
sSEL0, sSEL1, sSEG, sEND, sDST, sSTR, sCOL, sCNT, sCI, sBUF = 40, 41, 42, 43, 44, 45, 46, 47, 48, 49
sU0, sU1, sBLK, sPH, sSPIN, sDSTEP = 50, 51, 52, 53, 54, 55
P = 64
def ptr(i): return P + 2*i
XROW = 1168
XBUF = 32*XROW

def wstamp(a, k):
    if not int(os.environ.get('WST', '0')): return
    a(f"""s_memrealtime s[96:97]
    s_waitcnt lgkmcnt(0)
    s_lshl_b32 s98, s{sI}, 6
    s_add_u32 s98, s98, {200*MiB + 4*k}
    v_mov_b32 v2, 0
    v_mov_b32 v3, s96
    buffer_store_dword v3, v2, s[{sWS}:{sWS+3}], s98 offen""")
def srd(a, s, lo, nbytes):
    a(f's_mov_b32 s{s}, s{lo}\ns_mov_b32 s{s+1}, s{lo+1}\ns_mov_b32 s{s+2}, {nbytes}\ns_mov_b32 s{s+3}, 0x00020000')

def signal(a, idx_sgpr_or_const, val, tag):
    a('s_waitcnt vmcnt(0)\ns_barrier')
    a(f's_cmp_lg_u32 s{sW}, 0\ns_cbranch_scc1 L_sig{tag}')
    a(f'v_mov_b32 v2, {idx_sgpr_or_const}\nv_mov_b32 v3, {val}\ns_mov_b64 exec, 1')
    a(f'buffer_atomic_add v3, v2, s[{sDBG}:{sDBG+3}], 0 offen\ns_mov_b64 exec, -1')
    a.label(f'L_sig{tag}')

vL16, vJ, vG = 0, 4, 5
vXA = 6
vRA = 16
vRC = 20
vVO, vSW, vSR = 56, 57, 58
WF = 64
AFB = 24
ACC = 40
XB = 36864
L_SCR = 3*XB
RDT = 208
sM0B, sRB = 56+2, 56+3

def lw_issue(a, kind):
    a(f's_mov_b32 s{sT0}, s{sCOL}\ns_lshl_b32 s{sT1}, s{sSTR}, 4')
    for n in range(36):
        d = vr(WF+4*n,4) if kind == 'v' else ar(4*n,4)
        a(f'buffer_load_dwordx4 {d}, v{vVO}, s[{sWC}:{sWC+3}], s{sT0} offen')
        if n < 35: a(f's_add_u32 s{sT0}, s{sT0}, s{sT1}')
def lw_finish(a):
    for kind in 'av':
        for n in range(9):
            a(f's_waitcnt vmcnt({min(63, 32-4*n + (36 if kind == "a" else 0))})')
            for i in range(4):
                d = vr(WF+16*n+4*i,4) if kind == 'v' else ar(16*n+4*i,4)
                a(f'ds_write_b128 v{vSW}, {d} offset:{i*1024}')
            for h in range(2):
                for i in range(8): a(f'ds_read_b32 v{RDT+8*h+i}, v{vSR} offset:{(32*h+i)*64}')
            a('s_waitcnt lgkmcnt(0)')
            for h in range(2):
                for t in range(2):
                    for p in range(4):
                        d = (2*n+h)*8 + t*4 + p
                        dv = WF+d if kind == 'v' else AFB+(d & 7)
                        a(f'v_perm_b32 v{dv}, v{RDT+8*h+2*p+1}, v{RDT+8*h+2*p}, s{sSEL1 if t else sSEL0}')
                        if kind == 'a': a(f'v_accvgpr_write_b32 a{d}, v{dv}')
vSE = 59
def lw_issue2(a, kind):
    a(f's_mov_b32 s{sT0}, s{sCOL}')
    for n in range(36):
        d = vr(WF+4*n,4) if kind == 'v' else ar(4*n,4)
        a(f'buffer_load_dwordx4 {d}, v{vVO}, s[{sWC}:{sWC+3}], s{sT0} offen')
        if n < 35: a(f's_add_u32 s{sT0}, s{sT0}, {(8 if n % 4 < 3 else 40)*8192}')
def lw_finish2(a):
    SB = [0, 16384]
    u = 0
    for kind in 'av':
        for n in range(9):
            sb = (u & 1)*16384
            a(f's_waitcnt vmcnt({min(63, 32-4*n + (36 if kind == "a" else 0))})')
            for i in range(4):
                d = vr(WF+16*n+4*i,4) if kind == 'v' else ar(16*n+4*i,4)
                a(f'ds_write_b128 v{vSW}, {d} offset:{sb+i*1024}')
            a('s_waitcnt lgkmcnt(0)\ns_barrier')
            for h in range(2):
                for i in range(8): a(f'ds_read_b32 v{RDT+8*h+i}, v{vSE} offset:{sb+h*4096+i*128}')
            a('s_waitcnt lgkmcnt(0)')
            for h in range(2):
                for t in range(2):
                    for p in range(4):
                        d = (2*n+h)*8 + t*4 + p
                        dv = WF+d if kind == 'v' else AFB+(d & 7)
                        a(f'v_perm_b32 v{dv}, v{RDT+8*h+2*p+1}, v{RDT+8*h+2*p}, s{sSEL1 if t else sSEL0}')
                        if kind == 'a': a(f'v_accvgpr_write_b32 a{d}, v{dv}')
            u += 1
def load_weights(a, dst_kind, dst, tag_):
    if tag_ in ('v', 'k', 'q0', 'q1'):
        lw_issue2(a, dst_kind)
        if tag_ == 'k': a('s_branch L_lwf2')
        if tag_ == 'q0':
            a.label('L_lwf2'); lw_finish2(a)
            a(f's_cmp_eq_u32 s{sPH}, 0\ns_cbranch_scc1 L_run0')
        return
    return load_weights1(a, dst_kind, dst, tag_)
def load_weights1(a, dst_kind, dst, tag_):
    lw_issue(a, dst_kind)
    if dst_kind == 'v': a('s_branch L_lwf' if tag_ != 'bk' else 's_nop 0')

def dma(a, i):
    return (f's_add_u32 m0, s{sM0B}, {i*4096}\ns_nop 0\n'
            f'buffer_load_dwordx4 v{vXA+i}, s[{sX}:{sX+3}], s{sBUF} offen lds')

def rowaddr(a, kind):
    X, Y, Z = 2, 3, AFB
    if kind == 'T':
        a(f'''v_lshrrev_b32 v{X}, 2, v{vJ}
        v_lshlrev_b32 v{X}, 3, v{X}
        v_bfe_u32 v{Y}, v{vJ}, 1, 1
        v_lshl_add_u32 v{X}, v{Y}, 2, v{X}
        v_and_b32 v{Y}, 1, v{vJ}
        v_add_u32 v{X}, v{X}, v{Y}''')
        d = 2
    else:
        a(f'''v_lshrrev_b32 v{X}, 2, v{vJ}
        v_lshlrev_b32 v{X}, 3, v{X}
        v_and_b32 v{Y}, 3, v{vJ}
        v_add_u32 v{X}, v{X}, v{Y}''')
        d = 4
    a(f'''v_mul_u32_u24 v{X}, 1152, v{X}
    v_lshrrev_b32 v{Y}, 1, v{vJ}
    v_xor_b32 v{Y}, v{Y}, v{vG}
    v_lshl_add_u32 v{vRA}, v{Y}, 4, v{X}
    v_xor_b32 v{Y}, 4, v{Y}
    v_lshl_add_u32 v{vRA+1}, v{Y}, 4, v{X}
    v_add_u32 v{vRA+2}, {d*1152}, v{vRA}
    v_add_u32 v{vRA+3}, {d*1152}, v{vRA+1}''')
    for i in range(9):
        a(f'''s_lshl_b32 s{sT0}, s{sW}, 6
        s_add_u32 s{sT0}, s{sT0}, {i*256}
        v_lshrrev_b32 v{X}, 4, v{vL16}
        v_add_u32 v{X}, s{sT0}, v{X}            ; p
        v_mul_u32_u24 v{Y}, 3641, v{X}
        v_lshrrev_b32 v{Y}, 18, v{Y}            ; row''')
        if kind == 'T': a(f'v_bfe_u32 v{Z}, v{Y}, 2, 3')
        else: a(f'v_lshrrev_b32 v{Z}, 3, v{Y}\nv_bfe_u32 v{Y}, v{Y}, 1, 1\nv_lshl_add_u32 v{Z}, v{Z}, 1, v{Y}')
        a(f'v_xor_b32 v{X}, v{X}, v{Z}\nv_lshlrev_b32 v{vXA+i}, 4, v{X}')

LOG2E = 0x3fb8aa3b
def phi_pair(a, x0, x1, t0, t1, dst):
    a(f'''v_cvt_pk_bf16_f32 v{t0}, v{x0}, v{x1}
    v_lshlrev_b32 v{x0}, 16, v{t0}
    v_and_b32 v{x1}, 0xffff0000, v{t0}
    v_mul_f32 v{t0}, s{sT3}, v{x0}
    v_mul_f32 v{t1}, s{sT3}, v{x1}
    v_exp_f32 v{t0}, v{t0}
    v_exp_f32 v{t1}, v{t1}
    v_cmp_lt_f32 vcc, 0, v{x0}
    v_add_f32 v{x0}, 1.0, v{x0}
    v_cndmask_b32 v{x0}, v{t0}, v{x0}, vcc
    v_cmp_lt_f32 vcc, 0, v{x1}
    v_add_f32 v{x1}, 1.0, v{x1}
    v_cndmask_b32 v{x1}, v{t1}, v{x1}, vcc
    v_add_f32 v{x0}, s{sT2}, v{x0}
    v_add_f32 v{x1}, s{sT2}, v{x1}
    v_cvt_pk_bf16_f32 v{dst}, v{x0}, v{x1}''')

sDST2, sPEND, sSTEP = 60, 61, 62
def gemm_loop(a, kind):
    W = f's[{sWS}:{sWS+3}]'
    L = 'L_g' + kind
    types = {'KV': 'TV', 'QQ': 'TT', 'BQ': 'PP', 'BKV': 'VV'}[kind]
    acc = {(T, t): (ACC + (T*2+t)*4 if t < 2 else 224 + (T*2+t-2)*4) for T in range(2) for t in range(4)}
    if kind == 'BKV':
        KVA = 160
        for i in range(16): a(f'v_accvgpr_write_b32 a{KVA+i}, 0')
        a(f'v_cmp_eq_u32 s[56:57], 9, v{vJ}')
    def wfrag(f, t):
        return vr(WF + f*8 + t*4, 4) if t < 2 else ar(f*8 + (t-2)*4, 4)
    nst = 0 if kind == 'BKV' else 4
    wstamp(a, 3)
    a(f'''s_barrier
    s_mul_i32 s{sBUF}, s{sSEG}, {XB}
    s_mul_i32 s{sEND}, s{sSTEP}, {XB}
    s_lshl_b32 s{sM0B}, s{sW}, 10
    s_mov_b32 s{sRB}, 0
    s_mov_b32 s{sCNT}, 0
    s_mov_b32 s{sPEND}, 0
    s_mov_b32 s{sT3}, {LOG2E}
    s_mov_b32 s{sT2}, 0x358637bd''')
    for k in range(2):
        for i in range(9): a(dma(a, i))
        a(f's_add_u32 s{sBUF}, s{sBUF}, s{sEND}\ns_add_u32 s{sM0B}, s{sM0B}, {XB}')
    a('s_waitcnt vmcnt(9)')
    wstamp(a, 4)
    a.label(f'{L}_top')
    a('s_barrier')
    for i in range(4): a(f'v_add_u32 v{vRC+i}, s{sRB}, v{vRA+i}')
    AB = [AFB, AFB+8, 240, 248]
    PD = 2
    def rd(f):
        for T in range(2):
            a(f'ds_read_b128 {vr(AB[f%4]+T*4,4)}, v{vRC+2*T+(f&1)} offset:{(f>>1)*128}')
    for f in range(PD): rd(f)
    if kind != 'BKV':
        a(f'''s_cmp_eq_u32 s{sPEND}, 0
        s_cbranch_scc1 {L}_np
        s_cmp_lg_u32 s{sW}, 0
        s_cbranch_scc1 {L}_np
        s_lshr_b32 s{sT0}, s{sPEND}, 8
        s_and_b32 s{sT1}, s{sPEND}, 0xff
        v_mov_b32 v2, s{sT0}
        v_mov_b32 v3, s{sT1}
        s_mov_b64 exec, 1
        buffer_atomic_add v3, v2, s[{sDBG}:{sDBG+3}], 0 offen
        s_mov_b64 exec, -1''')
        a.label(f'{L}_np')
        a(f's_mov_b32 s{sPEND}, 0')
    for f in range(18):
        if f+PD < 18: rd(f+PD)
        a(f's_waitcnt lgkmcnt({2*min(PD, 17-f)})')
        k = 0
        for T in range(2):
            for t in range(4):
                xa = vr(AB[f%4]+T*4, 4)
                A, B = (wfrag(f, t), xa) if types[t>>1] in 'TP' else (xa, wfrag(f, t))
                c = '0' if f == 0 else vr(acc[(T, t)], 4)
                a(f'v_mfma_f32_16x16x32_bf16 {vr(acc[(T,t)],4)}, {A}, {B}, {c}')
                k += 1
                if k == 1 and f % 2 == 0: a(dma(a, f//2))
    a(f'''s_add_u32 s{sBUF}, s{sBUF}, s{sEND}
    s_add_u32 s{sM0B}, s{sM0B}, {XB}
    s_sub_u32 s{sT0}, s{sM0B}, {3*XB}
    s_cmp_ge_u32 s{sM0B}, {3*XB}
    s_cselect_b32 s{sM0B}, s{sT0}, s{sM0B}
    s_add_u32 s{sRB}, s{sRB}, {XB}
    s_cmp_ge_u32 s{sRB}, {3*XB}
    s_cselect_b32 s{sRB}, 0, s{sRB}''')
    O = RDT
    if kind != 'BKV':
        a(f'''s_lshr_b32 s{sT0}, s{sSEG}, {2 if kind == 'KV' else 6}
        s_cmp_eq_u32 s{sT0}, s{sBLK}
        s_cbranch_scc1 {L}_same
        s_add_u32 s{sT1}, s{sBLK}, s{sCI}
        s_lshl_b32 s{sT1}, s{sT1}, 10
        s_or_b32 s{sPEND}, s{sT1}, s{sCNT}
        s_cmp_eq_u32 s{sCNT}, 0
        s_cselect_b32 s{sPEND}, 0, s{sPEND}
        s_mov_b32 s{sCNT}, 0
        s_mov_b32 s{sBLK}, s{sT0}''')
        a.label(f'{L}_same')
        a(f's_add_u32 s{sCNT}, s{sCNT}, 1')
        for hh in range(2):
            ty = types[hh]; t0 = 2*hh; dst = (sDST, sDST2)[hh]; Oh = O + 8*hh
            if ty == 'T' or ty == 'P':
                for T in range(2):
                    for r in range(4):
                        if ty == 'T': a(f'v_cvt_pk_bf16_f32 v{Oh+T*4+r}, v{acc[(T,t0)]+r}, v{acc[(T,t0+1)]+r}')
                        else: phi_pair(a, acc[(T,t0)]+r, acc[(T,t0+1)]+r, 2, 3, Oh+T*4+r)
                    a(f'buffer_store_dwordx4 {vr(Oh+T*4,4)}, v{vL16}, {W}, s{dst} offen offset:{T*1024} sc1')
            else:
                for t in range(2):
                    for T in range(2):
                        for p in range(2): a(f'v_cvt_pk_bf16_f32 v{Oh+t*4+2*p+T}, v{acc[(T,t0+t)]+2*p}, v{acc[(T,t0+t)]+2*p+1}')
                    a(f'buffer_store_dwordx4 {vr(Oh+t*4,4)}, v{vL16}, {W}, s{dst} offen offset:{t*1024} sc1')
        a(f's_add_u32 s{sDST}, s{sDST}, s{sDSTEP}\ns_add_u32 s{sDST2}, s{sDST2}, s{sDSTEP}')
    else:
        for t in range(2):
            for T in range(2):
                for h in range(2): phi_pair(a, acc[(T,t)]+2*h, acc[(T,t)]+2*h+1, 2, 3, O+t*4+T*2+h)
        for t in range(2, 4):
            for T in range(2):
                for h in range(2): a(f'v_cvt_pk_bf16_f32 v{O+t*4+T*2+h}, v{acc[(T,t)]+2*h}, v{acc[(T,t)]+2*h+1}')
        a('v_mov_b32 v2, 0x3f803f80')
        for i in range(4): a(f'v_cndmask_b32 v{O+8+i}, v{O+8+i}, v2, s[56:57]')
        for x in range(2):
            for y in range(2):
                d = ar(KVA + (x*2+y)*4, 4)
                a(f'v_mfma_f32_16x16x32_bf16 {d}, {vr(O+x*4,4)}, {vr(O+8+y*4,4)}, {d}')
    if kind == 'KV':
        a(f's_cmp_ge_u32 s{sSEG}, 4\ns_cbranch_scc1 {L}_ne')
        signal(a, D_KV*4, 1, 'eager')
        a(f's_mov_b32 s{sCNT}, 0')
        a.label(f'{L}_ne')
    a(f's_add_u32 s{sSEG}, s{sSEG}, s{sSTEP}')
    a(f's_waitcnt vmcnt({9+nst})')
    a(f's_cmp_lt_u32 s{sSEG}, 64\ns_cbranch_scc1 {L}_top')
    if kind == 'BKV':
        a('s_nop 7')
        for i in range(4):
            a(f'buffer_store_dwordx4 {ar(KVA+4*i,4)}, v{vL16}, {W}, s{sDST} offen offset:{i*1024} sc1')
        signal(a, D_BKV*4, 1, 'bkvf')
    else:
        a(f's_lshr_b32 s{sT0}, s{sPEND}, 8\ns_and_b32 s{sT1}, s{sPEND}, 0xff')
        signal(a, f's{sT0}', f's{sT1}', kind+'a')
        a(f's_add_u32 s{sT0}, s{sBLK}, s{sCI}\ns_lshl_b32 s{sT0}, s{sT0}, 2')
        signal(a, f's{sT0}', f's{sCNT}', kind+'b')

def worker_gemm(a):
    W = f's[{sWS}:{sWS+3}]'
    srd(a, sX, ptr(0), 2048*1152); srd(a, sMI, ptr(10), 1152)
    a(f'''s_mov_b32 s{sSEL0}, 0x05040100
    s_mov_b32 s{sSEL1}, 0x07060302
    v_and_b32 v{vJ}, 15, v0
    v_lshrrev_b32 v{vG}, 4, v0
    v_mov_b32 v1, v0
    v_lshlrev_b32 v{vL16}, 4, v0
    s_lshl_b32 s{sT0}, s{sW}, 12
    s_add_u32 s{sT0}, s{sT0}, {L_SCR}
    v_add_u32 v{vSW}, s{sT0}, v{vL16}
    v_lshlrev_b32 v{vSR}, 9, v{vG}
    v_lshl_add_u32 v{vSR}, v{vJ}, 2, v{vSR}
    v_add_u32 v{vSR}, s{sT0}, v{vSR}
    s_cmp_lt_u32 s{sI}, 128
    s_cbranch_scc1 L_noinit
    s_sub_u32 s{sT1}, s{sI}, 128
    s_lshl_b32 s{sT1}, s{sT1}, 2
    s_add_u32 s{sT1}, s{sT1}, s{sW}''')
    wstamp(a, 0)
    a('v_mov_b32 v24, -1\nv_mov_b32 v25, -1\nv_mov_b32 v26, -1\nv_mov_b32 v27, -1')
    a(f's_lshl_b32 s{sT0}, s{sT1}, 10\ns_add_u32 s{sT0}, s{sT0}, {WS_PUB}')
    for k in range(22):
        if k == 21: a(f's_cmp_ge_u32 s{sT1}, {8320-21*384}\ns_cbranch_scc1 L_pz_done')
        a(f'buffer_store_dwordx4 v[24:27], v{vL16}, {W}, s{sT0} offen sc1')
        a(f's_add_u32 s{sT0}, s{sT0}, {384*1024}')
    a.label('L_pz_done')
    a(f's_cmp_ge_u32 s{sT1}, 256\ns_cbranch_scc1 L_g_done')
    a(f'''v_lshrrev_b32 v2, 3, v1
    v_and_b32 v3, 7, v1
    v_lshlrev_b32 v3, 4, v3
    v_mul_u32_u24 v6, 1152, v2
    v_add_u32 v6, v6, v3
    s_mul_i32 s{sT0}, s{sT1}, {8*1152}''')
    for i in range(9):
        a(f'buffer_load_dwordx4 {vr(64+4*i,4)}, v6, s[{sX}:{sX+3}], s{sT0} offen offset:{i*128}')
        a(f'buffer_load_dwordx4 {vr(100+4*i,4)}, v3, s[{sMI}:{sMI+3}], 0 offen offset:{i*128}')
    a('v_mov_b32 v7, 0\nv_mov_b32 v8, 0\ns_waitcnt vmcnt(0)')
    for i in range(36):
        a(f'v_dot2_f32_bf16 v{7+(i&1)}, v{64+i}, v{100+i}, v{7+(i&1)}')
    a(f'''s_nop 3
    v_add_f32 v7, v7, v8
    s_nop 1
    v_add_f32_dpp v7, v7, v7 quad_perm:[1,0,3,2] row_mask:0xf bank_mask:0xf
    s_nop 1
    v_add_f32_dpp v7, v7, v7 quad_perm:[2,3,0,1] row_mask:0xf bank_mask:0xf
    s_nop 1
    v_add_f32_dpp v7, v7, v7 row_half_mirror row_mask:0xf bank_mask:0xf
    v_mul_f32 v7, 0xbfb8aa3b, v7
    v_exp_f32 v7, v7
    v_add_f32 v7, 1.0, v7
    v_rcp_f32 v7, v7
    v_lshlrev_b32 v2, 2, v2
    s_lshl_b32 s{sT0}, s{sT1}, 5
    s_add_u32 s{sT0}, s{sT0}, {WS_G}
    buffer_store_dword v7, v2, {W}, s{sT0} offen sc1''')
    a.label('L_g_done')
    wstamp(a, 1)
    signal(a, D_INIT*4, 1, 'init')
    a.label('L_noinit')
    wstamp(a, 2)
    if os.environ.get('FAKEW'):
        a(f's_and_b32 s{sT0}, s{sI}, 15\ns_lshl_b32 s{sT0}, s{sT0}, 2\ns_add_u32 s{sT0}, s{sT0}, {D_KV*4}')
        signal(a, f's{sT0}', 128, 'fake')
        a('s_waitcnt vmcnt(0)\ns_branch L_end')
    rowaddr(a, 'T')
    a(f'''s_mov_b32 s{sSTR}, 8192
    s_mov_b32 s{sWC+2}, {576*8192}
    s_mov_b32 s{sWC+3}, 0x00020000
    s_mov_b32 s{sBLK}, 0
    v_lshrrev_b32 v2, 3, v1
    v_lshlrev_b32 v{vVO}, 13, v2
    v_and_b32 v3, 7, v1
    v_lshl_add_u32 v{vVO}, v3, 4, v{vVO}
    v_lshlrev_b32 v{vSE}, 10, v{vG}
    v_lshl_add_u32 v{vSE}, v{vJ}, 2, v{vSE}
    s_and_b32 s{sT0}, s{sW}, 1
    s_lshl_b32 s{sT1}, s{sT0}, 6
    s_lshr_b32 s{sT2}, s{sW}, 1
    s_lshl_b32 s{sT3}, s{sT2}, 13
    s_add_u32 s{sT1}, s{sT1}, s{sT3}
    s_add_u32 s{sT1}, s{sT1}, {L_SCR}
    v_add_u32 v{vSE}, s{sT1}, v{vSE}
    s_lshl_b32 s{sU0}, s{sT0}, 18
    s_lshl_b32 s{sT2}, s{sT2}, 7
    s_add_u32 s{sU0}, s{sU0}, s{sT2}
    v_lshrrev_b32 v2, 2, v1
    v_and_b32 v3, 3, v1
    s_cmp_ge_u32 s{sI}, 176
    s_cbranch_scc1 L_job_b
    s_cmp_ge_u32 s{sI}, 128
    s_cbranch_scc1 L_job_q''')
    a(f'''s_lshr_b32 s{sH}, s{sI}, 2
    s_and_b32 s{sSEG}, s{sI}, 3
    s_mov_b32 s{sSTEP}, 4
    s_lshl_b32 s{sCOL}, s{sH}, 8
    s_add_u32 s{sCOL}, s{sCOL}, s{sU0}
    s_lshl_b32 s{sDST}, s{sSEG}, 19
    s_lshl_b32 s{sT0}, s{sH}, 14
    s_add_u32 s{sDST}, s{sDST}, s{sT0}
    s_lshl_b32 s{sT0}, s{sW}, 11
    s_add_u32 s{sDST}, s{sDST}, s{sT0}
    s_add_u32 s{sDST2}, s{sDST}, 8192
    s_mov_b32 s{sDSTEP}, {4<<19}
    s_mov_b32 s{sCI}, {D_KV}
    s_mov_b32 s{sWC}, s{ptr(3)}
    s_mov_b32 s{sWC+1}, s{ptr(3)+1}
    v_lshrrev_b32 v2, 1, v1
    v_lshlrev_b32 v2, 13, v2
    v_and_b32 v3, 1, v1
    v_lshl_add_u32 v2, v3, 7, v2
    s_lshl_b32 s{sT0}, s{sSEG}, 2
    s_add_u32 s{sT0}, s{sT0}, s{sW}
    s_mul_i32 s{sT0}, s{sT0}, {36*8192}
    s_lshl_b32 s{sT1}, s{sH}, 8
    s_add_u32 s{sT0}, s{sT0}, s{sT1}
    s_add_u32 s{sT1}, s{sT0}, {4*8192}
    buffer_load_dword v{RDT}, v2, s[{sWC}:{sWC+3}], s{sT0} offen
    buffer_load_dword v{RDT+1}, v2, s[{sWC}:{sWC+3}], s{sT1} offen
    s_mov_b32 s{sWC}, s{ptr(4)}
    s_mov_b32 s{sWC+1}, s{ptr(4)+1}
    buffer_load_dword v{RDT+2}, v2, s[{sWC}:{sWC+3}], s{sT0} offen
    buffer_load_dword v{RDT+3}, v2, s[{sWC}:{sWC+3}], s{sT1} offen
    s_waitcnt vmcnt({int(os.environ.get('TW','0'))})''')
    load_weights(a, 'a', 0, 'v')
    a(f's_mov_b32 s{sWC}, s{ptr(3)}\ns_mov_b32 s{sWC+1}, s{ptr(3)+1}')
    a(f's_mov_b32 s{sPH}, 0')
    load_weights(a, 'v', WF, 'k')
    a.label('L_run0')
    gemm_loop(a, 'KV')
    a('s_branch L_gemm_done')
    a.label('L_job_q')
    a(f'''s_sub_u32 s{sT1}, s{sI}, 128
    s_mul_i32 s{sH}, s{sT1}, 43691
    s_lshr_b32 s{sH}, s{sH}, 17
    s_mul_i32 s{sSEG}, s{sH}, 3
    s_sub_u32 s{sSEG}, s{sT1}, s{sSEG}
    s_lshl_b32 s{sH}, s{sH}, 1
    s_mov_b32 s{sSTEP}, 3
    s_lshl_b32 s{sCOL}, s{sH}, 8
    s_add_u32 s{sCOL}, s{sCOL}, s{sU0}
    s_add_u32 s{sCOL}, s{sCOL}, 256
    s_lshl_b32 s{sDST}, s{sSEG}, 18
    s_lshl_b32 s{sT0}, s{sH}, 13
    s_add_u32 s{sDST}, s{sDST}, s{sT0}
    s_lshl_b32 s{sT0}, s{sW}, 11
    s_add_u32 s{sDST}, s{sDST}, s{sT0}
    s_add_u32 s{sDST}, s{sDST}, {WS_QX}
    s_add_u32 s{sDST2}, s{sDST}, 8192
    s_mov_b32 s{sDSTEP}, {3<<18}
    s_mov_b32 s{sCI}, {D_Q}
    s_mov_b32 s{sWC}, s{ptr(2)}
    s_mov_b32 s{sWC+1}, s{ptr(2)+1}''')
    load_weights(a, 'a', 0, 'q1')
    a(f's_sub_u32 s{sCOL}, s{sCOL}, 256')
    a(f's_mov_b32 s{sPH}, 1')
    load_weights(a, 'v', WF, 'q0')
    a.label('L_run1')
    gemm_loop(a, 'QQ')
    a('s_branch L_gemm_done')
    a.label('L_job_b')
    a(f'''s_mov_b32 s{sSTR}, 3456
    s_mov_b32 s{sWC}, s{ptr(8)}
    s_mov_b32 s{sWC+1}, s{ptr(8)+1}
    s_mov_b32 s{sWC+2}, {576*3456}
    v_mul_u32_u24 v{vVO}, 3456, v2
    v_lshl_add_u32 v{vVO}, v3, 4, v{vVO}
    s_mov_b32 s{sSTEP}, 4
    s_and_b32 s{sSEG}, s{sI}, 3
    s_cmp_ge_u32 s{sI}, 192
    s_cbranch_scc1 L_bkv
    s_sub_u32 s{sT1}, s{sI}, 176
    s_lshr_b32 s{sH}, s{sT1}, 2
    s_lshl_b32 s{sH}, s{sH}, 2
    s_add_u32 s{sH}, s{sH}, s{sW}
    s_lshl_b32 s{sH}, s{sH}, 1
    s_mul_i32 s{sCOL}, s{sH}, 36
    s_add_u32 s{sCOL}, s{sCOL}, 36
    s_lshl_b32 s{sDST}, s{sSEG}, 16
    s_lshl_b32 s{sT0}, s{sH}, 11
    s_add_u32 s{sDST}, s{sDST}, s{sT0}
    s_add_u32 s{sDST}, s{sDST}, {WS_PQ}
    s_add_u32 s{sDST2}, s{sDST}, 2048
    s_mov_b32 s{sDSTEP}, {4<<16}
    s_mov_b32 s{sCI}, {D_Q}''')
    load_weights(a, 'a', 0, 'bq1')
    a(f's_sub_u32 s{sCOL}, s{sCOL}, 36')
    a(f's_mov_b32 s{sPH}, 2')
    load_weights(a, 'v', WF, 'bq0')
    a.label('L_run2')
    gemm_loop(a, 'BQ')
    a('s_branch L_gemm_done')
    a.label('L_bkv')
    a(f'''s_sub_u32 s{sT1}, s{sI}, 192
    s_lshr_b32 s{sH}, s{sT1}, 2
    s_lshl_b32 s{sH}, s{sH}, 2
    s_add_u32 s{sH}, s{sH}, s{sW}
    s_lshl_b32 s{sDST}, s{sSEG}, 17
    s_lshl_b32 s{sT0}, s{sH}, 12
    s_add_u32 s{sDST}, s{sDST}, s{sT0}
    s_add_u32 s{sDST}, s{sDST}, {WS_KVP}
    s_mul_i32 s{sCOL}, s{sH}, 36
    s_add_u32 s{sCOL}, s{sCOL}, {1152*2}''')
    load_weights(a, 'a', 0, 'bv')
    a(f's_sub_u32 s{sCOL}, s{sCOL}, {576*2}')
    a(f's_mov_b32 s{sPH}, 3')
    load_weights(a, 'v', WF, 'bk')
    a.label('L_lwf')
    lw_finish(a)
    for k in (2,): a(f's_cmp_eq_u32 s{sPH}, {k}\ns_cbranch_scc1 L_run{k}')
    gemm_loop(a, 'BKV')
    a.label('L_gemm_done')
    wstamp(a, 5)
```

```python
from asmdsl import *
from worker import *
import worker as Wk
vIDX = 1
(vQG, vKW, vAK, vOW, vOA, vOX, vPS9, vRED, vOUT, vGA, vGB, vZA) = range(6, 18)
MSK = 18
KVT = 22
ZT = 30
SEL = 34
ONES = 38
TMP = 42
KF, VF, BQ, AK, VM, OAC = 64, 96, 128, 160, 192, 224
L_KS = 0
L_O = 2048
sC, sEVm, sHF0, sHF1, sKVo, sQo, sPQo, sPUBo, sXPo, sRHO, sPW = 56, 58, 60, 62, 40+0, 41, 43, 44, 45, 46, 47
sXB, sXM, sEP, sN, sPRG = 93, 94, 95, 57, 48
import os
NRG = int(os.environ.get('NRG', '4'))
NU = 64*4//NRG
sU, sRG = 49, 50
vOA2, vOX2 = 4, 5
def smf(a, d, A, B):
    a(f'v_smfmac_f32_16x16x64_bf16 {vr(d,4)}, {vr(A,4)}, {B}, v{vIDX}')

def wait_cnt(a, byteoff, shift, mask, target, tag):
    a(f'v_mov_b32 v2, {byteoff}')
    a.label(f'L_wc{tag}')
    a(f'''buffer_load_dword v3, v2, s[{sDBG}:{sDBG+3}], 0 offen sc1
    s_waitcnt vmcnt(0)
    v_readfirstlane_b32 s{sT0}, v3
    s_add_u32 s{sSPIN}, s{sSPIN}, 1
    s_lshr_b32 s{sT0}, s{sT0}, {shift}
    s_and_b32 s{sT0}, s{sT0}, {mask}
    s_cmp_ge_u32 s{sT0}, {target}
    s_cbranch_scc1 L_wd{tag}
    s_cmp_gt_u32 s{sSPIN}, 300000
    s_cbranch_scc1 L_wd{tag}
    s_sleep 4
    s_branch L_wc{tag}''')
    a.label(f'L_wd{tag}')

def xs_pass(a, SC):
    W = f's[{sWS}:{sWS+3}]'
    X, Y, Z, RW = 2, 3, TMP, TMP+1
    a(f's_mov_b32 s{sH}, s92\ns_mov_b32 s{sSPIN}, 0')
    srd(a, sOUT, ptr(11), 2048*1152)
    srd(a, sWC, ptr(5), 4096*1152)
    srd(a, sMI, ptr(9), 576*1152)
    VO, V8 = TMP+2, TMP+3
    a(f'''v_mul_u32_u24 v{Z}, {4*1152}, v{vG}
    v_lshl_add_u32 v{VO}, v{vJ}, 4, v{Z}
    s_lshl_b32 s{sT0}, s{sW}, 8
    v_add_u32 v{VO}, s{sT0}, v{VO}
    v_lshl_add_u32 v{V8}, v{vJ}, 1, v{Z}
    s_lshl_b32 s{sT0}, s{sW}, 5
    s_add_u32 s{sT0}, s{sT0}, 1024
    v_add_u32 v{V8}, s{sT0}, v{V8}
    s_mul_i32 s{sT1}, s{sH}, 147456
    v_mov_b32 v{X}, {OOB}
    v_cmp_eq_u32 vcc, 0, v{vG}
    v_cndmask_b32 v{VO+2}, v{X}, v{VO}, vcc
    v_cndmask_b32 v{V8+2}, v{X}, v{V8}, vcc
    s_mul_i32 s{sT3}, s{sH}, {18*1152}''')
    B0 = 64
    for rho in range(4):
        for x in range(4):
            kh, p0 = x >> 1, x & 1
            a(f's_add_u32 s{sT2}, s{sT1}, {(32*rho+16*kh+2*p0)*1152}')
            a(f'buffer_load_dwordx4 {vr(B0+rho*32+x*8,4)}, v{VO}, s[{sWC}:{sWC+3}], s{sT2} offen')
            a(f'buffer_load_dwordx4 {vr(B0+rho*32+x*8+4,4)}, v{VO}, s[{sWC}:{sWC+3}], s{sT2} offen offset:1152')
    a('s_waitcnt vmcnt(0)')
    for sg in range(2):
        for b in range(8):
            kh, p0, hf = b >> 2, (b >> 1) & 1, b & 1
            a(f's_add_u32 s{sT2}, s{sT1}, {(32*(sg+2*hf)+16*kh+2*p0)*1152}')
            a(f'buffer_load_ushort v{192+sg*16+2*b}, v{V8}, s[{sWC}:{sWC+3}], s{sT2} offen')
            a(f'buffer_load_ushort v{193+sg*16+2*b}, v{V8}, s[{sWC}:{sWC+3}], s{sT2} offen offset:1152')
    for x in range(3):
        kh, p0 = x >> 1, x & 1
        a(f's_add_u32 s{sT2}, s{sT3}, {(16*kh+2*p0)*1152}')
        o = 2 if kh else 0
        a(f'buffer_load_dwordx4 {vr(224+x*8,4)}, v{VO+o}, s[{sMI}:{sMI+3}], s{sT2} offen')
        a(f'buffer_load_dwordx4 {vr(228+x*8,4)}, v{VO+o}, s[{sMI}:{sMI+3}], s{sT2} offen offset:1152')
        a(f'buffer_load_ushort v{248+2*x}, v{V8+o}, s[{sMI}:{sMI+3}], s{sT2} offen')
        a(f'buffer_load_ushort v{249+2*x}, v{V8+o}, s[{sMI}:{sMI+3}], s{sT2} offen offset:1152')
    for rho in range(4):
        for c in range(4):
            for x in range(4):
                kh, p0 = x >> 1, x & 1
                for hf in range(2):
                    a(f'v_perm_b32 v{X}, v{B0+rho*32+x*8+4+c}, v{B0+rho*32+x*8+c}, s{sSEL1 if hf else sSEL0}')
                    a(f'v_accvgpr_write_b32 a{(c*5+rho)*8+4*kh+2*p0+hf}, v{X}')
    a('s_waitcnt vmcnt(0)')
    for sg in range(2):
        for b in range(8):
            a(f'v_lshl_or_b32 v{X}, v{193+sg*16+2*b}, 16, v{192+sg*16+2*b}\nv_accvgpr_write_b32 a{160+sg*8+b}, v{X}')
    for c in range(4):
        for x in range(4):
            kh, p0 = x >> 1, x & 1
            for hf in range(2):
                d = (c*5+4)*8+4*kh+2*p0+hf
                if x == 3: a(f'v_accvgpr_write_b32 a{d}, 0')
                else:
                    a(f'v_perm_b32 v{X}, v{228+x*8+c}, v{224+x*8+c}, s{sSEL1 if hf else sSEL0}')
                    a(f'v_accvgpr_write_b32 a{d}, v{X}')
    for b in range(8):
        x, hf = b >> 1, b & 1
        if hf or x == 3: a(f'v_accvgpr_write_b32 a{176+b}, 0')
        else: a(f'v_lshl_or_b32 v{X}, v{249+2*x}, 16, v{248+2*x}\nv_accvgpr_write_b32 a{176+b}, v{X}')
    a(f'''v_and_b32 v{X}, 2, v{vJ}
    v_mov_b32 v{vIDX}, 0x00444444
    v_mov_b32 v{Y}, 0x0049EEEE
    v_cmp_ne_u32 vcc, 0, v{X}
    v_cndmask_b32 v{vIDX}, v{vIDX}, v{Y}, vcc
    s_mov_b64 s[{sHF1}:{sHF1+1}], vcc
    s_not_b64 s[{sHF0}:{sHF0+1}], vcc
    v_lshrrev_b32 v{X}, 2, v{vJ}
    v_and_b32 v{Y}, 1, v{vJ}
    v_lshl_add_u32 v{RW}, v{X}, 1, v{Y}           ; row(j) 0..7
    v_cmp_eq_u32 s[{sEVm}:{sEVm+1}], 0, v{Y}
    s_mov_b32 s{sC}, 0x3e0293ee
    s_lshl_b32 s{sRHO}, s{sW}, 5
    s_add_u32 s{sRHO}, s{sRHO}, s{sH}''')
    a(f'''v_lshrrev_b32 v{X}, 2, v{RW}
    v_and_b32 v{Y}, 1, v{RW}
    v_lshl_add_u32 v{X}, v{X}, 1, v{Y}
    s_lshl_b32 s{sT0}, s{sW}, 2
    v_add_u32 v{X}, s{sT0}, v{X}
    v_lshl_add_u32 v{X}, v{vG}, 4, v{X}
    v_lshlrev_b32 v{X}, 4, v{X}
    v_bfe_u32 v{Y}, v{RW}, 1, 1
    v_lshl_add_u32 v{vQG}, v{Y}, 10, v{X}
    v_lshlrev_b32 v{X}, 7, v{vG}
    v_lshl_add_u32 v{X}, v{vJ}, 2, v{X}
    s_lshl_b32 s{sT0}, s{sW}, 9
    v_add_u32 v{vKW}, s{sT0}, v{X}
    v_lshrrev_b32 v{X}, 2, v{vJ}
    v_lshlrev_b32 v{X}, 7, v{X}
    v_lshl_add_u32 v{vAK}, v{vG}, 4, v{X}
    v_lshl_add_u32 v{X}, v{vG}, 3, v{RW}
    v_lshlrev_b32 v{X}, 4, v{X}
    v_add_u32 v{vOA}, {L_O}, v{X}
    v_and_b32 v{Y}, 2, v{vJ}
    v_lshl_add_u32 v{vOX}, v{Y}, 9, v{vOA}
    ; OW = L_O + w*2560 + ((j>>2)*8 + 2g)*16 + (j&3)*4
    v_lshrrev_b32 v{X}, 2, v{vJ}
    v_lshlrev_b32 v{X}, 3, v{X}
    v_lshl_add_u32 v{X}, v{vG}, 1, v{X}
    v_lshlrev_b32 v{X}, 4, v{X}
    v_and_b32 v{Y}, 3, v{vJ}
    v_lshl_add_u32 v{X}, v{Y}, 2, v{X}
    s_mul_i32 s{sT0}, s{sW}, 2560
    s_add_u32 s{sT0}, s{sT0}, {L_O}
    v_add_u32 v{vOW}, s{sT0}, v{X}
    ; PS9
    v_lshrrev_b32 v{X}, 2, v{vJ}
    v_lshlrev_b32 v{X}, 1, v{X}
    v_lshl_add_u32 v{X}, v{vG}, 3, v{X}
    v_and_b32 v{Y}, 1, v{vJ}
    v_add_u32 v{X}, v{X}, v{Y}
    v_lshlrev_b32 v{X}, 3, v{X}
    v_and_b32 v{Y}, 2, v{vJ}
    v_lshl_add_u32 v{X}, v{Y}, 1, v{X}
    s_mul_i32 s{sT0}, s{sW}, 1792
    s_sub_u32 s{sT0}, 8192, s{sT0}
    v_add_u32 v{vPS9}, s{sT0}, v{X}
    ; RED
    v_lshrrev_b32 v{X}, 3, v{vJ}
    v_lshl_add_u32 v{X}, v{X}, 2, v{vG}
    v_mul_u32_u24 v{X}, {PST}, v{X}
    v_and_b32 v{Y}, 7, v{vJ}
    v_lshl_add_u32 v{Y}, v{Y}, 4, v{X}
    s_lshl_b32 s{sT0}, s{sRHO}, 7
    v_add_u32 v{vRED}, s{sT0}, v{Y}
    s_lshl_b32 s{sT0}, s{sW}, 5
    v_lshlrev_b32 v{X}, 3, v{vG}
    v_add_u32 v{vGA}, s{sT0}, v{X}
    v_lshlrev_b32 v{X}, 2, v{RW}
    v_add_u32 v{vGB}, s{sT0}, v{X}
    v_lshlrev_b32 v{X}, 8, v{vG}
    v_add_u32 v{vZA}, {9*16}, v{X}
    ; SEL
    v_mov_b32 v{X}, 0x3f80
    v_mov_b32 v{Y}, 0x3f800000
    v_cndmask_b32 v{X}, v{Y}, v{X}, s[{sEVm}:{sEVm+1}]
    v_lshrrev_b32 v{Y}, 2, v{vJ}
    v_cmp_eq_u32 vcc, 0, v{Y}
    v_cndmask_b32 v{SEL}, 0, v{X}, vcc
    v_cmp_eq_u32 vcc, 1, v{Y}
    v_cndmask_b32 v{SEL+1}, 0, v{X}, vcc
    v_mov_b32 v{SEL+2}, v{SEL}
    v_mov_b32 v{SEL+3}, v{SEL+1}''')
    for i in range(4): a(f'v_mov_b32 v{ONES+i}, 0x3f803f80')
    a(f'''v_and_b32 v{X}, 2, v{vJ}
    v_lshl_add_u32 v{X}, v{vG}, 3, v{X}
    s_lshl_b32 s{sT0}, s{sW}, 3
    v_add_u32 v{Y}, s{sT0}, v{RW}
    v_mov_b32 v{TMP+4}, 0xf149f2ca''')
    for r in range(4):
        a(f'v_add_u32 v{TMP+5}, {4*(r>>1)+(r&1)}, v{X}\nv_cmp_le_u32 vcc, v{TMP+5}, v{Y}\nv_cndmask_b32 v{MSK+r}, v{TMP+4}, 0, vcc')
    O, Q, T1, Q2, R2, H2, RR = TMP+4, TMP+5, TMP+6, TMP+7, TMP+8, TMP+9, TMP+10
    a(f'''s_lshl_b32 s{sT0}, s{sRHO}, 7
    v_and_b32 v{X}, 7, v{vJ}
    v_lshlrev_b32 v{X}, 4, v{X}
    v_and_b32 v{Y}, 1, v{vG}
    v_lshl_add_u32 v{X}, v{Y}, 3, v{X}
    v_add_u32 v{O}, s{sT0}, v{X}
    v_bfe_u32 v{X}, v{O}, 8, 2
    v_bfe_u32 v{Y}, v{O}, 3, 1
    v_lshl_add_u32 v{RR}, v{X}, 1, v{Y}
    v_lshrrev_b32 v{Q}, 11, v{O}
    v_lshlrev_b32 v{Q}, 4, v{Q}
    v_bfe_u32 v{X}, v{O}, 4, 4
    v_add_u32 v{Q}, v{Q}, v{X}
    v_bfe_u32 v{T1}, v{O}, 10, 1
    v_bfe_u32 v{X}, v{O}, 8, 2
    v_bfe_u32 v{Y}, v{O}, 5, 1
    v_lshl_add_u32 v{Q2}, v{X}, 1, v{Y}
    v_add_u32 v{Q2}, 64, v{Q2}
    v_bfe_u32 v{X}, v{O}, 6, 2
    v_bfe_u32 v{Y}, v{O}, 3, 1
    v_lshl_add_u32 v{R2}, v{X}, 1, v{Y}
    v_bfe_u32 v{H2}, v{O}, 4, 1
    v_cmp_le_u32 vcc, 0x2000, v{O}
    v_cndmask_b32 v{Q}, v{Q}, v{Q2}, vcc
    v_cndmask_b32 v{RR}, v{RR}, v{R2}, vcc
    v_cndmask_b32 v{T1}, v{T1}, v{H2}, vcc
    v_mul_u32_u24 v{vOUT}, 1152, v{RR}
    v_lshl_add_u32 v{vOUT}, v{Q}, 4, v{vOUT}
    v_lshl_add_u32 v{vOUT}, v{T1}, 3, v{vOUT}
    v_cmp_gt_u32 s[96:97], 8, v{vJ}
    v_cmp_gt_u32 s[98:99], 2, v{vG}
    s_and_b64 vcc, s[96:97], s[98:99]
    v_mov_b32 v{X}, {OOB}
    v_cndmask_b32 v{vOUT}, v{X}, v{vOUT}, vcc''')
    for i in range(0, 32, 2): a(f'v_mov_b64 {vr(VM+i,2)}, 0\nv_mov_b64 {vr(BQ+i,2)}, 0')
    TB = 2*4*32*PST
    a(f'''s_mul_i32 s{sXB}, s{sTEAM}, {TB}
    s_add_u32 s{sXB}, s{sXB}, {WS_XP}
    s_cmp_ge_u32 s{sRHO}, 64
    s_cselect_b32 s{sXM}, 1, 0
    v_mov_b64 {vr(TMP,2)}, -1
    v_mov_b64 {vr(TMP+2,2)}, -1
    s_cmp_ge_u32 s{sRHO}, 72
    s_cbranch_scc1 L_xinv
    s_mov_b32 s{sT1}, s{sXB}''')
    for i in range(32):
        a(f'buffer_store_dwordx4 {vr(TMP,4)}, v{vRED}, {W}, s{sT1} offen sc1\ns_add_u32 s{sT1}, s{sT1}, {8*PST}')
    a.label('L_xinv')
    a(f's_lshl_b32 s{sT2}, s{sTEAM}, 2\ns_add_u32 s{sT2}, s{sT2}, {D_X*4}')
    signal(a, f's{sT2}', 1, 'xt')
    a(f'''v_lshrrev_b32 v{X}, 4, v{vL16}
    v_mov_b32 v{TMP}, 0
    v_lshrrev_b32 v{Y}, 3, v{X}
    v_mov_b32 v{TMP+1}, 128
    v_cmp_eq_u32 vcc, 5, v{Y}
    v_cndmask_b32 v{TMP}, v{TMP}, v{TMP+1}, vcc
    v_cmp_eq_u32 vcc, 6, v{Y}
    v_cndmask_b32 v{TMP}, v{TMP}, v{TMP+1}, vcc
    v_mov_b32 v{TMP+1}, 1280
    v_cmp_eq_u32 vcc, {D_Q}, v{X}
    v_cndmask_b32 v{TMP}, v{TMP}, v{TMP+1}, vcc
    v_mov_b32 v{TMP+1}, 96
    v_cmp_eq_u32 vcc, {D_INIT}, v{X}
    v_cndmask_b32 v{TMP}, v{TMP}, v{TMP+1}, vcc
    v_mov_b32 v{TMP+1}, 32
    v_cmp_eq_u32 vcc, {D_BKV}, v{X}
    v_cndmask_b32 v{TMP}, v{TMP}, v{TMP+1}, vcc
    s_add_u32 s{sT2}, s{sTEAM}, {D_X}
    v_cmp_eq_u32 vcc, s{sT2}, v{X}
    v_cndmask_b32 v{TMP}, v{TMP}, v{TMP+1}, vcc
    v_lshlrev_b32 v{X}, 2, v{X}
    s_cmp_lg_u32 s{sW}, 0
    s_cbranch_scc1 L_xw_done''')
    a.label('L_xw')
    a(f'''buffer_load_dword v{Y}, v{X}, s[{sDBG}:{sDBG+3}], 0 offen sc1
    s_add_u32 s{sSPIN}, s{sSPIN}, 1
    s_waitcnt vmcnt(0)
    v_cmp_lt_u32 vcc, v{Y}, v{TMP}
    s_cbranch_vccz L_xw_done
    s_cmp_gt_u32 s{sSPIN}, 300000
    s_cbranch_scc1 L_xw_done
    s_sleep 32
    s_branch L_xw''')
    a.label('L_xw_done')
    a('s_barrier')
    a(f's_lshl_b32 s{sT1}, s{sH}, 12\ns_add_u32 s{sT1}, s{sT1}, {WS_KVP}')
    for p in range(4):
        for ab in range(4):
            a(f'buffer_load_dwordx4 {vr(KF+p*16+ab*4,4)}, v{vL16}, {W}, s{sT1} offen offset:{ab*1024} sc1')
        for x in range(2):
            a(f'buffer_load_dwordx4 {vr(AK+p*8+x*4,4)}, v{vZA}, {W}, s{sT1} offen offset:{x*2048} sc1')
        a(f's_add_u32 s{sT1}, s{sT1}, {1<<17}')
    a('s_waitcnt vmcnt(0)')
    for p in range(1, 4):
        for i in range(16): a(f'v_add_f32 v{KF+i}, v{KF+i}, v{KF+p*16+i}')
        for i in range(8): a(f'v_add_f32 v{AK+i}, v{AK+i}, v{AK+p*8+i}')
    for r in range(4):
        a(f'v_lshlrev_b32 v{X}, 2, v{vG}\nv_add_u32 v{X}, {r}, v{X}\nv_cmp_gt_u32 vcc, 9, v{X}')
        for b in range(2):
            a(f'v_cvt_pk_bf16_f32 v{Y}, v{KF+b*4+r}, v{KF+8+b*4+r}\nv_cndmask_b32 v{KVT+b*4+r}, 0, v{Y}, vcc')
        a(f'v_cvt_pk_bf16_f32 v{Y}, v{AK+r}, v{AK+4+r}\nv_cndmask_b32 v{ZT+r}, 0, v{Y}, vcc')
    SH = {4: 0, 2: 1, 1: 2}[NRG]
    a(f's_mov_b32 s{sU}, s{sTEAM}\ns_lshr_b32 s{sSEG}, s{sU}, {SH}')
    mark(a, 5, sDBG)
    a(f'''s_add_u32 s{sT1}, s{sTEAM}, {D_TK+1}
    s_lshl_b32 s{sT1}, s{sT1}, 2
    buffer_load_dword v{X}, off, s[{sDBG}:{sDBG+3}], s{sT1} sc1
    s_waitcnt vmcnt(0)
    v_readfirstlane_b32 s{sT1}, v{X}
    s_nop 3
    s_cmp_lt_u32 s{sT1}, {1000 if os.environ.get("FORCESLOW") else 32}
    s_cbranch_scc1 L_xslow''')
    xs_loop(a, '')
    a('s_branch L_xall')
    a.label('L_xslow')
    xs_loop(a, 'sc1')
    a.label('L_xall')

class Sub:
    def __init__(self, a, sfx): self.a = a; self.sfx = sfx
    def __call__(self, t): self.a(t.replace('@@', self.sfx))
    def label(self, n): self.a.label(n.replace('@@', self.sfx))
def xs_loop(a0, SC):
    SH2 = {4: 0, 2: 1, 1: 2}[NRG]
    a = Sub(a0, '_'+SC)
    W = f's[{sWS}:{sWS+3}]'
    X, Y, Z, RW = 2, 3, TMP, TMP+1
    PQ, GA, GB, PB = TMP, TMP+4, TMP+6, TMP+8
    def offs(seg):
        a(f'''s_lshl_b32 s{sT0}, s{seg}, 5
        s_add_u32 s{sT0}, s{sT0}, s{sH}
        s_lshl_b32 s{sKVo}, s{sT0}, 14
        s_lshl_b32 s{sQo}, s{sT0}, 13
        s_add_u32 s{sQo}, s{sQo}, {WS_QX}
        s_lshl_b32 s{sPQo}, s{sT0}, 11
        s_add_u32 s{sPQo}, s{sPQo}, {WS_PQ}
        s_lshl_b32 s{sT3}, s{seg}, 7
        s_add_u32 s{sT3}, s{sT3}, {WS_G}''')
    def loads():
        for i in range(16):
            if i % 4 == 0 and i: a(f's_add_u32 s{sKVo}, s{sKVo}, 4096')
            a(f'buffer_load_dwordx4 {vr(KF+4*i,4)}, v{vL16}, {W}, s{sKVo} offen offset:{(i%4)*1024} sc1')
        for hf in range(2):
            a(f's_mov_b64 exec, s[{(sHF0,sHF1)[hf]}:{(sHF0,sHF1)[hf]+1}]')
            for kk in range(4):
                if kk == 2: a(f's_add_u32 s{sT1}, s{sQo}, 4096')
                a(f'buffer_load_dwordx4 {vr(BQ+(kk*2+hf)*4,4)}, v{vQG}, {W}, s{sQo if kk<2 else sT1} offen offset:{(kk&1)*2048} sc1')
        a(f'''s_mov_b64 exec, -1
        buffer_load_dwordx4 {vr(PQ,4)}, v{vQG}, {W}, s{sPQo} offen sc1
        buffer_load_dwordx2 {vr(GA,2)}, v{vGA}, {W}, s{sT3} offen sc1
        buffer_load_dword v{GB}, v{vGB}, {W}, s{sT3} offen sc1''')
    offs(sSEG); loads()
    a(f's_mov_b32 s{sN}, 0\ns_mov_b32 s{sPRG}, 0')
    a.label('L_xs@@')
    a(f'''s_lshl_b32 s{sT0}, s{sSEG}, 5
    s_add_u32 s{sT0}, s{sT0}, s{sH}
    s_lshl_b32 s{sPUBo}, s{sT0}, 12
    s_add_u32 s{sPUBo}, s{sPUBo}, {WS_PUB}
    s_and_b32 s{sT0}, s{sN}, 1
    s_mul_i32 s{sXPo}, s{sT0}, {4*32*PST}
    s_add_u32 s{sXPo}, s{sXPo}, s{sXB}
    s_bfe_u32 s{sEP}, s{sN}, 0x10001
    s_mul_i32 s{sPW}, s{sH}, {PST}
    s_add_u32 s{sPW}, s{sPW}, s{sXPo}
    s_lshl_b32 s{sT1}, s{sW}, 11
    s_add_u32 s{sPW}, s{sPW}, s{sT1}
    s_lshl_b32 s{sT1}, s{sW}, 10
    s_add_u32 s{sT1}, s{sT1}, s{sPUBo}
    s_add_u32 s{sT2}, s{sPUBo}, {1<<17}
    s_and_b32 s{sRG}, s{sU}, {4//NRG-1}
    s_mul_i32 s{sT0}, s{sRG}, {2560*NRG}
    v_add_u32 v{vOA2}, s{sT0}, v{vOA}
    v_add_u32 v{vOX2}, s{sT0}, v{vOX}
    s_waitcnt vmcnt(0)''')
    S0, S1 = TMP+10, TMP+14
    for kk in range(4):
        for hf in range(2):
            c = vr(MSK,4) if kk+hf == 0 else vr(S0,4)
            a(f'v_mfma_f32_16x16x32_bf16 {vr(S0,4)}, {vr(KF+(kk*2+hf)*4,4)}, {vr(BQ+(kk*2+hf)*4,4)}, {c}')
    N0, N1, DN = OAC, OAC+4, OAC+8
    a(f'''v_mfma_f32_16x16x32_bf16 {vr(N0,4)}, {vr(KVT,4)}, {vr(PQ,4)}, 0
    v_mfma_f32_16x16x32_bf16 {vr(N1,4)}, {vr(KVT+4,4)}, {vr(PQ,4)}, 0
    v_mfma_f32_16x16x32_bf16 {vr(DN,4)}, {vr(ZT,4)}, {vr(PQ,4)}, 0
    v_sub_f32 v{GB}, 1.0, v{GB}
    v_add_f32 v{DN}, 0x358637bd, v{DN}
    v_rcp_f32 v{DN}, v{DN}
    v_mul_f32 v{DN}, v{DN}, v{GB}''')
    for r in range(4):
        a(f'v_mul_f32 v{N0+r}, v{N0+r}, v{DN}\nv_mul_f32 v{N1+r}, v{N1+r}, v{DN}\nv_cvt_pk_bf16_f32 v{PQ+r}, v{N0+r}, v{N1+r}')
    for i in range(0, 32, 2): a(f'v_mov_b64 {vr(OAC+i,2)}, 0')
    a(f's_add_u32 s{sT3}, s{sSEG}, {int(os.environ.get("GATE","0"))}\ns_cmp_le_u32 s{sT3}, s{sPRG}\ns_cbranch_scc1 L_xp@@')
    a.label('L_xg@@')
    a(f'''buffer_load_dword v{X}, off, s[{sDBG}:{sDBG+3}], 0 offset:{D_PROG*4} sc1
    s_add_u32 s{sSPIN}, s{sSPIN}, 1
    s_waitcnt vmcnt(0)
    v_readfirstlane_b32 s{sPRG}, v{X}
    s_cmp_gt_u32 s{sSPIN}, 300000
    s_cbranch_scc1 L_xp@@
    s_cmp_le_u32 s{sT3}, s{sPRG}
    s_cbranch_scc1 L_xp@@
    s_sleep {int(os.environ.get('XSL','10'))}
    s_branch L_xg@@''')
    a.label('L_xp@@')
    a(f'buffer_load_dwordx2 {vr(PB,2)}, v{vL16}, {W}, s{sT1} offen sc1')
    for w2 in range(4):
        for tv in range(2):
            a(f'buffer_load_dword v{VM+(w2*2+tv)*4}, v{vL16}, {W}, s{sT2} offen offset:{w2*1024+8+tv*4} sc1')
    a(f'''s_add_u32 s{sSPIN}, s{sSPIN}, 1
    s_waitcnt vmcnt(0)
    v_max3_u32 v{X}, v{PB}, v{PB+1}, v{VM}
    v_max3_u32 v{X}, v{X}, v{VM+4}, v{VM+8}
    v_max3_u32 v{X}, v{X}, v{VM+12}, v{VM+16}
    v_max3_u32 v{X}, v{X}, v{VM+20}, v{VM+24}
    v_max_u32 v{X}, v{X}, v{VM+28}
    v_cmp_eq_u32 vcc, -1, v{X}
    s_cbranch_vccz L_xp_ok@@
    s_cmp_gt_u32 s{sSPIN}, 300000
    s_cbranch_scc1 L_xp_ok@@
    s_sleep 1
    s_branch L_xp@@''')
    a.label('L_xp_ok@@')
    a(f'ds_write2_b32 v{vKW}, v{PB}, v{PB+1} offset0:0 offset1:16')
    a('s_waitcnt lgkmcnt(0)\ns_barrier')
    for kk in range(4):
        for hf in range(2):
            a(f'ds_read_b128 {vr(AK+(kk*2+hf)*4,4)}, v{vAK} offset:{L_KS+kk*512+hf*64}')
    a(f's_mul_i32 s{sT0}, s{sW}, 2560\nv_add_u32 v{X}, s{sT0}, v{vOA}\nds_write_b128 v{X}, {vr(PQ,4)} offset:2048')
    for kk in range(4):
        for hf in range(2):
            a(f's_waitcnt lgkmcnt({8-(kk*2+hf)})')
            c = '0' if kk+hf == 0 else vr(S1,4)
            a(f'v_mfma_f32_16x16x32_bf16 {vr(S1,4)}, {vr(AK+(kk*2+hf)*4,4)}, {vr(BQ+(kk*2+hf)*4,4)}, {c}')
    Mx, M2 = X, Y
    PA = TMP+18
    a(f'''v_max3_f32 v{Mx}, v{S0}, v{S0+1}, v{S0+2}
    v_max3_f32 v{Mx}, v{Mx}, v{S0+3}, v{S1}
    v_max_f32_dpp v{Mx}, v{Mx}, v{Mx} quad_perm:[2,3,0,1] row_mask:0xf bank_mask:0xf
    v_mov_b32 v{M2}, v{Mx}
    v_permlane16_swap_b32 v{M2}, v{Mx}
    v_max_f32 v{Mx}, v{Mx}, v{M2}
    v_mov_b32 v{M2}, v{Mx}
    v_permlane32_swap_b32 v{M2}, v{Mx}
    v_max_f32 v{Mx}, v{Mx}, v{M2}
    v_mul_f32 v{Mx}, s{sC}, v{Mx}''')
    for xx in (S0, S0+1, S0+2, S0+3, S1): a(f'v_fma_f32 v{xx}, v{xx}, s{sC}, -v{Mx}')
    for xx in (S0, S0+1, S0+2, S0+3, S1): a(f'v_exp_f32 v{xx}, v{xx}')
    LS = S1
    a(f'''v_mov_b32 v{PA+3}, 0
    v_cvt_pk_bf16_f32 v{PA}, v{S0}, v{S0+1}
    v_cvt_pk_bf16_f32 v{PA+1}, v{S0+2}, v{S0+3}
    v_cvt_pk_bf16_f32 v{PA+2}, v{S1}, v{PA+3}
    v_mfma_f32_16x16x32_bf16 {vr(LS,4)}, {vr(PA,4)}, {vr(ONES,4)}, 0''')
    for t in range(8):
        a(f'v_smfmac_f32_16x16x32_bf16 {vr(OAC+4*t,4)}, {vr(PA,2)}, {vr(VF+4*t,4)}, v{vIDX}')
    for t in range(8):
        a(f'v_smfmac_f32_16x16x32_bf16 {vr(OAC+4*t,4)}, {vr(PA+2,2)}, {vr(VM+4*t,4)}, v{vIDX} abid:2')
    a(f'''v_add_f32 v{LS}, v{LS}, v{LS+2}
    v_add_f32 v{LS+1}, v{LS+1}, v{LS+3}
    v_rcp_f32 v{LS}, v{LS}
    v_rcp_f32 v{LS+1}, v{LS+1}
    v_mul_f32 v{LS}, v{LS}, v{GA}
    v_mul_f32 v{LS+1}, v{LS+1}, v{GA+1}''')
    for w2 in range(4):
        A, B = OAC+8*w2, OAC+8*w2+4
        for r in range(2):
            a(f'''v_add_f32 v{A+r}, v{A+r}, v{A+r+2}
            v_add_f32 v{B+r}, v{B+r}, v{B+r+2}
            v_mul_f32 v{A+r}, v{A+r}, v{LS+r}
            v_mul_f32 v{B+r}, v{B+r}, v{LS+r}
            v_cvt_pk_bf16_f32 v{A+2+r}, v{A+r}, v{B+r}''')
        a(f'ds_write2_b32 v{vOW}, v{A+2}, v{A+3} offset0:{w2*128} offset1:{w2*128+4}' if w2 < 2 else
          f'ds_write_b32 v{vOW}, v{A+2} offset:{w2*512}\nds_write_b32 v{vOW}, v{A+3} offset:{w2*512+16}')
    a('s_waitcnt lgkmcnt(0)\ns_barrier')
    EV = f's[{sEVm}:{sEVm+1}]'
    def tag(r): return f'v_and_or_b32 v{r}, v{r}, -2, s{sEP}'
    OAB = [184, 212]
    def oread(rg):
        OA = OAB[rg & 1]
        for i in range(5): a(f'ds_read_b128 {ar(OA+4*i,4)}, v{vOA2} offset:{rg*2560+i*512}')
        for i in range(2): a(f'ds_read_b128 {ar(OA+20+4*i,4)}, v{vOX2} offset:{rg*2560+i*512}')
    def smfa(d, A, B): a(f'v_smfmac_f32_16x16x64_bf16 {vr(d,4)}, {ar(A,4)}, {B}, v{vIDX}')
    oread(0)
    for rg in range(NRG):
        OA = OAB[rg & 1]
        AC = OAC if rg & 1 else AK
        for i in range(0, 20, 2): a(f'v_mov_b64 {vr(AC+i,2)}, 0')
        a('s_waitcnt lgkmcnt(0)')
        if rg < NRG-1: oread(rg+1)
        X8 = AC+16
        smfa(X8, OA+20, ar(160,8)); smfa(X8, OA+24, ar(168,8)); smfa(X8, OA+16, ar(176,8))
        for c in range(4):
            for rho in range(5): smfa(AC+4*c, OA+4*rho, ar((c*5+rho)*8, 8))
        a(f'''v_add_f32 v{X8}, v{X8}, v{X8+2}
        v_add_f32 v{X8+1}, v{X8+1}, v{X8+3}
        v_cndmask_b32 v{X8+2}, v{X8}, v{X8+1}, {EV}
        v_mov_b32_dpp v{X8+3}, v{X8+2} quad_perm:[1,0,3,2] row_mask:0xf bank_mask:0xf
        v_cndmask_b32 v{X8}, v{X8+3}, v{X8}, {EV}
        v_cndmask_b32 v{X8+1}, v{X8+1}, v{X8+3}, {EV}
        v_cvt_pk_bf16_f32 v{X8}, v{X8}, v{X8+1}
        {tag(X8)}
        buffer_store_dword v{X8}, v{vPS9}, {W}, s{sPW} offen {SC}''')
        for hh in range(2):
            A, B = AC+8*hh, AC+8*hh+4
            a(f'''v_cvt_pk_bf16_f32 v{A}, v{A}, v{A+2}
            v_cvt_pk_bf16_f32 v{A+2}, v{A+1}, v{A+3}
            v_cvt_pk_bf16_f32 v{A+1}, v{B}, v{B+2}
            v_cvt_pk_bf16_f32 v{A+3}, v{B+1}, v{B+3}
            {tag(A)}
            {tag(A+2)}
            buffer_store_dwordx4 {vr(A,4)}, v{vL16}, {W}, s{sPW} offen offset:{hh*1024} {SC}''')
        a(f's_add_u32 s{sPW}, s{sPW}, {32*PST}')
    a(f's_cmp_ge_u32 s{sRHO}, 72\ns_cbranch_scc1 L_xs_next@@')
    RB = [AK, AK+16, OAC, OAC+16]
    DD = [TMP+6, TMP+10, TMP+14, TMP+18]; TT = TMP+4
    a(f's_mul_i32 s{sT1}, s{sU}, {8*NRG*1152}')
    a.label('L_xr@@')
    a(f's_mov_b32 s{sT2}, s{sXPo}')
    for rg in range(NRG):
        for i in range(4):
            a(f'buffer_load_dwordx4 {vr(RB[rg]+4*i,4)}, v{vRED}, {W}, s{sT2} offen sc1')
            a(f's_add_u32 s{sT2}, s{sT2}, {8*PST}')
    for rg in range(NRG): a(f'v_mov_b64 {vr(DD[rg],2)}, 0\nv_mov_b64 {vr(DD[rg]+2,2)}, 0')
    a(f'v_mov_b64 {vr(TT,2)}, 0\ns_add_u32 s{sSPIN}, s{sSPIN}, 1')
    for rg in range(NRG):
        a(f's_waitcnt vmcnt({4*(NRG-1)-4*rg})')
        smf(a, DD[rg], SEL, vr(RB[rg], 8)); smf(a, DD[rg], SEL, vr(RB[rg]+8, 8))
        for i in range(16): a(f'v_bitop3_b32 v{TT+(i&1)}, v{TT+(i&1)}, v{RB[rg]+i}, s{sEP} bitop3:0xf6')
    a(f'''v_and_or_b32 v{TT}, v{TT+1}, s{sXM}, v{TT}
    v_and_b32 v{TT}, 1, v{TT}
    v_cmp_ne_u32 vcc, 0, v{TT}
    s_cbranch_vccz L_xr_ok@@
    s_cmp_gt_u32 s{sSPIN}, 300000
    s_cbranch_scc0 L_xr@@''')
    a.label('L_xr_ok@@')
    for rg in range(NRG):
        D = DD[rg]
        for i in range(4): a(f'v_add_f32_dpp v{D+i}, v{D+i}, v{D+i} row_ror:8 row_mask:0xf bank_mask:0xf')
        a(f'''v_cvt_pk_bf16_f32 v{D}, v{D}, v{D+1}
        v_cvt_pk_bf16_f32 v{D+1}, v{D+2}, v{D+3}
        buffer_store_dwordx2 {vr(D,2)}, v{vOUT}, s[{sOUT}:{sOUT+3}], s{sT1} offen
        s_add_u32 s{sT1}, s{sT1}, {8*1152}''')
    a.label('L_xs_next@@')
    a(f's_add_u32 s{sU}, s{sU}, 7\ns_lshr_b32 s{sSEG}, s{sU}, {SH2}\ns_add_u32 s{sN}, s{sN}, 1\ns_cmp_ge_u32 s{sSEG}, 64\ns_cbranch_scc1 L_xs_end@@')
    offs(sSEG); loads()
    a('s_branch L_xs@@')
    a.label('L_xs_end@@')
```

```python
import sys, os
from asmdsl import *
import worker as Wk, xs, chain10, gen_w
a = Asm()
gen_w.prologue(a)
gen_w.roles(a)
a('s_cmp_lg_u32 s3, 0\ns_cbranch_scc1 L_worker')
chain10.chain(a)
a.label('L_worker')
if os.environ.get('NOWORK'): a('s_branch L_end')
gen_w.worker_entry(a)
Wk.worker_gemm(a)
mark(a, 4, Wk.sDBG)
if os.environ.get('NOXS'): a('s_branch L_end')
xs.xs_pass(a, '')
mark(a, 6, Wk.sDBG)
gen_w.epilogue(a)
open(sys.argv[1], 'w').write(a.text())
```

```python
import sys, os
from asmdsl import *
NSTEPS=int(os.environ.get('NSTEPS','64')); NOPOISON=int(os.environ.get('NOPOISON','0')); PROBE=int(os.environ.get('PROBE','0'))
NAME = 'gated_mix__memory_aug_recurrent_mem_tr__linear_attn_block__prompt'
MiB = 1 << 20
WS_KV, WS_QX, WS_PUB = 0, 32*MiB, 48*MiB
WS_PART, WS_MEM = 58*MiB, 59*MiB
PSZ = 9216
PST = int(os.environ.get('CPST','9344'))
L_MEMS = 0; L_XW = 9216; L_SX5 = 13312; L_OB = 14336; L_W = 16384
OOB = 0x40000000
SC = 'sc1'
SPINMAX = 300000
sWS, sWQ, sWK, sWV, sWO, sM0, sDBG = 8, 12, 16, 20, 24, 28, 32
sH, sW, sS, sT0, sT1, sT2, sT3, sR = 36, 37, 38, 39, 40, 41, 42, 43
sMEMr, sMEMw, sMEMp, sPW, sXW, sX5, sKX, sVX, sPUB, sEP, sMW2, sL4 = 44, 45, 46, 47, 48, 49, 50, 51, 52, 53, 54, 55
sC, sSEL0, sSEL1, sSPIN = 56, 57, 58, 59
sTM = 60
sPR = 64; sOWN = 68
sRHO = 72
sTK, sXM, sRDY = 73, 74, 75
sS0M, sS1M = 100, 2
sEV = 76
sHF0, sHF1, sONE = 4, 6, 78
(vL16, vIDX, vWL, vQKW, vBQ, vAKM, vOW, vPS9, vRED, vMST, vTMP, vOA) = range(12)
PUB = 12
AF = 16; ACC = 52; ACV = 68; T = 76
LDSF = [('qk',0,0),('qk',0,1),('qk',0,2)] + [('qk',sl,3) for sl in range(1,9)] + [('v',6,1),('v',8,1),('v',3,1),('v',5,1)] + [('o8',1),('o',0,1),('o',0,3)]
assert len(LDSF) == 18
ALLF = [('qk',sl,t) for sl in range(9) for t in range(4)] + [('v',sl,t) for sl in range(9) for t in range(2)] + [('o',c,r) for c in range(4) for r in range(4)] + [('o8',0),('o8',1)]
LOC = {}
_res = [f for f in ALLF if f not in LDSF]
assert len(_res) == 54
_wo = sorted([f for f in _res if f[0] == 'o'], key=lambda f: (f[2], f[1])) + [f for f in _res if f[0] == 'o8']
_ot = [f for f in _res if f[0] in ('qk', 'v')]
for i, f in enumerate(_wo): LOC[f] = ('v', 80 + i*8)
for i, f in enumerate(_ot): LOC[f] = ('a', i*8) if i < 32 else ('v', 200 + (i-32)*8)
assert len(_wo) == 15 and len(_ot) == 39
for i, f in enumerate(LDSF): LOC[f] = ('l', i*2048)
BUFTOP = 80 + 15*8
def rstr(kind, b, n):
    return ar(b, n) if kind == 'a' else vr(b, n)
def srd(a, s, lo, nbytes):
    a(f's_mov_b32 s{s}, s{lo}\ns_mov_b32 s{s+1}, s{lo+1}\ns_mov_b32 s{s+2}, {nbytes}\ns_mov_b32 s{s+3}, 0x00020000')

DBG = int(os.environ.get('DBG', '0'))
TM0 = f's_memtime s[{sTM}:{sTM+1}]' if DBG else 's_nop 0'
TM1 = f's_memtime s[{sTM+2}:{sTM+3}]' if DBG else 's_nop 0'
def chain(a):
    import worker as Wk
    p = Wk.ptr
    srd(a, sM0, p(1), 9216); srd(a, sWQ, p(2), 576*8192); srd(a, sWK, p(3), 576*8192); srd(a, sWV, p(4), 576*8192)
    srd(a, sWO, p(5), 4096*1152); srd(a, sDBG, p(12), 256); srd(a, sWS, p(13), 256*MiB)
    a(f'v_readfirstlane_b32 s{sW}, v1')
    mark(a, 0, sDBG, 20, 21, True)
    a(f''' s_mov_b32 s{sH}, s92
    {TM0}
    s_lshl_b32 s{sR}, s{sH}, 2
    s_add_u32 s{sR}, s{sR}, s{sW}
    s_lshr_b32 s{sRHO}, s{sH}, 3
    s_lshl_b32 s{sRHO}, s{sRHO}, 4
    s_and_b32 s{sT0}, s{sH}, 7
    s_add_u32 s{sRHO}, s{sRHO}, s{sT0}
    s_lshl_b32 s{sT0}, s{sW}, 3
    s_add_u32 s{sRHO}, s{sRHO}, s{sT0}
    s_lshl_b32 s{sT0}, s{sW}, 5
    s_add_u32 s{sT0}, s{sT0}, s{sH}
    s_cmp_ge_u32 s{sW}, 2
    s_cselect_b32 s{sRHO}, s{sT0}, s{sRHO}
    s_mov_b32 s{sSEL0}, 0x05040100
    s_mov_b32 s{sSEL1}, 0x07060302''')
    a(f'v_lshlrev_b32 v{vL16}, 4, v0')
    J, G, LANE, X, Y, RW = 60, 61, 62, 63, 64, 65
    a(f''' v_lshrrev_b32 v{LANE}, 4, v{vL16}
    v_and_b32 v{J}, 15, v{LANE}
    v_lshrrev_b32 v{G}, 4, v{LANE}
    v_and_b32 v{X}, 2, v{LANE}
    v_mov_b32 v{vIDX}, 0x00444444
    v_mov_b32 v{Y}, 0x0049EEEE
    v_cmp_ne_u32 vcc, 0, v{X}
    v_cndmask_b32 v{vIDX}, v{vIDX}, v{Y}, vcc
    s_mov_b64 s[{sHF1}:{sHF1+1}], vcc
    s_not_b64 s[{sHF0}:{sHF0+1}], vcc
    s_mov_b32 s{sONE}, 0x3f803f80
    s_mov_b32 s{sONE+1}, 0x3f803f80
    s_lshl_b32 s{sOWN}, s{sW}, 11
    s_xor_b32 s{sOWN+1}, s{sOWN}, 2048
    s_xor_b32 s{sOWN+2}, s{sOWN}, 4096
    s_xor_b32 s{sOWN+3}, s{sOWN}, 6144
    s_lshl_b32 s{sL4}, s{sW}, 8
    s_add_u32 s{sL4}, s{sL4}, 8192
    s_lshl_b32 s{sXW}, s{sW}, 10
    s_add_u32 s{sXW}, s{sXW}, {L_XW}
    s_lshl_b32 s{sX5}, s{sW}, 2
    s_add_u32 s{sX5}, s{sX5}, {L_SX5}
    v_lshlrev_b32 v{X}, 7, v{G}
    v_lshl_add_u32 v{X}, v{J}, 2, v{X}
    v_add_u32 v{vQKW}, s{sXW}, v{X}
    v_lshrrev_b32 v{X}, 2, v{J}
    v_and_b32 v{Y}, 1, v{J}
    v_lshl_add_u32 v{RW}, v{X}, 1, v{Y}
    v_lshlrev_b32 v{X}, 6, v{RW}
    v_lshl_add_u32 v{X}, v{G}, 4, v{X}
    v_add_u32 v{vBQ}, s{sXW}, v{X}
    v_lshrrev_b32 v{X}, 2, v{J}
    v_lshlrev_b32 v{X}, 7, v{X}
    v_lshl_add_u32 v{X}, v{G}, 4, v{X}
    v_add_u32 v{X}, 512, v{X}
    v_add_u32 v{vAKM}, s{sXW}, v{X}
    v_lshl_add_u32 v{X}, v{G}, 3, v{RW}
    v_lshlrev_b32 v{X}, 4, v{X}
    v_add_u32 v{vOA}, {L_OB}, v{X}
    v_lshrrev_b32 v{X}, 2, v{J}
    v_lshlrev_b32 v{X}, 3, v{X}
    v_lshl_add_u32 v{X}, v{G}, 1, v{X}
    v_lshlrev_b32 v{X}, 4, v{X}
    v_and_b32 v{Y}, 3, v{J}
    v_lshl_add_u32 v{X}, v{Y}, 2, v{X}
    s_lshl_b32 s{sT0}, s{sW}, 9
    s_add_u32 s{sT0}, s{sT0}, {L_OB}
    v_add_u32 v{vOW}, s{sT0}, v{X}
    v_lshrrev_b32 v{X}, 2, v{J}
    v_lshlrev_b32 v{X}, 1, v{X}
    v_lshl_add_u32 v{X}, v{G}, 3, v{X}
    v_and_b32 v{Y}, 1, v{J}
    v_add_u32 v{X}, v{X}, v{Y}
    v_lshlrev_b32 v{X}, 3, v{X}
    v_and_b32 v{Y}, 2, v{J}
    v_lshl_add_u32 v{X}, v{Y}, 1, v{X}
    s_mul_i32 s{sT0}, s{sW}, 1792
    s_sub_u32 s{sT0}, 8192, s{sT0}
    v_add_u32 v{vPS9}, s{sT0}, v{X}
    s_cmp_eq_u32 s{sW}, 2
    s_cselect_b32 s{sT1}, 1, 3
    s_cselect_b32 s{sT2}, 1, 7
    s_lshl_b32 s{sT0}, s{sRHO}, 7
    s_lshl_b32 s80, s{sH}, 5
    s_add_u32 s80, s80, 8192
    s_cmp_eq_u32 s{sW}, 2
    s_cselect_b32 s{sXM}, s80, s{sT0}
    v_lshrrev_b32 v{X}, s{sT1}, v{J}
    v_lshl_add_u32 v{X}, v{X}, 2, v{G}
    v_mul_u32_u24 v{X}, {PST}, v{X}
    v_and_b32 v{Y}, s{sT2}, v{J}
    v_lshl_add_u32 v{Y}, v{Y}, 4, v{X}
    v_add_u32 v{vRED}, s{sXM}, v{Y}
    v_lshrrev_b32 v{Y}, 2, v{J}
    v_cmp_eq_u32 s[{sS0M}:{sS0M+1}], 0, v{Y}
    v_cmp_eq_u32 s[{sS1M}:{sS1M+1}], 1, v{Y}''')
    O, Q, SRC, T1, Q2, R2, H2 = 66, 67, 68, 69, 70, 71, 72
    a(f''' v_and_b32 v{X}, s{sT2}, v{J}
    v_lshlrev_b32 v{X}, 4, v{X}
    v_and_b32 v{Y}, 1, v{G}
    v_lshl_add_u32 v{X}, v{Y}, 3, v{X}
    v_add_u32 v{O}, s{sXM}, v{X}
    v_bfe_u32 v{X}, v{O}, 8, 2
    v_bfe_u32 v{Y}, v{O}, 3, 1
    v_lshl_add_u32 v{RW}, v{X}, 1, v{Y}
    v_lshrrev_b32 v{Q}, 11, v{O}
    v_lshlrev_b32 v{Q}, 4, v{Q}
    v_bfe_u32 v{X}, v{O}, 4, 4
    v_add_u32 v{Q}, v{Q}, v{X}
    v_bfe_u32 v{T1}, v{O}, 10, 1
    v_bfe_u32 v{X}, v{O}, 8, 2
    v_bfe_u32 v{Y}, v{O}, 5, 1
    v_lshl_add_u32 v{Q2}, v{X}, 1, v{Y}
    v_add_u32 v{Q2}, 64, v{Q2}
    v_bfe_u32 v{X}, v{O}, 6, 2
    v_bfe_u32 v{Y}, v{O}, 3, 1
    v_lshl_add_u32 v{R2}, v{X}, 1, v{Y}
    v_bfe_u32 v{H2}, v{O}, 4, 1
    v_cmp_le_u32 vcc, 0x2000, v{O}
    v_cndmask_b32 v{Q}, v{Q}, v{Q2}, vcc
    v_cndmask_b32 v{RW}, v{RW}, v{R2}, vcc
    v_cndmask_b32 v{T1}, v{T1}, v{H2}, vcc
    v_mul_u32_u24 v{SRC}, 1152, v{RW}
    v_lshl_add_u32 v{SRC}, v{Q}, 4, v{SRC}
    v_lshl_add_u32 v{SRC}, v{T1}, 3, v{SRC}
    v_lshrrev_b32 v{X}, 10, v{O}
    v_bfe_u32 v{Y}, v{O}, 5, 3
    v_lshl_add_u32 v{X}, v{X}, 3, v{Y}
    v_bfe_u32 v{Y}, v{O}, 4, 1
    v_cndmask_b32 v{Q}, v{X}, v{Q}, vcc
    v_cndmask_b32 v{T1}, v{Y}, v{T1}, vcc
    v_lshrrev_b32 v{X}, 1, v{RW}
    v_lshlrev_b32 v{X}, 2, v{X}
    v_and_b32 v{Y}, 1, v{Q}
    v_lshl_add_u32 v{X}, v{Y}, 1, v{X}
    v_and_b32 v{Y}, 1, v{RW}
    v_add_u32 v{X}, v{X}, v{Y}
    v_lshlrev_b32 v{X}, 4, v{X}
    v_lshrrev_b32 v{Y}, 1, v{Q}
    v_lshl_add_u32 v{X}, v{Y}, 8, v{X}
    v_lshl_add_u32 v{vMST}, v{T1}, 3, v{X}
    v_cmp_ge_u32 s[80:81], s{sT2}, v{J}
    v_cmp_gt_u32 s[82:83], 2, v{G}
    s_and_b64 vcc, s[80:81], s[82:83]
    s_cmp_lt_u32 s{sW}, 3
    s_cselect_b64 vcc, vcc, 0
    s_cselect_b64 s[80:81], -1, 0
    v_mov_b32 v{X}, {OOB}
    v_cndmask_b32 v{vMST}, v{X}, v{vMST}, vcc
    v_cndmask_b32 v{SRC}, v{X}, v{SRC}, vcc
    v_cndmask_b32 v{vRED}, v{X}, v{vRED}, s[80:81]''')
    a(f''' v_and_b32 v{X}, 1, v{J}
    v_cmp_eq_u32 s[{sEV}:{sEV+1}], 0, v{X}
    s_mov_b32 s{sC}, 0x3e0293ee
    s_mov_b32 s{sPR}, {WS_PART}
    s_cmp_eq_u32 s{sW}, 2
    s_cselect_b32 s{sPR+1}, s{sPR}, {WS_PART+8*PST}
    s_cselect_b32 s{sPR+2}, s{sPR}, {WS_PART+16*PST}
    s_cselect_b32 s{sPR+3}, s{sPR}, {WS_PART+24*PST}
    s_mul_i32 s{sPW}, s{sH}, {PST}
    s_add_u32 s{sPW}, s{sPW}, {WS_PART}
    s_add_u32 s{sPW}, s{sPW}, s{sOWN}
    s_lshl_b32 s{sKX}, s{sH}, 14
    s_add_u32 s{sTK}, s{sKX}, {WS_KV + (2<<19)}
    s_lshl_b32 s{sT0}, s{sW}, 12
    s_add_u32 s{sTK}, s{sTK}, s{sT0}
    s_add_u32 s{sKX}, s{sKX}, s{sOWN}
    s_add_u32 s{sKX}, s{sKX}, {WS_KV}
    s_add_u32 s{sVX}, s{sKX}, 8192
    s_lshl_b32 s{sPUB}, s{sR}, 10
    s_add_u32 s{sPUB}, s{sPUB}, {WS_PUB}''')
    a(f'buffer_load_dwordx2 v[28:29], v{SRC}, s[{sM0}:{sM0+3}], 0 offen\nv_mov_b32 v30, v{vMST}\nv_mov_b32 v31, v{vRED}')
    a('v_mov_b32 v24, -1\nv_mov_b32 v25, -1\nv_mov_b32 v26, -1\nv_mov_b32 v27, -1')
    a(f'v_lshrrev_b32 v0, 4, v{vL16}')
    J, G, LANE, X, Y, Z, VO = 4, 5, 6, 7, 8, 9, 10
    a(f''' v_mov_b32 v{LANE}, v0
    v_and_b32 v{J}, 15, v{LANE}
    v_lshrrev_b32 v{G}, 4, v{LANE}
    v_lshlrev_b32 v{vL16}, 4, v{LANE}
    v_lshrrev_b32 v{X}, 1, v{G}
    v_lshlrev_b32 v{X}, 4, v{X}
    v_and_b32 v{Y}, 1, v{G}
    v_lshlrev_b32 v{Y}, 2, v{Y}
    v_add_u32 v{X}, v{X}, v{Y}
    v_lshlrev_b32 v{VO}, 13, v{X}
    v_lshl_add_u32 v{VO}, v{J}, 2, v{VO}
    v_mul_u32_u24 v{Z}, 1152, v{X}
    s_mul_i32 s{sT0}, s{sW}, 36864
    s_add_u32 s{sT0}, s{sT0}, {L_W}
    v_add_u32 v{vWL}, s{sT0}, v{vL16}''')
    SW, SR, WO4, WO8, SR2, SE, SO = 11, 12, 13, 14, 15, 3, 1
    a(f''' v_lshlrev_b32 v{SR}, 7, v{X}
    v_lshl_add_u32 v{SR}, v{J}, 2, v{SR}
    s_and_b32 s{sT0}, s{sW}, 1
    s_lshl_b32 s{sT0}, s{sT0}, 6
    v_add_u32 v{SR}, s{sT0}, v{SR}
    s_lshl_b32 s{sT0}, s{sW}, 12
    s_and_b32 s{sT1}, s{sT0}, 0x2000
    v_add_u32 v{SE}, s{sT1}, v{SR}
    v_add_u32 v{SO}, 4096, v{SE}
    v_xor_b32 v{SR2}, 4096, v{SR}
    v_add_u32 v{SR}, s{sT0}, v{SR}
    v_xor_b32 v{SR2}, 4096, v{SR}
    v_add_u32 v{SW}, s{sT0}, v{vL16}
    v_lshrrev_b32 v{X}, 3, v{LANE}
    v_lshlrev_b32 v{VO}, 13, v{X}
    v_and_b32 v{Y}, 7, v{LANE}
    v_lshl_add_u32 v{VO}, v{Y}, 4, v{VO}
    v_lshrrev_b32 v{X}, 5, v{LANE}
    v_lshl_add_u32 v{X}, v{X}, 15, v{VO}
    s_lshl_b32 s{sT3}, s{sH}, 8
    s_lshr_b32 s{sT0}, s{sW}, 1
    s_lshl_b32 s{sT0}, s{sT0}, 7
    s_add_u32 s{sT3}, s{sT3}, s{sT0}
    v_mul_u32_u24 v{Z}, {4*1152}, v{G}
    v_lshl_add_u32 v{WO4}, v{J}, 4, v{Z}
    s_lshl_b32 s{sT0}, s{sW}, 8
    v_add_u32 v{WO4}, s{sT0}, v{WO4}
    v_lshl_add_u32 v{WO8}, v{J}, 1, v{Z}
    s_lshl_b32 s{sT0}, s{sW}, 5
    s_add_u32 s{sT0}, s{sT0}, 1024
    v_add_u32 v{WO8}, s{sT0}, v{WO8}
    s_mul_i32 s{sT1}, s{sH}, 147456''')
    vq = ['m0']
    def vwait(tag):
        idx = max(i for i, t in enumerate(vq) if t == tag)
        a(f's_waitcnt vmcnt({min(len(vq)-1-idx, 63)})')
        del vq[:idx+1]
    RAW = 128
    for rho in range(4):
        for x in range(4):
            kh, p0 = x >> 1, x & 1
            a(f's_add_u32 s{sT2}, s{sT1}, {(32*rho+16*kh+2*p0)*1152}')
            a(f'buffer_load_dwordx4 {vr(RAW+rho*32+x*8,4)}, v{WO4}, s[{sWO}:{sWO+3}], s{sT2} offen')
            a(f'buffer_load_dwordx4 {vr(RAW+rho*32+x*8+4,4)}, v{WO4}, s[{sWO}:{sWO+3}], s{sT2} offen offset:1152')
            vq += [('wo', rho)]*2
    for i in range(4):
        a(f'buffer_store_dwordx4 v[24:27], v31, s[{sWS}:{sWS+3}], s{sPR+i} offen {SC}'); vq.append('pz')
    for slot in range(1, 4):
        a(f's_mov_b32 s{sT0}, {WS_MEM + slot*PSZ}')
        a(f'buffer_store_dwordx2 v[24:25], v30, s[{sWS}:{sWS+3}], s{sT0} offen {SC}'); vq.append('pz')
    jobs = [(m, pp, sg, kh) for m in (0, 1, 2) for pp in (0, 1) for sg in (0, 1) for kh in (0, 1)] + [(m, 8, 0, 0) for m in range(3)]
    def fr(m, slot, t): return ('qk', slot, 2*m+t) if m < 2 else ('v', slot, t)
    def parts(j):
        m, pp, sg, kh = j
        if pp == 8: return [(SE, 8, 0), (SO, 8, 1)]
        return [(SR, 4*pp+sg, kh), (SR2, 4*pp+2+sg, kh)]
    def late(j):
        return any(LOC[fr(j[0], slot, t)][0] == 'v' for (_, slot, _) in parts(j) for t in range(2))
    jobs = [j for j in jobs if not late(j)] + [j for j in jobs if late(j)]
    nlate = sum(map(late, jobs))
    free = [48, 64]
    bufn = {}
    for p in range(2): a(f's_xor_b32 s{84+p}, s{sW}, {2*p}\ns_lshl_b32 s{84+p}, s{84+p}, 20\ns_add_u32 s{84+p}, s{84+p}, s{sT3}')
    a(f's_and_b32 s86, s{sW}, 1\ns_lshl_b32 s86, s86, 18\ns_add_u32 s86, s86, s{sT3}')
    nxt = [0]
    written = set()
    def issue():
        n = nxt[0]
        if n >= len(jobs) or not free: return False
        m, pp, sg, kh = jobs[n]
        def ok(b):
            if b < 200: return True
            for k in range(n+1):
                for (_, slot, _) in parts(jobs[k]):
                    for t in range(2):
                        kind, base = LOC[fr(jobs[k][0], slot, t)]
                        if kind == 'v' and base < b+16 and base+8 > b: return False
            return True
        cand = [b for b in free if ok(b)]
        if not cand: return False
        buf = cand[-1]; free.remove(buf); bufn[n] = buf
        s = (sWQ, sWK, sWV)[m]
        for i in range(4):
            if pp < 8: a(f's_add_u32 s{sT2}, s{84+pp}, {(sg*4+64*kh+16*i)*8192}')
            else: a(f's_add_u32 s{sT2}, s86, {(512+8*i)*8192}')
            a(f'buffer_load_dwordx4 {vr(buf+4*i,4)}, v{X if pp < 8 else VO}, s[{s}:{s+3}], s{sT2} offen')
        vq.extend([('j', n)]*4)
        nxt[0] += 1
        return True
    P, RD = 16, 32
    def consume(n):
        m = jobs[n][0]
        buf = bufn[n]
        vwait(('j', n))
        a('s_barrier')
        if n == 2:
            assert 'seed' not in vq
            a(f'''s_cmp_lg_u32 s{sW}, 0
            s_cbranch_scc1 L_arr
            v_mov_b32 v{RD}, 1
            s_mov_b64 exec, 1
            buffer_atomic_add v{RD}, off, s[{sDBG}:{sDBG+3}], 0 offset:4
            s_mov_b64 exec, -1''')
            a.label('L_arr')
        for i in range(4): a(f'ds_write_b128 v{SW}, {vr(buf+4*i,4)} offset:{i*1024}')
        a('s_waitcnt lgkmcnt(0)\ns_barrier')
        for q, (adr, slot, kh) in enumerate(parts(jobs[n])):
            for b in range(4):
                p0, hf = b >> 1, b & 1
                for u in range(2):
                    a(f'ds_read_b32 v{RD+8*q+2*b+u}, v{adr} offset:{(8*hf+2*p0+u)*128}')
        free.append(buf)
        while issue(): pass
        a('s_waitcnt lgkmcnt(0)')
        for q, (adr, slot, kh) in enumerate(parts(jobs[n])):
            for t in range(2):
                kind, base = LOC[fr(m, slot, t)]
                dst = base+4*kh if kind == 'v' else P + 8*q + 4*t
                for b in range(4):
                    a(f'v_perm_b32 v{dst+b}, v{RD+8*q+2*b+1}, v{RD+8*q+2*b}, s{sSEL1 if t else sSEL0}')
                if kind == 'a':
                    for b in range(4): a(f'v_accvgpr_write_b32 a{base+4*kh+b}, v{dst+b}')
                if kind == 'l':
                    a(f'ds_write_b128 v{vWL}, {vr(dst, 4)} offset:{base + kh*1024}')
    while issue(): pass
    vwait('m0')
    a(f's_mov_b32 s{sT0}, {WS_MEM}\nbuffer_store_dwordx2 v[28:29], v30, s[{sWS}:{sWS+3}], s{sT0} offen {SC}'); vq.append('seed')
    for rho in range(4):
        vwait(('wo', rho))
        for c in range(4):
            kind, base = LOC[('o', c, rho)]
            dst = base if kind == 'v' else P
            for x in range(4):
                kh, p0 = x >> 1, x & 1
                for hf in range(2):
                    a(f'v_perm_b32 v{dst+4*kh+2*p0+hf}, v{RAW+rho*32+x*8+4+c}, v{RAW+rho*32+x*8+c}, s{sSEL1 if hf else sSEL0}')
            if kind == 'l':
                for hh in range(2): a(f'ds_write_b128 v{vWL}, {vr(dst+4*hh,4)} offset:{base+hh*1024}')
        if rho == 2: free.append(208)
        if rho == 3: free.extend([224, 240])
        while issue(): pass
    for n in range(len(jobs)):
        consume(n)
    assert nxt[0] == len(jobs)
    for sg in range(2):
        for b in range(8):
            kh, p0, hf = b >> 2, (b >> 1) & 1, b & 1
            a(f's_add_u32 s{sT2}, s{sT1}, {(32*(sg+2*hf)+16*kh+2*p0)*1152}')
            a(f'buffer_load_ushort v{32+sg*16+2*b}, v{WO8}, s[{sWO}:{sWO+3}], s{sT2} offen')
            a(f'buffer_load_ushort v{33+sg*16+2*b}, v{WO8}, s[{sWO}:{sWO+3}], s{sT2} offen offset:1152')
    a('s_waitcnt vmcnt(0) lgkmcnt(0)')
    for sg in range(2):
        kind, base = LOC[('o8', sg)]
        dst = base if kind == 'v' else P
        for b in range(8): a(f'v_lshl_or_b32 v{dst+b}, v{33+sg*16+2*b}, 16, v{32+sg*16+2*b}')
        if kind == 'l':
            for hh in range(2): a(f'ds_write_b128 v{vWL}, {vr(dst+4*hh,4)} offset:{base+hh*1024}')
    a('s_waitcnt lgkmcnt(0)')
    J, G, LANE, X, Y, RW = 60, 61, 62, 63, 64, 65
    a(f''' v_lshrrev_b32 v{LANE}, 4, v{vL16}
    v_and_b32 v{J}, 15, v{LANE}
    v_lshrrev_b32 v{G}, 4, v{LANE}
    v_and_b32 v{X}, 2, v{LANE}
    v_mov_b32 v{vIDX}, 0x00444444
    v_mov_b32 v{Y}, 0x0049EEEE
    v_cmp_ne_u32 vcc, 0, v{X}
    v_cndmask_b32 v{vIDX}, v{vIDX}, v{Y}, vcc
    s_mov_b64 s[{sHF1}:{sHF1+1}], vcc
    s_not_b64 s[{sHF0}:{sHF0+1}], vcc
    s_mov_b32 s{sONE}, 0x3f803f80
    s_mov_b32 s{sONE+1}, 0x3f803f80
    s_lshl_b32 s{sOWN}, s{sW}, 11
    s_xor_b32 s{sOWN+1}, s{sOWN}, 2048
    s_xor_b32 s{sOWN+2}, s{sOWN}, 4096
    s_xor_b32 s{sOWN+3}, s{sOWN}, 6144
    s_lshl_b32 s{sL4}, s{sW}, 8
    s_add_u32 s{sL4}, s{sL4}, 8192
    s_lshl_b32 s{sXW}, s{sW}, 10
    s_add_u32 s{sXW}, s{sXW}, {L_XW}
    s_lshl_b32 s{sX5}, s{sW}, 2
    s_add_u32 s{sX5}, s{sX5}, {L_SX5}
    v_lshlrev_b32 v{X}, 7, v{G}
    v_lshl_add_u32 v{X}, v{J}, 2, v{X}
    v_add_u32 v{vQKW}, s{sXW}, v{X}
    v_lshrrev_b32 v{X}, 2, v{J}
    v_and_b32 v{Y}, 1, v{J}
    v_lshl_add_u32 v{RW}, v{X}, 1, v{Y}
    v_lshlrev_b32 v{X}, 6, v{RW}
    v_lshl_add_u32 v{X}, v{G}, 4, v{X}
    v_add_u32 v{vBQ}, s{sXW}, v{X}
    v_lshrrev_b32 v{X}, 2, v{J}
    v_lshlrev_b32 v{X}, 7, v{X}
    v_lshl_add_u32 v{X}, v{G}, 4, v{X}
    v_add_u32 v{X}, 512, v{X}
    v_add_u32 v{vAKM}, s{sXW}, v{X}
    v_lshl_add_u32 v{X}, v{G}, 3, v{RW}
    v_lshlrev_b32 v{X}, 4, v{X}
    v_add_u32 v{vOA}, {L_OB}, v{X}
    v_lshrrev_b32 v{X}, 2, v{J}
    v_lshlrev_b32 v{X}, 3, v{X}
    v_lshl_add_u32 v{X}, v{G}, 1, v{X}
    v_lshlrev_b32 v{X}, 4, v{X}
    v_and_b32 v{Y}, 3, v{J}
    v_lshl_add_u32 v{X}, v{Y}, 2, v{X}
    s_lshl_b32 s{sT0}, s{sW}, 9
    s_add_u32 s{sT0}, s{sT0}, {L_OB}
    v_add_u32 v{vOW}, s{sT0}, v{X}
    v_lshrrev_b32 v{X}, 2, v{J}
    v_lshlrev_b32 v{X}, 1, v{X}
    v_lshl_add_u32 v{X}, v{G}, 3, v{X}
    v_and_b32 v{Y}, 1, v{J}
    v_add_u32 v{X}, v{X}, v{Y}
    v_lshlrev_b32 v{X}, 3, v{X}
    v_and_b32 v{Y}, 2, v{J}
    v_lshl_add_u32 v{X}, v{Y}, 1, v{X}
    s_mul_i32 s{sT0}, s{sW}, 1792
    s_sub_u32 s{sT0}, 8192, s{sT0}
    v_add_u32 v{vPS9}, s{sT0}, v{X}
    s_cmp_eq_u32 s{sW}, 2
    s_cselect_b32 s{sT1}, 1, 3
    s_cselect_b32 s{sT2}, 1, 7
    s_lshl_b32 s{sT0}, s{sRHO}, 7
    s_lshl_b32 s80, s{sH}, 5
    s_add_u32 s80, s80, 8192
    s_cmp_eq_u32 s{sW}, 2
    s_cselect_b32 s{sXM}, s80, s{sT0}
    v_lshrrev_b32 v{X}, s{sT1}, v{J}
    v_lshl_add_u32 v{X}, v{X}, 2, v{G}
    v_mul_u32_u24 v{X}, {PST}, v{X}
    v_and_b32 v{Y}, s{sT2}, v{J}
    v_lshl_add_u32 v{Y}, v{Y}, 4, v{X}
    v_add_u32 v{vRED}, s{sXM}, v{Y}
    v_lshrrev_b32 v{Y}, 2, v{J}
    v_cmp_eq_u32 s[{sS0M}:{sS0M+1}], 0, v{Y}
    v_cmp_eq_u32 s[{sS1M}:{sS1M+1}], 1, v{Y}''')
    O, Q, SRC, T1, Q2, R2, H2 = 66, 67, 68, 69, 70, 71, 72
    a(f''' v_and_b32 v{X}, s{sT2}, v{J}
    v_lshlrev_b32 v{X}, 4, v{X}
    v_and_b32 v{Y}, 1, v{G}
    v_lshl_add_u32 v{X}, v{Y}, 3, v{X}
    v_add_u32 v{O}, s{sXM}, v{X}
    v_bfe_u32 v{X}, v{O}, 8, 2
    v_bfe_u32 v{Y}, v{O}, 3, 1
    v_lshl_add_u32 v{RW}, v{X}, 1, v{Y}
    v_lshrrev_b32 v{Q}, 11, v{O}
    v_lshlrev_b32 v{Q}, 4, v{Q}
    v_bfe_u32 v{X}, v{O}, 4, 4
    v_add_u32 v{Q}, v{Q}, v{X}
    v_bfe_u32 v{T1}, v{O}, 10, 1
    v_bfe_u32 v{X}, v{O}, 8, 2
    v_bfe_u32 v{Y}, v{O}, 5, 1
    v_lshl_add_u32 v{Q2}, v{X}, 1, v{Y}
    v_add_u32 v{Q2}, 64, v{Q2}
    v_bfe_u32 v{X}, v{O}, 6, 2
    v_bfe_u32 v{Y}, v{O}, 3, 1
    v_lshl_add_u32 v{R2}, v{X}, 1, v{Y}
    v_bfe_u32 v{H2}, v{O}, 4, 1
    v_cmp_le_u32 vcc, 0x2000, v{O}
    v_cndmask_b32 v{Q}, v{Q}, v{Q2}, vcc
    v_cndmask_b32 v{RW}, v{RW}, v{R2}, vcc
    v_cndmask_b32 v{T1}, v{T1}, v{H2}, vcc
    v_mul_u32_u24 v{SRC}, 1152, v{RW}
    v_lshl_add_u32 v{SRC}, v{Q}, 4, v{SRC}
    v_lshl_add_u32 v{SRC}, v{T1}, 3, v{SRC}
    v_lshrrev_b32 v{X}, 10, v{O}
    v_bfe_u32 v{Y}, v{O}, 5, 3
    v_lshl_add_u32 v{X}, v{X}, 3, v{Y}
    v_bfe_u32 v{Y}, v{O}, 4, 1
    v_cndmask_b32 v{Q}, v{X}, v{Q}, vcc
    v_cndmask_b32 v{T1}, v{Y}, v{T1}, vcc
    v_lshrrev_b32 v{X}, 1, v{RW}
    v_lshlrev_b32 v{X}, 2, v{X}
    v_and_b32 v{Y}, 1, v{Q}
    v_lshl_add_u32 v{X}, v{Y}, 1, v{X}
    v_and_b32 v{Y}, 1, v{RW}
    v_add_u32 v{X}, v{X}, v{Y}
    v_lshlrev_b32 v{X}, 4, v{X}
    v_lshrrev_b32 v{Y}, 1, v{Q}
    v_lshl_add_u32 v{X}, v{Y}, 8, v{X}
    v_lshl_add_u32 v{vMST}, v{T1}, 3, v{X}
    v_cmp_ge_u32 s[80:81], s{sT2}, v{J}
    v_cmp_gt_u32 s[82:83], 2, v{G}
    s_and_b64 vcc, s[80:81], s[82:83]
    s_cmp_lt_u32 s{sW}, 3
    s_cselect_b64 vcc, vcc, 0
    s_cselect_b64 s[80:81], -1, 0
    v_mov_b32 v{X}, {OOB}
    v_cndmask_b32 v{vMST}, v{X}, v{vMST}, vcc
    v_cndmask_b32 v{SRC}, v{X}, v{SRC}, vcc
    v_cndmask_b32 v{vRED}, v{X}, v{vRED}, s[80:81]''')
    a(f''' v_and_b32 v{X}, 1, v{J}
    v_cmp_eq_u32 s[{sEV}:{sEV+1}], 0, v{X}
    s_mov_b32 s{sC}, 0x3e0293ee
    s_mov_b32 s{sPR}, {WS_PART}
    s_cmp_eq_u32 s{sW}, 2
    s_cselect_b32 s{sPR+1}, s{sPR}, {WS_PART+8*PST}
    s_cselect_b32 s{sPR+2}, s{sPR}, {WS_PART+16*PST}
    s_cselect_b32 s{sPR+3}, s{sPR}, {WS_PART+24*PST}
    s_mul_i32 s{sPW}, s{sH}, {PST}
    s_add_u32 s{sPW}, s{sPW}, {WS_PART}
    s_add_u32 s{sPW}, s{sPW}, s{sOWN}
    s_lshl_b32 s{sKX}, s{sH}, 14
    s_add_u32 s{sTK}, s{sKX}, {WS_KV + (2<<19)}
    s_lshl_b32 s{sT0}, s{sW}, 12
    s_add_u32 s{sTK}, s{sTK}, s{sT0}
    s_add_u32 s{sKX}, s{sKX}, s{sOWN}
    s_add_u32 s{sKX}, s{sKX}, {WS_KV}
    s_add_u32 s{sVX}, s{sKX}, 8192
    s_lshl_b32 s{sPUB}, s{sR}, 10
    s_add_u32 s{sPUB}, s{sPUB}, {WS_PUB}''')
    mark(a, 1, sDBG, 20, 21)
    if os.environ.get('NOWORK'): a('s_waitcnt vmcnt(0)\ns_branch L_end')
    a('s_barrier')
    a(f's_mov_b32 s{sSPIN}, 0')
    a.label('L_bar_loop')
    a(f''' buffer_load_dwordx4 v[20:23], off, s[{sDBG}:{sDBG+3}], 0 sc1
    s_waitcnt vmcnt(0)
    v_readfirstlane_b32 s{sT0}, v21
    v_readfirstlane_b32 s{sT1}, v22
    v_readfirstlane_b32 s{sT2}, v20
    s_add_u32 s{sSPIN}, s{sSPIN}, 1
    s_cmp_gt_u32 s{sSPIN}, {SPINMAX}
    s_cbranch_scc1 L_end
    s_cmp_lt_u32 s{sT0}, 32
    s_cbranch_scc1 L_bar_loop
    s_cmp_lt_u32 s{sT1}, 96
    s_cbranch_scc1 L_bar_loop
    s_mov_b32 s{sRDY}, 0
    s_mov_b32 s{sT0}, 2''')
    step11.rdy(a, '_i', globals())
    a.label('L_rdy_done_i')
    a(f''' v_lshlrev_b32 v20, 2, v{vL16}
    s_sub_u32 s{sT0}, s{sTK}, {2<<19}
    s_sub_u32 s{sT1}, s{sTK}, {1<<19}
    buffer_load_dword v21, v20, s[{sWS}:{sWS+3}], s{sT0} offen
    buffer_load_dword v22, v20, s[{sWS}:{sWS+3}], s{sT1} offen
    {TM1}
    s_mov_b32 s{sS}, 0
    s_mov_b32 s{sSPIN}, 0
    s_waitcnt lgkmcnt(0)
    s_mov_b32 s{sMEMr}, {OOB}
    s_mov_b32 s{sMEMw}, {WS_MEM}
    s_cmp_eq_u32 s{sW}, 3
    s_cbranch_scc1 L_step_n
    s_cmp_eq_u32 s{sW}, 2
    s_cbranch_scc1 L_step_q''')
    mark(a, 2, sDBG, 20, 21)
    slow = f's_cmp_lt_u32 s{sT2}, {1000 if os.environ.get("FORCESLOW") else 32}'
    a(slow + '\ns_cbranch_scc1 L_slow_r')
    step(a, 1, '')
    a('s_branch L_fin')
    a.label('L_slow_r')
    step(a, 1, 'sc1')
    a('s_branch L_fin')
    a.label('L_step_q')
    a(slow + '\ns_cbranch_scc1 L_slow_q')
    step(a, 2, '')
    a('s_branch L_fin')
    a.label('L_slow_q')
    step(a, 2, 'sc1')
    a('s_branch L_fin')
    a.label('L_step_n')
    a(f's_cmp_eq_u32 s{sRHO}, 127\ns_cselect_b32 s{sXM}, {Wk.D_PROG*4}, s{sWS+2}')
    a(slow + '\ns_cbranch_scc1 L_slow_n')
    step(a, 0, '')
    a('s_branch L_fin_n')
    a.label('L_slow_n')
    step(a, 0, 'sc1')
    a.label('L_fin_n')
    a(f'v_mov_b32 v20, 100\nbuffer_store_dword v20, off, s[{sDBG}:{sDBG+3}], s{sXM} sc1')
    a.label('L_fin')
    mark(a, 3, sDBG, 20, 21)
    a(f'buffer_store_dwordx4 {vr(PUB,4)}, v{vL16}, s[{sWS}:{sWS+3}], s{sPUB} offen sc1')
    if DBG: a(f''' s_memtime s[84:85]
    s_waitcnt lgkmcnt(0)
    s_cmp_lg_u32 s{sR}, 0
    s_cbranch_scc1 L_end
    s_sub_u32 s{sT0}, s{sTM+2}, s{sTM}
    s_sub_u32 s{sT1}, s84, s{sTM+2}
    v_mov_b32 v30, s{sT0}
    v_mov_b32 v31, s{sT1}
    v_mov_b32 v32, s{sSPIN}
    v_mov_b32 v33, 0
    v_mov_b32 v29, 16
    s_mov_b64 exec, 1
    buffer_store_dwordx4 v[30:33], v29, s[{sDBG}:{sDBG+3}], 0 offen
    s_waitcnt vmcnt(0)''')
    a('s_branch L_end')

def smf(a, d, A, B):
    kind, b = B
    a(f'v_smfmac_f32_16x16x64_bf16 {vr(d,4)}, {vr(A,4)}, {rstr(kind,b,8)}, v{vIDX}')

STAMPS=[12,14,16,18,20,22,24,26,28,30,80,82,84,86,88,90,92,94,96,98]
nst_=[0]
def stamp(a, name):
    if not PROBE: return
    if os.environ.get('FINE') and name in ('top','s5 done','k done','ak ok','pre B2','post B2','sr ok','v issued','pub ack','x','pp issue','part ok','end'): return
    k=nst_[0]; nst_[0]+=1
    a(f's_memtime s[{STAMPS[k]}:{STAMPS[k]+1}]')
    print('stamp',k,name)
def stamp_dump(a, sfx):
    if not PROBE: return
    a(f"""s_cmp_lg_u32 s{sS}, 40
    s_cbranch_scc1 L_nodump{sfx}
    s_waitcnt lgkmcnt(0)
    v_mov_b32 v60, 0""")
    for k in range(nst_[0]): a(f'v_writelane_b32 v60, s{STAMPS[k]}, {k}')
    a(f"""s_lshl_b32 s{sT0}, s{sR}, 8
    s_add_u32 s{sT0}, s{sT0}, {200*MiB}
    v_lshrrev_b32 v61, 2, v{vL16}
    buffer_store_dword v60, v61, s[{sWS}:{sWS+3}], s{sT0} offen""")
    a.label('L_nodump'+sfx)
    nst_[0] = 0

import step11
def step(a, red, sc):
    g = dict(globals()); g['SC'] = sc
    step11.step(a, red, g)
```

```python
import os
import worker as Wk
from asmdsl import *
def rdy(a, sfx, g):
    globals().update({k: v for k, v in g.items() if not k.startswith('__') and k != 'step'})
    a.label('L_rdy'+sfx)
    a(f""" v_lshrrev_b32 v{ACC}, 2, v{vL16}
    v_and_b32 v{ACC}, 60, v{ACC}
    buffer_load_dword v{ACC+1}, v{ACC}, s[{sDBG}:{sDBG+3}], 0 offen offset:{Wk.D_KV*4} sc1
    s_add_u32 s{sSPIN}, s{sSPIN}, 1
    s_waitcnt vmcnt(0)
    v_cmp_gt_u32 vcc, 128, v{ACC+1}
    s_or_b32 s{sT1}, vcc_lo, 0x10000
    s_ff1_i32_b32 s{sT1}, s{sT1}
    s_lshl_b32 s{sRDY}, s{sT1}, 2
    s_cmp_eq_u32 s{sT1}, 16
    s_cselect_b32 s{sRDY}, 100, s{sRDY}
    s_cmp_gt_u32 s{sSPIN}, {SPINMAX}
    s_cbranch_scc1 L_rdy_done{sfx}
    s_cmp_ge_u32 s{sT0}, s{sRDY}
    s_cbranch_scc1 L_rdy{sfx}
    s_branch L_rdy_done{sfx}""")

def step(a, RED, g):
    globals().update({k: v for k, v in g.items() if not k.startswith('__') and k != 'step'})
    env = os.environ
    W = f's[{sWS}:{sWS+3}]'
    sfx = ('_x', '_r', '_q')[RED] + SC
    A01 = 16; AFW = [24, 28, 32]; WIN = [36, 44]
    lds = []
    def L(tag, n=1): lds.extend([tag]*n)
    def waitfor(tag):
        if tag not in lds: return
        idx = max(i for i, t in enumerate(lds) if t == tag)
        rem = len(lds) - 1 - idx
        a(f's_waitcnt lgkmcnt({min(rem,15)})')
        del lds[:idx+1]
    where = {}
    def wl(f, buf):
        base = LOC[f][1]; assert LOC[f][0] == 'l'
        a(f'ds_read_b128 {vr(buf,4)}, v{vWL} offset:{base}\nds_read_b128 {vr(buf+4,4)}, v{vWL} offset:{base+1024}')
        L(f, 2); where[f] = buf
    def mm(acc, A, f):
        if LOC[f][0] == 'l':
            waitfor(f); smf(a, acc, A, ('v', where[f]))
        else: smf(a, acc, A, LOC[f])
    def hs(X): return f'v_add_f32 v{X}, v{X}, v{X+2}\nv_add_f32 v{X+1}, v{X+1}, v{X+3}'
    def h1(X, r): return f'v_add_f32 v{X+r}, v{X+r}, v{X+r+2}'
    def z4(X): return f'v_mov_b64 {vr(X,2)}, 0\nv_mov_b64 {vr(X+2,2)}, 0'
    def prep():
        for f, b in ((('qk',0,0), WIN[0]), (('qk',0,1), WIN[1]), (('qk',0,2), AFW[0])): wl(f, b)
        a(f's_add_u32 s{sMW2}, s{sMEMw}, s{sOWN}\nv_lshrrev_b32 v{vTMP}, 2, v{vL16}\nv_add_u32 v{vTMP}, s{sL4}, v{vTMP}')
        a(f'v_add_u32 v{AFW[2]}, s{sOWN}, v{vL16}')
        for p in range(3): a(f'v_add_u32 v{T+p}, s{sOWN+1+p}, v{vL16}')
        a('s_waitcnt lgkmcnt(0)'); lds.clear()
    prep()
    a.label('L_loop'+sfx)
    if int(env.get('STEPT', '0')) and RED:
        a(f"""s_memtime s[96:97]
        s_memrealtime s[98:99]
        s_waitcnt lgkmcnt(0)
        s_lshl_b32 s{sT1}, s{sS}, 3
        s_lshl_b32 s{sT2}, s{sR}, 10
        s_add_u32 s{sT1}, s{sT1}, s{sT2}
        s_add_u32 s{sT1}, s{sT1}, {201*MiB}
        v_mov_b32 v{ACC}, s96
        v_mov_b32 v{ACC+1}, s98
        v_mov_b32 v{ACC+2}, 0
        s_mov_b64 exec, 1
        buffer_store_dwordx2 {vr(ACC,2)}, v{ACC+2}, {W}, s{sT1} offen
        s_mov_b64 exec, -1""")
    stamp(a, 'top')
    OWNA, CK = AFW[2], AFW[2]+1
    def pm_loads():
        a(f""" buffer_load_dwordx4 {vr(A01,4)}, v{vL16}, {W}, s{sMW2} offen sc1
        buffer_load_dwordx4 {vr(A01+4,4)}, v{vL16}, {W}, s{sMW2} offen offset:1024 sc1
        buffer_load_dword v{T+3}, v{vTMP}, {W}, s{sMEMw} offen sc1""")
    early = int(env.get('EARLY', '1'))
    if early: pm_loads()
    a(f""" s_mov_b32 s{sMEMp}, s{sMEMr}
    s_mov_b32 s{sMEMr}, s{sMEMw}
    s_and_b32 s{sEP}, s{sS}, 1""")
    for f, b in ((('qk',0,0), WIN[0]), (('qk',0,1), WIN[1]), (('qk',0,2), AFW[0])): where[f] = b
    for i in range(0, 24, 2): a(f'v_mov_b64 {vr(ACC+i,2)}, 0')
    if not early: pm_loads()
    a.label('L_pm_chk'+sfx)
    a(f""" s_waitcnt vmcnt(0)
    ds_write_b128 v{OWNA}, {vr(A01,4)}
    v_max3_u32 v{CK}, v{A01}, v{A01+1}, v{A01+2}
    v_max3_u32 v{CK+1}, v{A01+3}, v{A01+4}, v{A01+5}
    ds_write_b128 v{OWNA}, {vr(A01+4,4)} offset:1024
    v_max3_u32 v{CK}, v{CK}, v{A01+6}, v{A01+7}
    v_max3_u32 v{CK}, v{CK}, v{CK+1}, v{T+3}
    ds_write_b32 v{vTMP}, v{T+3}
    v_cmp_eq_u32 vcc, -1, v{CK}
    s_cbranch_vccnz L_pm{sfx}""")
    a.label('L_pm_done'+sfx)
    a('s_mov_b64 exec, -1')
    stamp(a, 'mem ok')
    L('mw', 3)
    Q0, Q1, K0, K1 = ACC, ACC+4, ACC+8, ACC+12
    AC = [Q0, Q1, K0, K1]
    mm(Q0, A01, ('qk',0,0)); wl(('qk',1,3), WIN[0])
    mm(Q1, A01, ('qk',0,1)); wl(('qk',2,3), WIN[1])
    mm(K0, A01, ('qk',0,2)); mm(K1, A01, ('qk',0,3))
    waitfor('mw')
    a('s_barrier')
    stamp(a, 'post B1')
    afb = {}
    def afread(slot, buf, tmp=None):
        if slot == 8: a(f'ds_read_b128 {vr(buf,4)}, v{vL16} offset:8192')
        else: a(f'ds_read_b128 {vr(buf,4)}, v{T-1+(slot>>1) if tmp is None else tmp} offset:{(slot&1)*1024}')
        L(('af', slot)); afb[slot] = buf
    for i in range(3): afread(2+i, AFW[i])
    for t in range(3): mm(AC[t], A01+4, ('qk',1,t))
    mm(ACV, A01, ('v',0,0)); mm(ACV+4, A01, ('v',0,1))
    mm(ACV, A01+4, ('v',1,0)); mm(ACV+4, A01+4, ('v',1,1))
    mm(K1, A01+4, ('qk',1,3)); wl(('qk',3,3), WIN[0])
    KX = A01
    PZ = PUB
    fill = [f'buffer_load_dwordx4 {vr(KX,4)}, v{vL16}, {W}, s{sKX} offen', f's_add_u32 s{sT1}, s{sS}, 1',
            f'buffer_load_dwordx4 {vr(KX+4,4)}, v{vL16}, {W}, s{sKX} offen offset:1024', f's_and_b32 s{sT1}, s{sT1}, 3', f's_mul_i32 s{sMEMw}, s{sT1}, {PSZ}']
    if RED: fill += [f'v_mov_b64 {vr(PZ,2)}, -1', f'buffer_store_dwordx2 {vr(PZ,2)}, v{vMST}, {W}, s{sMEMp} offen {SC}']
    fill += [f's_add_u32 s{sMEMw}, s{sMEMw}, {WS_MEM}', f's_add_u32 s{sKX}, s{sKX}, {1<<19}']
    nvm_after_k = 1 if RED else 0
    for slot in range(2, 6):
        waitfor(('af', slot))
        for t in range(4):
            mm(AC[t], afb[slot], ('qk', slot, t))
            if t < 3 and fill: a(fill.pop(0))
        wl(('qk', slot+2, 3), WIN[(slot+1) % 2])
        afread(slot+3, afb[slot])
    assert not fill
    stamp(a, 's5 done')
    BQ0, BQ1 = WIN[0], WIN[0]+4
    VW = WIN[1]
    waitfor(('af', 6))
    mm(Q0, afb[6], ('qk',6,0)); mm(Q1, afb[6], ('qk',6,1)); mm(K1, afb[6], ('qk',6,3)); wl(('qk',8,3), WIN[1])
    waitfor(('af', 7))
    mm(Q0, afb[7], ('qk',7,0)); mm(Q1, afb[7], ('qk',7,1)); mm(K1, afb[7], ('qk',7,3))
    waitfor(('af', 8))
    mm(Q0, afb[8], ('qk',8,0)); a(f'v_mov_b64 {vr(BQ0,2)}, 0')
    mm(Q1, afb[8], ('qk',8,1)); a(f'v_mov_b64 {vr(BQ0+2,2)}, 0')
    mm(K0, afb[6], ('qk',6,2)); a(f'v_mov_b64 {vr(BQ1,2)}, 0')
    mm(K0, afb[7], ('qk',7,2)); a(f'v_mov_b64 {vr(BQ1+2,2)}, 0')
    mm(K0, afb[8], ('qk',8,2)); a(h1(Q0,0))
    mm(K1, afb[8], ('qk',8,3)); wl(('v',6,1), VW); a(h1(Q0,1))
    stamp(a, 'k done')
    vops = [(7,0),(7,1),(6,0),(8,0),(6,1),(2,0),(2,1),(8,1),(3,0),(4,0),(4,1),(3,1),(5,0),(5,1)]
    after = {1: ('af', 2, 7), 4: ('af', 3, 6), 6: ('af', 4, 7), 7: ('af', 5, 8)}
    nextl = {(6,1): (8,1), (8,1): (3,1), (3,1): (5,1)}
    bufs = dict(afb)
    st = {'i': 0}
    def vstep():
        i = st['i']
        if i >= len(vops): return
        slot, t = vops[i]
        waitfor(('af', slot))
        mm(ACV+4*t, afb[slot], ('v', slot, t))
        if (slot, t) in nextl: wl(('v',)+nextl[(slot, t)], VW)
        if i in after:
            _, sl, src = after[i]
            if sl % 2 == 0: a(f'v_add_u32 v{vTMP}, s{sOWN+(sl>>1)}, v{vL16}')
            afread(sl, bufs[src], vTMP)
        st['i'] += 1
    AK0, AK1 = K0, K1
    S0, S1 = Q0, Q1
    VX = A01
    a(f""" {hs(Q1)}
    v_cvt_pk_bf16_f32 v{Q0+2}, v{Q0}, v{Q1}
    v_cvt_pk_bf16_f32 v{Q0+3}, v{Q0+1}, v{Q1+1}
    ds_write2_b32 v{vQKW}, v{Q0+2}, v{Q0+3} offset0:0 offset1:16
    {hs(K0)}
    {hs(K1)}
    v_cvt_pk_bf16_f32 v{PUB}, v{K0}, v{K1}
    v_cvt_pk_bf16_f32 v{PUB+1}, v{K0+1}, v{K1+1}
    ds_write2_b32 v{vQKW}, v{PUB}, v{PUB+1} offset0:128 offset1:144
    s_mov_b64 exec, s[{sHF0}:{sHF0+1}]
    ds_read_b128 {vr(BQ0,4)}, v{vBQ}
    s_mov_b64 exec, s[{sHF1}:{sHF1+1}]
    ds_read_b128 {vr(BQ1,4)}, v{vBQ}
    s_mov_b64 exec, -1
    ds_read_b128 {vr(AK0,4)}, v{vAKM}
    ds_read_b128 {vr(AK1,4)}, v{vAKM} offset:64"""); L('qw'); L('kw'); L('bq0'); L('bq1'); L('ak0'); L('ak1')
    vstep()
    a(f'v_add_u32 v{T}, s{sXW}, v{vL16}')
    if int(env.get('VA', '1')): vstep()
    a(f'v_add_u32 v{T+1}, s{sX5}, v{vL16}')
    a(f's_waitcnt vmcnt({nvm_after_k})')
    waitfor('bq0')
    a(f'v_mfma_f32_16x16x32_bf16 {vr(S0,4)}, {vr(KX,4)}, {vr(BQ0,4)}, 0')
    waitfor('ak0')
    a(f'v_mfma_f32_16x16x32_bf16 {vr(S1,4)}, {vr(AK0,4)}, {vr(BQ0,4)}, 0')
    waitfor('ak1')
    stamp(a, 'ak ok')
    a(f""" v_mfma_f32_16x16x32_bf16 {vr(S1,4)}, {vr(AK1,4)}, {vr(BQ1,4)}, {vr(S1,4)}
    v_mfma_f32_16x16x32_bf16 {vr(S0,4)}, {vr(KX+4,4)}, {vr(BQ1,4)}, {vr(S0,4)}""")
    VL = int(env.get('VL', '1')); PB = int(env.get('PB', '1'))
    v1 = f'buffer_load_dwordx4 {vr(VX,4)}, v{vL16}, {W}, s{sVX} offen'
    v2 = f'buffer_load_dwordx4 {vr(VX+4,4)}, v{vL16}, {W}, s{sVX} offen offset:1024'
    pb = f'buffer_store_dwordx4 {vr(PUB,4)}, v{vL16}, {W}, s{sPUB} offen sc1'
    if VL: a(v1)
    vstep()
    a(f'ds_write_b32 v{T+1}, v{S1}'); L('sx')
    if VL: a(v2)
    vstep()
    a(f'ds_write_b128 v{T}, {vr(S0,4)}'); L('sx')
    if not VL: a(v1)
    vstep()
    if not VL: a(v2)
    if PB == 1: a(pb)
    if not int(env.get('VA', '1')): vstep()
    waitfor('sx')
    stamp(a, 'pre B2')
    a('s_barrier')
    stamp(a, 'post B2')
    R = ACC
    S5 = BQ0
    O0 = BQ1; O1 = T
    for w in range(4):
        a(f'ds_read_b128 {vr(R+4*w,4)}, v{vL16} offset:{L_XW+w*1024}')
    a(f'ds_read_b128 {vr(S5,4)}, v{vL16} offset:{L_SX5}'); L('sr', 5)
    if not PB: a(pb)
    vstep(); a(f'v_mov_b64 {vr(O0,2)}, 0')
    TC = int(env.get('TC', '0'))
    if not TC:
        a(f'v_lshlrev_b32 v{PUB+1}, 2, v{vL16}\nbuffer_load_dword v{PUB}, v{PUB+1}, {W}, s{sTK} offen\ns_add_u32 s{sTK}, s{sTK}, {1<<19}')
    vstep(); a(f'v_mov_b64 {vr(O0+2,2)}, 0')
    vstep(); a(f'v_mov_b64 {vr(O1,2)}, 0')
    if not RED:
        a(f"""v_mov_b32 v{O1+2}, s{sS}
        buffer_store_dword v{O1+2}, off, s[{sDBG}:{sDBG+3}], s{sXM} sc1""")
    vstep(); a(f'v_mov_b64 {vr(O1+2,2)}, 0\ns_add_u32 s{sVX}, s{sVX}, {1<<19}' + ('' if PB == 2 else f'\ns_add_u32 s{sPUB}, s{sPUB}, {1<<17}'))
    waitfor('sr')
    stamp(a, 'sr ok')
    Mx, M2 = R+4, R+5
    PA = R+8; ONES = R+12
    for r in range(0, 4, 2):
        a(f'v_pk_add_f32 {vr(R+r,2)}, {vr(R+r,2)}, {vr(R+4+r,2)}\nv_pk_add_f32 {vr(R+8+r,2)}, {vr(R+8+r,2)}, {vr(R+12+r,2)}')
    a(f'v_pk_add_f32 {vr(S5,2)}, {vr(S5,2)}, {vr(S5+2,2)}')
    for r in range(0, 4, 2):
        a(f'v_pk_add_f32 {vr(R+r,2)}, {vr(R+r,2)}, {vr(R+8+r,2)}')
    a(f""" v_add_f32 v{S5}, v{S5}, v{S5+1}
    v_max3_f32 v{Mx}, v{R}, v{R+1}, v{R+2}
    v_max3_f32 v{Mx}, v{Mx}, v{R+3}, v{S5}""")
    vstep()
    a(f""" v_mov_b64 {vr(ONES,2)}, s[{sONE}:{sONE+1}]
    v_max_f32_dpp v{Mx}, v{Mx}, v{Mx} quad_perm:[2,3,0,1] row_mask:0xf bank_mask:0xf
    v_mov_b32 v{M2}, v{Mx}""")
    vstep()
    a(f""" v_mov_b64 {vr(ONES+2,2)}, s[{sONE}:{sONE+1}]
    v_permlane16_swap_b32 v{M2}, v{Mx}
    v_max_f32 v{Mx}, v{Mx}, v{M2}
    v_mov_b32 v{M2}, v{Mx}""")
    vstep()
    a(f""" v_mov_b32 v{PA+3}, 0
    v_permlane32_swap_b32 v{M2}, v{Mx}
    v_max_f32 v{Mx}, v{Mx}, v{M2}""")
    vstep()
    a(f'v_mul_f32 v{Mx}, s{sC}, v{Mx}')
    for x in (R, R+1, R+2, R+3, S5):
        a(f'v_fma_f32 v{x}, v{x}, s{sC}, -v{Mx}')
    vstep()
    assert st['i'] == len(vops), st
    stamp(a, 'v issued')
    wl(('o8',1), VW)
    for i, x in enumerate((R, R+1, R+2, R+3, S5)):
        a(f'v_exp_f32 v{x}, v{x}')
    V0, V1 = ACV, ACV+4
    LS = AFW[2]
    a(f""" v_cvt_pk_bf16_f32 v{PA}, v{R}, v{R+1}
    v_cvt_pk_bf16_f32 v{PA+1}, v{R+2}, v{R+3}
    v_cvt_pk_bf16_f32 v{PA+2}, v{S5}, v{PA+3}
    s_waitcnt vmcnt({(0 if RED else 1) + (PB != 2) + (not TC)})""")
    stamp(a, 'P ready')
    accs = {'t8': S5, 0: O0, 1: O1, 2: LS, 3: AFW[0]}
    a(f""" v_smfmac_f32_16x16x32_bf16 {vr(O0,4)}, {vr(PA,2)}, {vr(VX,4)}, v{vIDX}
    {hs(V0)}
    v_smfmac_f32_16x16x32_bf16 {vr(O1,4)}, {vr(PA,2)}, {vr(VX+4,4)}, v{vIDX}
    {hs(V1)}
    v_mfma_f32_16x16x32_bf16 {vr(LS,4)}, {vr(PA,4)}, {vr(ONES,4)}, 0
    v_cvt_pk_bf16_f32 v{V0}, v{V0}, v{V0+1}
    v_cvt_pk_bf16_f32 v{V0+1}, v{V1}, v{V1+1}
    v_cvt_pk_bf16_f32 v{V0+2}, v{V1}, v{V1+1}
    v_mov_b32 v{V0+3}, 0
    v_mov_b32 v{V1}, 0""")
    wl(('o',0,1), AFW[0])
    a(f'v_smfmac_f32_16x16x32_bf16 {vr(O0,4)}, {vr(PA+2,2)}, {vr(V0,4)}, v{vIDX} abid:2')
    wl(('o',0,3), A01)
    a(f""" {h1(LS,0)}
    v_smfmac_f32_16x16x32_bf16 {vr(O1,4)}, {vr(PA+2,2)}, {vr(V0+2,4)}, v{vIDX} abid:2
    {h1(LS,1)}
    v_rcp_f32 v{LS}, v{LS}
    v_rcp_f32 v{LS+1}, v{LS+1}
    v_mov_b64 {vr(PUB+2,2)}, {vr(V0,2)}
    s_cmp_eq_u32 s{sS}, {NSTEPS-1}
    s_cbranch_scc1 L_exit{sfx}
    {z4(accs['t8'])}
    {hs(O0)}
    {hs(O1)}
    v_pk_mul_f32 {vr(O0,2)}, {vr(O0,2)}, {vr(LS,2)}
    v_pk_mul_f32 {vr(O1,2)}, {vr(O1,2)}, {vr(LS,2)}
    v_cvt_pk_bf16_f32 v{LS+2}, v{O0}, v{O1}
    v_cvt_pk_bf16_f32 v{LS+3}, v{O0+1}, v{O1+1}
    ds_write2_b32 v{vOW}, v{LS+2}, v{LS+3} offset0:0 offset1:4
    v_and_b32 v{vTMP}, 32, v{vL16}
    v_lshl_add_u32 v{vTMP}, v{vTMP}, 5, v{vOA}
    {z4(accs[0])}
    {z4(accs[1])}
    s_waitcnt lgkmcnt(0)"""); lds.clear()
    stamp(a, 'pre B3')
    a('s_barrier')
    stamp(a, 'post B3')
    OA = [R, R+4, R+8, R+12]; OX = [ACV, ACV+4]
    for i in range(4):
        a(f'ds_read_b128 {vr(OA[i],4)}, v{vOA} offset:{i*512}'); L(('oa', i))
    for i in range(2):
        a(f'ds_read_b128 {vr(OX[i],4)}, v{vTMP} offset:{i*512}'); L(('oa', 'x%d' % i))
    if PB == 2: a(pb + f'\ns_add_u32 s{sPUB}, s{sPUB}, {1<<17}')
    a(z4(accs[2]))
    if TC:
        a(f'v_lshlrev_b32 v{PUB+1}, 2, v{vL16}\nbuffer_load_dword v{PUB}, v{PUB+1}, {W}, s{sTK} offen\ns_add_u32 s{sTK}, s{sTK}, {1<<19}')
    X8 = accs['t8']
    EV = f's[{sEV}:{sEV+1}]'
    def tag(r): return f'v_and_or_b32 v{r}, v{r}, -2, s{sEP}'
    post = {}
    post['t8'] = [h1(X8,0), h1(X8,1), f'v_cndmask_b32 v{X8+2}, v{X8}, v{X8+1}, {EV}',
        f'v_mov_b32_dpp v{X8+3}, v{X8+2} quad_perm:[1,0,3,2] row_mask:0xf bank_mask:0xf',
        f'v_cndmask_b32 v{X8}, v{X8+3}, v{X8}, {EV}', f'v_cndmask_b32 v{X8+1}, v{X8+1}, v{X8+3}, {EV}',
        f'v_cvt_pk_bf16_f32 v{X8}, v{X8}, v{X8+1}', tag(X8),
        f'buffer_store_dword v{X8}, v{vPS9}, {W}, s{sPW} offen {SC}']
    for c in range(4):
        A = accs[c]; Dd = accs[c & 2]
        if c & 1 == 0:
            post[c] = [f'v_cvt_pk_bf16_f32 v{A}, v{A}, v{A+2}', f'v_cvt_pk_bf16_f32 v{A+2}, v{A+1}, v{A+3}', tag(A), tag(A+2)]
        else:
            post[c] = [f'v_cvt_pk_bf16_f32 v{Dd+1}, v{A}, v{A+2}', f'v_cvt_pk_bf16_f32 v{Dd+3}, v{A+1}, v{A+3}',
                       f'buffer_store_dwordx4 {vr(Dd,4)}, v{vL16}, {W}, s{sPW} offen offset:{(c>>1)*1024} {SC}']
    ops = [(0,0,('o',0,0)),(1,0,('o',1,0)),(0,1,('o',0,1)),(1,1,('o',1,1)),(0,2,('o',0,2)),(0,3,('o',0,3)),(1,2,('o',1,2)),(1,3,('o',1,3))] + [('t8', 'x0', ('o8',0)), ('t8', 'x1', ('o8',1))] + [(c, r, ('o',c,r)) for c in (2,3) for r in range(4)]
    q = []
    def pop(k):
        while q and k > 0:
            x = q.pop(0); a(x)
            if not x.startswith('buffer'): k -= 1
    pend = []
    for n, (acc, af, f) in enumerate(ops):
        waitfor(('oa', af))
        if n == 0: stamp(a, 'OA ok')
        mm(accs[acc], OX[int(af[1])] if isinstance(af, str) else OA[af], f)
        if n == 3: q.append(f'v_mov_b64 {vr(accs[3],2)}, 0')
        if n == 4: q.append(f'v_mov_b64 {vr(accs[3]+2,2)}, 0')
        for (acc2, n2) in list(pend):
            if n - n2 >= 3: q += post[acc2]; pend.remove((acc2, n2))
        if all(o[0] != acc for o in ops[n+1:]): pend.append((acc, n))
        pop(1 if len(q) < 5 else 2)
        if env.get('FINE') and n in (1, 3, 5, 7, 9, 11, 13, 15, 17): stamp(a, f'wo{n}')
    for (acc2, n2) in pend: q += post[acc2]
    pop(100)
    stamp(a, 'Wo done')
    prep()
    tail = []
    if RED:
        A1, B0, D, TT = 16, 52, 72, 20
        a(f""" v_mov_b32 v{A1+2}, 0x3f80
        v_mov_b32 v{A1+3}, 0x3f800000
        v_cndmask_b32 v{A1+2}, v{A1+3}, v{A1+2}, {EV}
        v_cndmask_b32 v{A1}, 0, v{A1+2}, s[{sS0M}:{sS0M+1}]
        v_cndmask_b32 v{A1+1}, 0, v{A1+2}, s[{sS1M}:{sS1M+1}]
        v_mov_b64 {vr(A1+2,2)}, {vr(A1,2)}
        {z4(D)}
        v_mov_b64 {vr(TT,2)}, 0""")
        if PROBE: a('s_waitcnt vmcnt(3)'); stamp(a, 'pub ack')
        if int(env.get('EW', '1')):
            a(f's_waitcnt vmcnt(2)\ns_cmp_eq_u32 s{sW}, 0\ns_cbranch_scc1 L_ew{sfx}\ns_waitcnt vmcnt(0)')
            a.label(f'L_ew{sfx}')
        elif env.get('FIXD'): a(f's_sleep {env["FIXD"]}')
        else: a(f's_waitcnt vmcnt({env.get("WAITN","0")})')
        for _ in range(int(env.get('DELAY1', '0'))): a('s_nop 7')
        stamp(a, 'pp issue')
        NL = 4 if RED == 1 else 1
        ld = [f'buffer_load_dwordx4 {vr(B0+4*i,4)}, v{vRED}, {W}, s{sPR+i} offen sc1' for i in range(NL)]
        for x in ld: a(x)
        a.label(f'L_pp_wait{sfx}')
        def bt(i): return f'v_bitop3_b32 v{TT}, v{TT}, v{B0+i}, s{sEP} bitop3:0xf6'
        chk = list(range(0, 16, 2)) if RED == 1 else list(range(4))
        def red_mm():
            if RED == 1: smf(a, D, A1, ('v', B0)); smf(a, D, A1, ('v', B0+8))
            else: a(f'v_smfmac_f32_16x16x32_bf16 {vr(D,4)}, {vr(A1,2)}, {vr(B0,4)}, v{vIDX}')
        if RED == 1:
            a('s_waitcnt vmcnt(2)')
            smf(a, D, A1, ('v', B0))
            for i in chk[:4]: a(bt(i))
            a('s_waitcnt vmcnt(1)')
            for i in chk[4:6]: a(bt(i))
            a('s_waitcnt vmcnt(0)')
            smf(a, D, A1, ('v', B0+8))
            for i in chk[6:]: a(bt(i))
        else:
            a('s_waitcnt vmcnt(0)'); red_mm()
            for i in chk: a(bt(i))
        fin = f""" v_and_b32 v{TT}, 1, v{TT}
        v_cmp_ne_u32 vcc, 0, v{TT}"""
        a(fin); a(f's_cbranch_vccnz L_pp_retry{sfx}')
        a.label(f'L_pp_done{sfx}')
        stamp(a, 'part ok')
        for sh in ((8,) if RED == 1 else (2, 4, 8)):
            for i in range(4):
                a(f'v_add_f32_dpp v{D+i}, v{D+i}, v{D+i} row_ror:{sh} row_mask:0xf bank_mask:0xf')
        a(f""" v_cvt_pk_bf16_f32 v{D}, v{D}, v{D+1}
        v_cvt_pk_bf16_f32 v{D+1}, v{D+2}, v{D+3}
        buffer_store_dwordx2 {vr(D,2)}, v{vMST}, {W}, s{sMEMw} offen {SC}""")
    else:
        a(f's_add_u32 s{sT0}, s{sS}, 3\ns_cmp_ge_u32 s{sT0}, s{sRDY}\ns_cbranch_scc1 L_rdy{sfx}')
        a.label('L_rdy_done'+sfx)
        stamp(a, 'x'); stamp(a, 'x'); stamp(a, 'part ok')
    ZE = int(env.get('ZE', '0'))
    if ZE:
        for i in range(0, 20, 2): a(f'v_mov_b64 {vr(ACC+i,2)}, 0')
    if int(env.get('ACKW', '1')) and RED: a('s_waitcnt vmcnt(0)')
    if int(env.get('B4', '1')): a('s_barrier')
    if int(env.get('DELAY2', '0')): a(f's_sleep {env["DELAY2"]}')
    stamp(a, 'end')
    stamp_dump(a, sfx)
    a(f"""s_add_u32 s{sS}, s{sS}, 1
    s_cmp_lt_u32 s{sS}, {NSTEPS}
    s_cbranch_scc1 L_loop{sfx}
    s_branch L_exit{sfx}""")
    a.label('L_pm'+sfx)
    a('s_mov_b64 exec, vcc')
    pm_loads()
    a(f""" s_add_u32 s{sSPIN}, s{sSPIN}, 1
    s_cmp_gt_u32 s{sSPIN}, {SPINMAX}
    s_cbranch_scc1 L_pm_done{sfx}
    s_branch L_pm_chk{sfx}""")
    if RED:
        a.label(f'L_pp_retry{sfx}')
        a('s_mov_b64 exec, vcc')
        for x in ld: a(x)
        a(f""" s_mov_b64 exec, -1
        s_add_u32 s{sSPIN}, s{sSPIN}, 1
        s_cmp_gt_u32 s{sSPIN}, {SPINMAX}
        s_cbranch_scc1 L_pp_done{sfx}
        s_nop 3
        v_mov_b32 v{TT}, 0
        {z4(D)}
        s_branch L_pp_wait{sfx}""")
    if not RED: rdy(a, sfx, g)
    a.label('L_exit'+sfx)
```

```python
import sys, os
from asmdsl import *
import worker as Wk, xs, chain11, gen_w
a = Asm()
gen_w.prologue(a)
gen_w.roles(a)
a('s_cmp_lg_u32 s3, 0\ns_cbranch_scc1 L_worker')
chain11.chain(a)
a.label('L_worker')
if os.environ.get('NOWORK'): a('s_branch L_end')
gen_w.worker_entry(a)
Wk.worker_gemm(a)
mark(a, 4, Wk.sDBG)
if os.environ.get('NOXS'): a('s_branch L_end')
xs.xs_pass(a, '')
mark(a, 6, Wk.sDBG)
gen_w.epilogue(a)
open(sys.argv[1], 'w').write(a.text())
```

```python
import sys
from asmdsl import *
import worker as Wk
NAME = 'gated_mix__memory_aug_recurrent_mem_tr__linear_attn_block__prompt'
def prologue(a):
    a.raw('; @launch grid=(256,1,1) block=(256,1,1) lds=163840')
    a.raw('.amdgcn_target "amdgcn-amd-amdhsa--gfx950"\n.text\n.globl %s_kernel\n.p2align 8\n.type %s_kernel,@function' % (NAME, NAME))
    a.label(NAME + '_kernel')
    a('s_cmp_ge_u32 s2, 256\ns_cbranch_scc1 L_end')
    a('''s_load_dwordx16 s[64:79], s[0:1], 0
    s_load_dwordx8 s[80:87], s[0:1], 64
    s_load_dwordx4 s[88:91], s[0:1], 96
    s_getreg_b32 s3, hwreg(HW_REG_XCC_ID)
    s_and_b32 s3, s3, 7
    v_lshrrev_b32 v1, 6, v0
    v_and_b32 v0, 63, v0
    s_waitcnt lgkmcnt(0)''')
def epilogue(a):
    a.label('L_end')
    a('s_endpgm')
    a.raw(f'''.section .rodata,"a"
.p2align 6
.amdhsa_kernel {NAME}_kernel
  .amdhsa_next_free_vgpr 512
  .amdhsa_next_free_sgpr 102
  .amdhsa_accum_offset 256
  .amdhsa_group_segment_fixed_size 0
  .amdhsa_kernarg_size 112
  .amdhsa_user_sgpr_count 2
  .amdhsa_user_sgpr_kernarg_segment_ptr 1
  .amdhsa_system_sgpr_workgroup_id_x 1
.end_amdhsa_kernel''')
def roles(a):
    import os
    W = Wk
    fx = os.environ.get('FX')
    if fx == 'wg': a('s_lshr_b32 s3, s2, 5')
    if fx == 'uneven': a('s_min_u32 s3, s3, 5')
    if fx == 'uneven2': a('s_max_u32 s3, s3, 2')
    W.srd(a, 4, W.ptr(12), 256)
    a(f'''v_readfirstlane_b32 s93, v1
    s_lshl_b32 s94, s3, 2
    s_add_u32 s94, s94, {W.D_TK*4}
    s_cmp_eq_u32 s3, 0
    s_cselect_b32 s94, 0, s94
    v_mov_b32 v11, 1
    v_mov_b32 v12, 0
    s_cmp_lg_u32 s93, 0
    s_cbranch_scc1 L_wtk
    s_mov_b64 exec, 1
    buffer_atomic_add v11, off, s[4:7], s94 sc0
    s_waitcnt vmcnt(0)
    ds_write_b32 v12, v11
    s_waitcnt lgkmcnt(0)
    s_mov_b64 exec, -1''')
    a.label('L_wtk')
    if int(os.environ.get('CPF', '1')):
        a(f'''s_cmp_eq_u32 s93, 0
        s_cbranch_scc1 L_cpf
        s_getpc_b64 s[8:9]
        s_lshr_b32 s10, s2, 3
        s_and_b32 s10, s10, 3
        s_mul_i32 s10, s10, 3
        s_add_u32 s10, s10, s93
        s_sub_u32 s10, s10, 1
        s_lshl_b32 s10, s10, 13
        s_min_u32 s10, s10, CODE_SPAN
        s_add_u32 s8, s8, s10
        s_addc_u32 s9, s9, 0
        v_lshlrev_b32 v14, 7, v0
        v_mov_b32 v15, s9
        v_add_co_u32 v14, vcc, s8, v14
        v_addc_co_u32 v15, vcc, 0, v15, vcc
        global_load_dword v255, v[14:15], off''')
        a.label('L_cpf')
    a(f'''s_barrier
    ds_read_b32 v11, v12
    s_waitcnt lgkmcnt(0)
    v_readfirstlane_b32 s92, v11
    s_nop 3
    s_barrier
    s_cmp_lt_u32 s92, 32
    s_cbranch_scc1 L_role_ok
    v_lshlrev_b32 v10, 2, v0
    v_add_u32 v10, {W.D_TK*4}, v10
    v_cmp_eq_u32 vcc, 0, v0
    v_cndmask_b32 v10, v10, v12, vcc
    s_mov_b32 s95, 0''')
    a.label('L_ovf')
    a('buffer_load_dword v11, v10, s[4:7], 0 offen sc1\ns_waitcnt vmcnt(0)\ns_mov_b32 s94, 0')
    for x in range(8): a(f'v_readlane_b32 s{8+x}, v11, {x}')
    for x in range(8): a(f's_add_u32 s94, s94, s{8+x}')
    a('''s_add_u32 s95, s95, 1
    s_cmp_gt_u32 s95, 300000
    s_cbranch_scc1 L_end
    s_sleep 8
    s_cmp_lt_u32 s94, 256
    s_cbranch_scc1 L_ovf
    s_sub_u32 s92, s92, 32''')
    for x in range(7):
        a(f'''s_max_u32 s94, s{8+x}, 32
        s_sub_u32 s94, s94, 32
        s_cmp_gt_u32 s3, {x}
        s_cselect_b32 s94, s94, 0
        s_add_u32 s92, s92, s94''')
    for x in range(8):
        a(f'''s_min_u32 s94, s{8+x}, 32
        s_sub_u32 s95, 32, s94
        s_mov_b32 s3, {x}
        s_cmp_lt_u32 s92, s95
        s_cbranch_scc1 L_vac
        s_sub_u32 s92, s92, s95''')
    a('s_branch L_end')
    a.label('L_vac')
    a('s_add_u32 s92, s92, s94')
    a.label('L_role_ok')
def worker_entry(a):
    W = Wk
    W.srd(a, W.sDBG, W.ptr(12), 256); W.srd(a, W.sWS, W.ptr(13), 256<<20)
    a(f'''s_mov_b32 s{W.sW}, s93
    s_sub_u32 s{W.sTEAM}, s3, 1
    s_lshl_b32 s{W.sI}, s{W.sTEAM}, 5
    s_add_u32 s{W.sI}, s{W.sI}, s92''')
if __name__ == '__main__':
    a = Asm()
    prologue(a)
    roles(a)
    a('s_cmp_eq_u32 s3, 0\ns_cbranch_scc1 L_end')
    a('s_memrealtime s[94:95]')
    worker_entry(a)
    Wk.worker_gemm(a)
    a(f'''s_memrealtime s[96:97]
    s_waitcnt lgkmcnt(0)
    s_sub_u32 s96, s96, s94
    v_mov_b32 v2, 20
    v_mov_b32 v3, s96
    s_mov_b64 exec, 1
    buffer_atomic_umax v3, v2, s[{Wk.sDBG}:{Wk.sDBG+3}], 0 offen
    s_waitcnt vmcnt(0)''')
    epilogue(a)
    open(sys.argv[1], 'w').write(a.text())
```

```python
import sys, os
from asmdsl import *
NSTEPS=int(os.environ.get('NSTEPS','64')); NOPOISON=int(os.environ.get('NOPOISON','0')); PROBE=int(os.environ.get('PROBE','0'))
NAME = 'gated_mix__memory_aug_recurrent_mem_tr__linear_attn_block__prompt'
MiB = 1 << 20
WS_KV, WS_QX, WS_PUB = 0, 32*MiB, 48*MiB
WS_PART, WS_MEM = 58*MiB, 59*MiB
PSZ = 9216
PST = int(os.environ.get('CPST','9344'))
L_MEMS = 0; L_XW = 9216; L_SX5 = 13312; L_OB = 14336; L_W = 16384
OOB = 0x40000000
SC = 'sc1'
SPINMAX = 300000
sWS, sWQ, sWK, sWV, sWO, sM0, sDBG = 8, 12, 16, 20, 24, 28, 32
sH, sW, sS, sT0, sT1, sT2, sT3, sR = 36, 37, 38, 39, 40, 41, 42, 43
sMEMr, sMEMw, sMEMp, sPW, sXW, sX5, sKX, sVX, sPUB, sEP, sMW2, sL4 = 44, 45, 46, 47, 48, 49, 50, 51, 52, 53, 54, 55
sC, sSEL0, sSEL1, sSPIN = 56, 57, 58, 59
sTM = 60
sPR = 64; sOWN = 68
sRHO = 72
sTK, sXM, sRDY = 73, 74, 75
sS0M, sS1M = 100, 2
sEV = 76
sHF0, sHF1, sONE = 4, 6, 78
(vL16, vIDX, vWL, vQKW, vBQ, vAKM, vOW, vPS9, vRED, vMST, vTMP, vOA) = range(12)
PUB = 12
AF = 16; ACC = 52; ACV = 68; T = 76
LDSF = [('qk',0,0),('qk',0,1),('qk',0,2)] + [('qk',sl,3) for sl in range(1,9)] + [('v',6,1),('v',8,1),('v',3,1),('v',5,1)] + [('o8',1),('o',0,1),('o',0,3)]
assert len(LDSF) == 18
ALLF = [('qk',sl,t) for sl in range(9) for t in range(4)] + [('v',sl,t) for sl in range(9) for t in range(2)] + [('o',c,r) for c in range(4) for r in range(4)] + [('o8',0),('o8',1)]
LOC = {}
_res = [f for f in ALLF if f not in LDSF]
assert len(_res) == 54
_wo = [f for f in _res if f[0] == 'o8'] + sorted([f for f in _res if f[0] == 'o'], key=lambda f: (f[2], f[1]))
_ot = [f for f in _res if f[0] in ('qk', 'v')]
for i, f in enumerate(_wo): LOC[f] = ('v', 80 + i*8)
for i, f in enumerate(_ot): LOC[f] = ('a', i*8) if i < 32 else ('v', 200 + (i-32)*8)
assert len(_wo) == 15 and len(_ot) == 39
for i, f in enumerate(LDSF): LOC[f] = ('l', i*2048)
BUFTOP = 80 + 15*8
def rstr(kind, b, n):
    return ar(b, n) if kind == 'a' else vr(b, n)
def srd(a, s, lo, nbytes):
    a(f's_mov_b32 s{s}, s{lo}\ns_mov_b32 s{s+1}, s{lo+1}\ns_mov_b32 s{s+2}, {nbytes}\ns_mov_b32 s{s+3}, 0x00020000')

DBG = int(os.environ.get('DBG', '0'))
TM0 = f's_memtime s[{sTM}:{sTM+1}]' if DBG else 's_nop 0'
TM1 = f's_memtime s[{sTM+2}:{sTM+3}]' if DBG else 's_nop 0'
def chain(a):
    import worker as Wk
    p = Wk.ptr
    srd(a, sM0, p(1), 9216); srd(a, sWQ, p(2), 576*8192); srd(a, sWK, p(3), 576*8192); srd(a, sWV, p(4), 576*8192)
    srd(a, sWO, p(5), 4096*1152); srd(a, sDBG, p(12), 256); srd(a, sWS, p(13), 256*MiB)
    a(f'v_readfirstlane_b32 s{sW}, v1')
    mark(a, 0, sDBG, 20, 21, True)
    a(f''' s_mov_b32 s{sH}, s92
    {TM0}
    s_lshl_b32 s{sR}, s{sH}, 2
    s_add_u32 s{sR}, s{sR}, s{sW}
    s_lshr_b32 s{sRHO}, s{sH}, 3
    s_lshl_b32 s{sRHO}, s{sRHO}, 4
    s_and_b32 s{sT0}, s{sH}, 7
    s_add_u32 s{sRHO}, s{sRHO}, s{sT0}
    s_lshl_b32 s{sT0}, s{sW}, 3
    s_add_u32 s{sRHO}, s{sRHO}, s{sT0}
    s_lshl_b32 s{sT0}, s{sW}, 5
    s_add_u32 s{sT0}, s{sT0}, s{sH}
    s_cmp_ge_u32 s{sW}, 2
    s_cselect_b32 s{sRHO}, s{sT0}, s{sRHO}
    s_mov_b32 s{sSEL0}, 0x05040100
    s_mov_b32 s{sSEL1}, 0x07060302''')
    a(f'v_lshlrev_b32 v{vL16}, 4, v0')
    J, G, LANE, X, Y, RW = 60, 61, 62, 63, 64, 65
    a(f''' v_lshrrev_b32 v{LANE}, 4, v{vL16}
    v_and_b32 v{J}, 15, v{LANE}
    v_lshrrev_b32 v{G}, 4, v{LANE}
    v_and_b32 v{X}, 2, v{LANE}
    v_mov_b32 v{vIDX}, 0x00444444
    v_mov_b32 v{Y}, 0x0049EEEE
    v_cmp_ne_u32 vcc, 0, v{X}
    v_cndmask_b32 v{vIDX}, v{vIDX}, v{Y}, vcc
    s_mov_b64 s[{sHF1}:{sHF1+1}], vcc
    s_not_b64 s[{sHF0}:{sHF0+1}], vcc
    s_mov_b32 s{sONE}, 0x3f803f80
    s_mov_b32 s{sONE+1}, 0x3f803f80
    s_lshl_b32 s{sOWN}, s{sW}, 11
    s_xor_b32 s{sOWN+1}, s{sOWN}, 2048
    s_xor_b32 s{sOWN+2}, s{sOWN}, 4096
    s_xor_b32 s{sOWN+3}, s{sOWN}, 6144
    s_lshl_b32 s{sL4}, s{sW}, 8
    s_add_u32 s{sL4}, s{sL4}, 8192
    s_lshl_b32 s{sXW}, s{sW}, 10
    s_add_u32 s{sXW}, s{sXW}, {L_XW}
    s_lshl_b32 s{sX5}, s{sW}, 2
    s_add_u32 s{sX5}, s{sX5}, {L_SX5}
    v_lshlrev_b32 v{X}, 7, v{G}
    v_lshl_add_u32 v{X}, v{J}, 2, v{X}
    v_add_u32 v{vQKW}, s{sXW}, v{X}
    v_lshrrev_b32 v{X}, 2, v{J}
    v_and_b32 v{Y}, 1, v{J}
    v_lshl_add_u32 v{RW}, v{X}, 1, v{Y}
    v_lshlrev_b32 v{X}, 6, v{RW}
    v_lshl_add_u32 v{X}, v{G}, 4, v{X}
    v_add_u32 v{vBQ}, s{sXW}, v{X}
    v_lshrrev_b32 v{X}, 2, v{J}
    v_lshlrev_b32 v{X}, 7, v{X}
    v_lshl_add_u32 v{X}, v{G}, 4, v{X}
    v_add_u32 v{X}, 512, v{X}
    v_add_u32 v{vAKM}, s{sXW}, v{X}
    v_lshl_add_u32 v{X}, v{G}, 3, v{RW}
    v_lshlrev_b32 v{X}, 4, v{X}
    v_add_u32 v{vOA}, {L_OB}, v{X}
    v_lshrrev_b32 v{X}, 2, v{J}
    v_lshlrev_b32 v{X}, 3, v{X}
    v_lshl_add_u32 v{X}, v{G}, 1, v{X}
    v_lshlrev_b32 v{X}, 4, v{X}
    v_and_b32 v{Y}, 3, v{J}
    v_lshl_add_u32 v{X}, v{Y}, 2, v{X}
    s_lshl_b32 s{sT0}, s{sW}, 9
    s_add_u32 s{sT0}, s{sT0}, {L_OB}
    v_add_u32 v{vOW}, s{sT0}, v{X}
    v_lshrrev_b32 v{X}, 2, v{J}
    v_lshlrev_b32 v{X}, 1, v{X}
    v_lshl_add_u32 v{X}, v{G}, 3, v{X}
    v_and_b32 v{Y}, 1, v{J}
    v_add_u32 v{X}, v{X}, v{Y}
    v_lshlrev_b32 v{X}, 3, v{X}
    v_and_b32 v{Y}, 2, v{J}
    v_lshl_add_u32 v{X}, v{Y}, 1, v{X}
    s_mul_i32 s{sT0}, s{sW}, 1792
    s_sub_u32 s{sT0}, 8192, s{sT0}
    v_add_u32 v{vPS9}, s{sT0}, v{X}
    s_cmp_eq_u32 s{sW}, 2
    s_cselect_b32 s{sT1}, 1, 3
    s_cselect_b32 s{sT2}, 1, 7
    s_lshl_b32 s{sT0}, s{sRHO}, 7
    s_lshl_b32 s80, s{sH}, 5
    s_add_u32 s80, s80, 8192
    s_cmp_eq_u32 s{sW}, 2
    s_cselect_b32 s{sXM}, s80, s{sT0}
    v_lshrrev_b32 v{X}, s{sT1}, v{J}
    v_lshl_add_u32 v{X}, v{X}, 2, v{G}
    v_mul_u32_u24 v{X}, {PST}, v{X}
    v_and_b32 v{Y}, s{sT2}, v{J}
    v_lshl_add_u32 v{Y}, v{Y}, 4, v{X}
    v_add_u32 v{vRED}, s{sXM}, v{Y}
    v_lshrrev_b32 v{Y}, 2, v{J}
    v_cmp_eq_u32 s[{sS0M}:{sS0M+1}], 0, v{Y}
    v_cmp_eq_u32 s[{sS1M}:{sS1M+1}], 1, v{Y}''')
    O, Q, SRC, T1, Q2, R2, H2 = 66, 67, 68, 69, 70, 71, 72
    a(f''' v_and_b32 v{X}, s{sT2}, v{J}
    v_lshlrev_b32 v{X}, 4, v{X}
    v_and_b32 v{Y}, 1, v{G}
    v_lshl_add_u32 v{X}, v{Y}, 3, v{X}
    v_add_u32 v{O}, s{sXM}, v{X}
    v_bfe_u32 v{X}, v{O}, 8, 2
    v_bfe_u32 v{Y}, v{O}, 3, 1
    v_lshl_add_u32 v{RW}, v{X}, 1, v{Y}
    v_lshrrev_b32 v{Q}, 11, v{O}
    v_lshlrev_b32 v{Q}, 4, v{Q}
    v_bfe_u32 v{X}, v{O}, 4, 4
    v_add_u32 v{Q}, v{Q}, v{X}
    v_bfe_u32 v{T1}, v{O}, 10, 1
    v_bfe_u32 v{X}, v{O}, 8, 2
    v_bfe_u32 v{Y}, v{O}, 5, 1
    v_lshl_add_u32 v{Q2}, v{X}, 1, v{Y}
    v_add_u32 v{Q2}, 64, v{Q2}
    v_bfe_u32 v{X}, v{O}, 6, 2
    v_bfe_u32 v{Y}, v{O}, 3, 1
    v_lshl_add_u32 v{R2}, v{X}, 1, v{Y}
    v_bfe_u32 v{H2}, v{O}, 4, 1
    v_cmp_le_u32 vcc, 0x2000, v{O}
    v_cndmask_b32 v{Q}, v{Q}, v{Q2}, vcc
    v_cndmask_b32 v{RW}, v{RW}, v{R2}, vcc
    v_cndmask_b32 v{T1}, v{T1}, v{H2}, vcc
    v_mul_u32_u24 v{SRC}, 1152, v{RW}
    v_lshl_add_u32 v{SRC}, v{Q}, 4, v{SRC}
    v_lshl_add_u32 v{SRC}, v{T1}, 3, v{SRC}
    v_lshrrev_b32 v{X}, 10, v{O}
    v_bfe_u32 v{Y}, v{O}, 5, 3
    v_lshl_add_u32 v{X}, v{X}, 3, v{Y}
    v_bfe_u32 v{Y}, v{O}, 4, 1
    v_cndmask_b32 v{Q}, v{X}, v{Q}, vcc
    v_cndmask_b32 v{T1}, v{Y}, v{T1}, vcc
    v_lshrrev_b32 v{X}, 1, v{RW}
    v_lshlrev_b32 v{X}, 2, v{X}
    v_and_b32 v{Y}, 1, v{Q}
    v_lshl_add_u32 v{X}, v{Y}, 1, v{X}
    v_and_b32 v{Y}, 1, v{RW}
    v_add_u32 v{X}, v{X}, v{Y}
    v_lshlrev_b32 v{X}, 4, v{X}
    v_lshrrev_b32 v{Y}, 1, v{Q}
    v_lshl_add_u32 v{X}, v{Y}, 8, v{X}
    v_lshl_add_u32 v{vMST}, v{T1}, 3, v{X}
    v_cmp_ge_u32 s[80:81], s{sT2}, v{J}
    v_cmp_gt_u32 s[82:83], 2, v{G}
    s_and_b64 vcc, s[80:81], s[82:83]
    s_cmp_lt_u32 s{sW}, 3
    s_cselect_b64 vcc, vcc, 0
    s_cselect_b64 s[80:81], -1, 0
    v_mov_b32 v{X}, {OOB}
    v_cndmask_b32 v{vMST}, v{X}, v{vMST}, vcc
    v_cndmask_b32 v{SRC}, v{X}, v{SRC}, vcc
    v_cndmask_b32 v{vRED}, v{X}, v{vRED}, s[80:81]''')
    a(f''' v_and_b32 v{X}, 1, v{J}
    v_cmp_eq_u32 s[{sEV}:{sEV+1}], 0, v{X}
    s_mov_b32 s{sC}, 0x3e0293ee
    s_mov_b32 s{sPR}, {WS_PART}
    s_cmp_eq_u32 s{sW}, 2
    s_cselect_b32 s{sPR+1}, s{sPR}, {WS_PART+8*PST}
    s_cselect_b32 s{sPR+2}, s{sPR}, {WS_PART+16*PST}
    s_cselect_b32 s{sPR+3}, s{sPR}, {WS_PART+24*PST}
    s_mul_i32 s{sPW}, s{sH}, {PST}
    s_add_u32 s{sPW}, s{sPW}, {WS_PART}
    s_add_u32 s{sPW}, s{sPW}, s{sOWN}
    s_lshl_b32 s{sKX}, s{sH}, 14
    s_add_u32 s{sTK}, s{sKX}, {WS_KV + (2<<19)}
    s_lshl_b32 s{sT0}, s{sW}, 12
    s_add_u32 s{sTK}, s{sTK}, s{sT0}
    s_add_u32 s{sKX}, s{sKX}, s{sOWN}
    s_add_u32 s{sKX}, s{sKX}, {WS_KV}
    s_add_u32 s{sVX}, s{sKX}, 8192
    s_lshl_b32 s{sPUB}, s{sR}, 10
    s_add_u32 s{sPUB}, s{sPUB}, {WS_PUB}''')
    a(f'buffer_load_dwordx2 v[28:29], v{SRC}, s[{sM0}:{sM0+3}], 0 offen\nv_mov_b32 v30, v{vMST}\nv_mov_b32 v31, v{vRED}')
    a('v_mov_b32 v24, -1\nv_mov_b32 v25, -1\nv_mov_b32 v26, -1\nv_mov_b32 v27, -1')
    a(f'v_lshrrev_b32 v0, 4, v{vL16}')
    J, G, LANE, X, Y, Z, VO = 4, 5, 6, 7, 8, 9, 10
    a(f''' v_mov_b32 v{LANE}, v0
    v_and_b32 v{J}, 15, v{LANE}
    v_lshrrev_b32 v{G}, 4, v{LANE}
    v_lshlrev_b32 v{vL16}, 4, v{LANE}
    v_lshrrev_b32 v{X}, 1, v{G}
    v_lshlrev_b32 v{X}, 4, v{X}
    v_and_b32 v{Y}, 1, v{G}
    v_lshlrev_b32 v{Y}, 2, v{Y}
    v_add_u32 v{X}, v{X}, v{Y}
    v_lshlrev_b32 v{VO}, 13, v{X}
    v_lshl_add_u32 v{VO}, v{J}, 2, v{VO}
    v_mul_u32_u24 v{Z}, 1152, v{X}
    s_mul_i32 s{sT0}, s{sW}, 36864
    s_add_u32 s{sT0}, s{sT0}, {L_W}
    v_add_u32 v{vWL}, s{sT0}, v{vL16}''')
    SW, SR, WO4, WO8, SR2, SE, SO = 11, 12, 13, 14, 15, 3, 1
    a(f''' v_lshlrev_b32 v{SR}, 7, v{X}
    v_lshl_add_u32 v{SR}, v{J}, 2, v{SR}
    s_and_b32 s{sT0}, s{sW}, 1
    s_lshl_b32 s{sT0}, s{sT0}, 6
    v_add_u32 v{SR}, s{sT0}, v{SR}
    s_lshl_b32 s{sT0}, s{sW}, 12
    s_and_b32 s{sT1}, s{sT0}, 0x2000
    v_add_u32 v{SE}, s{sT1}, v{SR}
    v_add_u32 v{SO}, 4096, v{SE}
    v_xor_b32 v{SR2}, 4096, v{SR}
    v_add_u32 v{SR}, s{sT0}, v{SR}
    v_xor_b32 v{SR2}, 4096, v{SR}
    v_add_u32 v{SW}, s{sT0}, v{vL16}
    v_lshrrev_b32 v{X}, 3, v{LANE}
    v_lshlrev_b32 v{VO}, 13, v{X}
    v_and_b32 v{Y}, 7, v{LANE}
    v_lshl_add_u32 v{VO}, v{Y}, 4, v{VO}
    v_lshrrev_b32 v{X}, 5, v{LANE}
    v_lshl_add_u32 v{X}, v{X}, 15, v{VO}
    s_lshl_b32 s{sT3}, s{sH}, 8
    s_lshr_b32 s{sT0}, s{sW}, 1
    s_lshl_b32 s{sT0}, s{sT0}, 7
    s_add_u32 s{sT3}, s{sT3}, s{sT0}
    v_mul_u32_u24 v{Z}, {4*1152}, v{G}
    v_lshl_add_u32 v{WO4}, v{J}, 4, v{Z}
    s_lshl_b32 s{sT0}, s{sW}, 8
    v_add_u32 v{WO4}, s{sT0}, v{WO4}
    v_lshl_add_u32 v{WO8}, v{J}, 1, v{Z}
    s_lshl_b32 s{sT0}, s{sW}, 5
    s_add_u32 s{sT0}, s{sT0}, 1024
    v_add_u32 v{WO8}, s{sT0}, v{WO8}
    s_mul_i32 s{sT1}, s{sH}, 147456''')
    vq = ['m0']
    if int(os.environ.get('TLBW', '0')):
        a(f'v_lshlrev_b32 v254, 20, v{LANE}\nbuffer_load_dword v255, v254, s[{sWS}:{sWS+3}], 0 offen offset:{int(os.environ.get("TLBO","0"))} sc1'); vq.append('tlb')
    def vwait(tag):
        idx = max(i for i, t in enumerate(vq) if t == tag)
        a(f's_waitcnt vmcnt({min(len(vq)-1-idx, 63)})')
        del vq[:idx+1]
    RAW = 128
    T8 = 88
    def t8_issue():
        for sg in range(2):
            for b in range(8):
                kh, p0, hf = b >> 2, (b >> 1) & 1, b & 1
                a(f's_add_u32 s{sT2}, s{sT1}, {(32*(sg+2*hf)+16*kh+2*p0)*1152}')
                a(f'buffer_load_ushort v{T8+sg*16+2*b}, v{WO8}, s[{sWO}:{sWO+3}], s{sT2} offen')
                a(f'buffer_load_ushort v{T8+1+sg*16+2*b}, v{WO8}, s[{sWO}:{sWO+3}], s{sT2} offen offset:1152')
                vq.extend(['t8']*2)
    def t8_fin():
        vwait('t8')
        for sg in range(2):
            kind, base = LOC[('o8', sg)]
            dst = base if kind == 'v' else 16
            for b in range(8): a(f'v_lshl_or_b32 v{dst+b}, v{T8+1+sg*16+2*b}, 16, v{T8+sg*16+2*b}')
            if kind == 'l':
                for hh in range(2): a(f'ds_write_b128 v{vWL}, {vr(dst+4*hh,4)} offset:{base+hh*1024}')
    for rho in range(4):
        for x in range(4):
            kh, p0 = x >> 1, x & 1
            a(f's_add_u32 s{sT2}, s{sT1}, {(32*rho+16*kh+2*p0)*1152}')
            a(f'buffer_load_dwordx4 {vr(RAW+rho*32+x*8,4)}, v{WO4}, s[{sWO}:{sWO+3}], s{sT2} offen')
            a(f'buffer_load_dwordx4 {vr(RAW+rho*32+x*8+4,4)}, v{WO4}, s[{sWO}:{sWO+3}], s{sT2} offen offset:1152')
            vq += [('wo', rho)]*2
        if rho == 1: t8_issue()
    for i in range(4):
        a(f'buffer_store_dwordx4 v[24:27], v31, s[{sWS}:{sWS+3}], s{sPR+i} offen {SC}'); vq.append('pz')
    for slot in range(1, 4):
        a(f's_mov_b32 s{sT0}, {WS_MEM + slot*PSZ}')
        a(f'buffer_store_dwordx2 v[24:25], v30, s[{sWS}:{sWS+3}], s{sT0} offen {SC}'); vq.append('pz')
    jobs = [(m, pp, sg, kh) for m in (0, 1, 2) for pp in (0, 1) for sg in (0, 1) for kh in (0, 1)] + [(m, 8, 0, 0) for m in range(3)]
    def fr(m, slot, t): return ('qk', slot, 2*m+t) if m < 2 else ('v', slot, t)
    def parts(j):
        m, pp, sg, kh = j
        if pp == 8: return [(SE, 8, 0), (SO, 8, 1)]
        return [(SR, 4*pp+sg, kh), (SR2, 4*pp+2+sg, kh)]
    def late(j):
        return any(LOC[fr(j[0], slot, t)][0] == 'v' for (_, slot, _) in parts(j) for t in range(2))
    jobs = [j for j in jobs if not late(j)] + [j for j in jobs if late(j)]
    nlate = sum(map(late, jobs))
    free = [48, 64]
    bufn = {}
    for p in range(2): a(f's_xor_b32 s{84+p}, s{sW}, {2*p}\ns_lshl_b32 s{84+p}, s{84+p}, 20\ns_add_u32 s{84+p}, s{84+p}, s{sT3}')
    a(f's_and_b32 s86, s{sW}, 1\ns_lshl_b32 s86, s86, 18\ns_add_u32 s86, s86, s{sT3}')
    nxt = [0]
    written = set()
    def issue():
        n = nxt[0]
        if n >= len(jobs) or not free: return False
        m, pp, sg, kh = jobs[n]
        def ok(b):
            if b < 200: return True
            for k in range(n+1):
                for (_, slot, _) in parts(jobs[k]):
                    for t in range(2):
                        kind, base = LOC[fr(jobs[k][0], slot, t)]
                        if kind == 'v' and base < b+16 and base+8 > b: return False
            return True
        cand = [b for b in free if ok(b)]
        if not cand: return False
        buf = cand[-1]; free.remove(buf); bufn[n] = buf
        s = (sWQ, sWK, sWV)[m]
        for i in range(4):
            if pp < 8: a(f's_add_u32 s{sT2}, s{84+pp}, {(sg*4+64*kh+16*i)*8192}')
            else: a(f's_add_u32 s{sT2}, s86, {(512+8*i)*8192}')
            a(f'buffer_load_dwordx4 {vr(buf+4*i,4)}, v{X if pp < 8 else VO}, s[{s}:{s+3}], s{sT2} offen')
        vq.extend([('j', n)]*4)
        nxt[0] += 1
        return True
    P, RD = 16, 32
    def perms(n):
        m = jobs[n][0]
        for q, (adr, slot, kh) in enumerate(parts(jobs[n])):
            for t in range(2):
                kind, base = LOC[fr(m, slot, t)]
                dst = base+4*kh if kind == 'v' else P + 8*q + 4*t
                for b in range(4):
                    a(f'v_perm_b32 v{dst+b}, v{RD+8*q+2*b+1}, v{RD+8*q+2*b}, s{sSEL1 if t else sSEL0}')
                if kind == 'a':
                    for b in range(4): a(f'v_accvgpr_write_b32 a{base+4*kh+b}, v{dst+b}')
                if kind == 'l':
                    a(f'ds_write_b128 v{vWL}, {vr(dst, 4)} offset:{base + kh*1024}')
    def consume(n):
        buf = bufn[n]
        vwait(('j', n))
        a('s_waitcnt lgkmcnt(0)\ns_barrier')
        if n == 2:
            assert 'seed' not in vq
            a(f'''s_cmp_lg_u32 s{sW}, 0
            s_cbranch_scc1 L_arr
            v_mov_b32 v{P}, 1
            s_mov_b64 exec, 1
            buffer_atomic_add v{P}, off, s[{sDBG}:{sDBG+3}], 0 offset:4
            s_mov_b64 exec, -1''')
            a.label('L_arr')
        for i in range(4): a(f'ds_write_b128 v{SW}, {vr(buf+4*i,4)} offset:{i*1024}')
        free.append(buf)
        while issue(): pass
        if n: perms(n-1)
        a('s_waitcnt lgkmcnt(0)\ns_barrier')
        for q, (adr, slot, kh) in enumerate(parts(jobs[n])):
            for b in range(4):
                p0, hf = b >> 1, b & 1
                for u in range(2):
                    a(f'ds_read_b32 v{RD+8*q+2*b+u}, v{adr} offset:{(8*hf+2*p0+u)*128}')
    while issue(): pass
    vwait('m0')
    a(f's_mov_b32 s{sT0}, {WS_MEM}\nbuffer_store_dwordx2 v[28:29], v30, s[{sWS}:{sWS+3}], s{sT0} offen {SC}'); vq.append('seed')
    t8_fin()
    for rho in range(4):
        if ('wo', rho) in vq: vwait(('wo', rho))
        for c in range(4):
            kind, base = LOC[('o', c, rho)]
            dst = base if kind == 'v' else P
            for x in range(4):
                kh, p0 = x >> 1, x & 1
                for hf in range(2):
                    a(f'v_perm_b32 v{dst+4*kh+2*p0+hf}, v{RAW+rho*32+x*8+4+c}, v{RAW+rho*32+x*8+c}, s{sSEL1 if hf else sSEL0}')
            if kind == 'l':
                for hh in range(2): a(f'ds_write_b128 v{vWL}, {vr(dst+4*hh,4)} offset:{base+hh*1024}')
        if rho == 2: free.append(208)
        if rho == 3: free.extend([224, 240])
        while issue(): pass
    for n in range(len(jobs)):
        consume(n)
    a('s_waitcnt lgkmcnt(0)')
    perms(len(jobs)-1)
    assert nxt[0] == len(jobs)
    a('s_waitcnt vmcnt(0) lgkmcnt(0)')
    J, G, LANE, X, Y, RW = 60, 61, 62, 63, 64, 65
    a(f''' v_lshrrev_b32 v{LANE}, 4, v{vL16}
    v_and_b32 v{J}, 15, v{LANE}
    v_lshrrev_b32 v{G}, 4, v{LANE}
    v_and_b32 v{X}, 2, v{LANE}
    v_mov_b32 v{vIDX}, 0x00444444
    v_mov_b32 v{Y}, 0x0049EEEE
    v_cmp_ne_u32 vcc, 0, v{X}
    v_cndmask_b32 v{vIDX}, v{vIDX}, v{Y}, vcc
    s_mov_b64 s[{sHF1}:{sHF1+1}], vcc
    s_not_b64 s[{sHF0}:{sHF0+1}], vcc
    s_mov_b32 s{sONE}, 0x3f803f80
    s_mov_b32 s{sONE+1}, 0x3f803f80
    s_lshl_b32 s{sOWN}, s{sW}, 11
    s_xor_b32 s{sOWN+1}, s{sOWN}, 2048
    s_xor_b32 s{sOWN+2}, s{sOWN}, 4096
    s_xor_b32 s{sOWN+3}, s{sOWN}, 6144
    s_lshl_b32 s{sL4}, s{sW}, 8
    s_add_u32 s{sL4}, s{sL4}, 8192
    s_lshl_b32 s{sXW}, s{sW}, 10
    s_add_u32 s{sXW}, s{sXW}, {L_XW}
    s_lshl_b32 s{sX5}, s{sW}, 2
    s_add_u32 s{sX5}, s{sX5}, {L_SX5}
    v_lshlrev_b32 v{X}, 7, v{G}
    v_lshl_add_u32 v{X}, v{J}, 2, v{X}
    v_add_u32 v{vQKW}, s{sXW}, v{X}
    v_lshrrev_b32 v{X}, 2, v{J}
    v_and_b32 v{Y}, 1, v{J}
    v_lshl_add_u32 v{RW}, v{X}, 1, v{Y}
    v_lshlrev_b32 v{X}, 6, v{RW}
    v_lshl_add_u32 v{X}, v{G}, 4, v{X}
    v_add_u32 v{vBQ}, s{sXW}, v{X}
    v_lshrrev_b32 v{X}, 2, v{J}
    v_lshlrev_b32 v{X}, 7, v{X}
    v_lshl_add_u32 v{X}, v{G}, 4, v{X}
    v_add_u32 v{X}, 512, v{X}
    v_add_u32 v{vAKM}, s{sXW}, v{X}
    v_lshl_add_u32 v{X}, v{G}, 3, v{RW}
    v_lshlrev_b32 v{X}, 4, v{X}
    v_add_u32 v{vOA}, {L_OB}, v{X}
    v_lshrrev_b32 v{X}, 2, v{J}
    v_lshlrev_b32 v{X}, 3, v{X}
    v_lshl_add_u32 v{X}, v{G}, 1, v{X}
    v_lshlrev_b32 v{X}, 4, v{X}
    v_and_b32 v{Y}, 3, v{J}
    v_lshl_add_u32 v{X}, v{Y}, 2, v{X}
    s_lshl_b32 s{sT0}, s{sW}, 9
    s_add_u32 s{sT0}, s{sT0}, {L_OB}
    v_add_u32 v{vOW}, s{sT0}, v{X}
    v_lshrrev_b32 v{X}, 2, v{J}
    v_lshlrev_b32 v{X}, 1, v{X}
    v_lshl_add_u32 v{X}, v{G}, 3, v{X}
    v_and_b32 v{Y}, 1, v{J}
    v_add_u32 v{X}, v{X}, v{Y}
    v_lshlrev_b32 v{X}, 3, v{X}
    v_and_b32 v{Y}, 2, v{J}
    v_lshl_add_u32 v{X}, v{Y}, 1, v{X}
    s_mul_i32 s{sT0}, s{sW}, 1792
    s_sub_u32 s{sT0}, 8192, s{sT0}
    v_add_u32 v{vPS9}, s{sT0}, v{X}
    s_cmp_eq_u32 s{sW}, 2
    s_cselect_b32 s{sT1}, 1, 3
    s_cselect_b32 s{sT2}, 1, 7
    s_lshl_b32 s{sT0}, s{sRHO}, 7
    s_lshl_b32 s80, s{sH}, 5
    s_add_u32 s80, s80, 8192
    s_cmp_eq_u32 s{sW}, 2
    s_cselect_b32 s{sXM}, s80, s{sT0}
    v_lshrrev_b32 v{X}, s{sT1}, v{J}
    v_lshl_add_u32 v{X}, v{X}, 2, v{G}
    v_mul_u32_u24 v{X}, {PST}, v{X}
    v_and_b32 v{Y}, s{sT2}, v{J}
    v_lshl_add_u32 v{Y}, v{Y}, 4, v{X}
    v_add_u32 v{vRED}, s{sXM}, v{Y}
    v_lshrrev_b32 v{Y}, 2, v{J}
    v_cmp_eq_u32 s[{sS0M}:{sS0M+1}], 0, v{Y}
    v_cmp_eq_u32 s[{sS1M}:{sS1M+1}], 1, v{Y}''')
    O, Q, SRC, T1, Q2, R2, H2 = 66, 67, 68, 69, 70, 71, 72
    a(f''' v_and_b32 v{X}, s{sT2}, v{J}
    v_lshlrev_b32 v{X}, 4, v{X}
    v_and_b32 v{Y}, 1, v{G}
    v_lshl_add_u32 v{X}, v{Y}, 3, v{X}
    v_add_u32 v{O}, s{sXM}, v{X}
    v_bfe_u32 v{X}, v{O}, 8, 2
    v_bfe_u32 v{Y}, v{O}, 3, 1
    v_lshl_add_u32 v{RW}, v{X}, 1, v{Y}
    v_lshrrev_b32 v{Q}, 11, v{O}
    v_lshlrev_b32 v{Q}, 4, v{Q}
    v_bfe_u32 v{X}, v{O}, 4, 4
    v_add_u32 v{Q}, v{Q}, v{X}
    v_bfe_u32 v{T1}, v{O}, 10, 1
    v_bfe_u32 v{X}, v{O}, 8, 2
    v_bfe_u32 v{Y}, v{O}, 5, 1
    v_lshl_add_u32 v{Q2}, v{X}, 1, v{Y}
    v_add_u32 v{Q2}, 64, v{Q2}
    v_bfe_u32 v{X}, v{O}, 6, 2
    v_bfe_u32 v{Y}, v{O}, 3, 1
    v_lshl_add_u32 v{R2}, v{X}, 1, v{Y}
    v_bfe_u32 v{H2}, v{O}, 4, 1
    v_cmp_le_u32 vcc, 0x2000, v{O}
    v_cndmask_b32 v{Q}, v{Q}, v{Q2}, vcc
    v_cndmask_b32 v{RW}, v{RW}, v{R2}, vcc
    v_cndmask_b32 v{T1}, v{T1}, v{H2}, vcc
    v_mul_u32_u24 v{SRC}, 1152, v{RW}
    v_lshl_add_u32 v{SRC}, v{Q}, 4, v{SRC}
    v_lshl_add_u32 v{SRC}, v{T1}, 3, v{SRC}
    v_lshrrev_b32 v{X}, 10, v{O}
    v_bfe_u32 v{Y}, v{O}, 5, 3
    v_lshl_add_u32 v{X}, v{X}, 3, v{Y}
    v_bfe_u32 v{Y}, v{O}, 4, 1
    v_cndmask_b32 v{Q}, v{X}, v{Q}, vcc
    v_cndmask_b32 v{T1}, v{Y}, v{T1}, vcc
    v_lshrrev_b32 v{X}, 1, v{RW}
    v_lshlrev_b32 v{X}, 2, v{X}
    v_and_b32 v{Y}, 1, v{Q}
    v_lshl_add_u32 v{X}, v{Y}, 1, v{X}
    v_and_b32 v{Y}, 1, v{RW}
    v_add_u32 v{X}, v{X}, v{Y}
    v_lshlrev_b32 v{X}, 4, v{X}
    v_lshrrev_b32 v{Y}, 1, v{Q}
    v_lshl_add_u32 v{X}, v{Y}, 8, v{X}
    v_lshl_add_u32 v{vMST}, v{T1}, 3, v{X}
    v_cmp_ge_u32 s[80:81], s{sT2}, v{J}
    v_cmp_gt_u32 s[82:83], 2, v{G}
    s_and_b64 vcc, s[80:81], s[82:83]
    s_cmp_lt_u32 s{sW}, 3
    s_cselect_b64 vcc, vcc, 0
    s_cselect_b64 s[80:81], -1, 0
    v_mov_b32 v{X}, {OOB}
    v_cndmask_b32 v{vMST}, v{X}, v{vMST}, vcc
    v_cndmask_b32 v{SRC}, v{X}, v{SRC}, vcc
    v_cndmask_b32 v{vRED}, v{X}, v{vRED}, s[80:81]''')
    a(f''' v_and_b32 v{X}, 1, v{J}
    v_cmp_eq_u32 s[{sEV}:{sEV+1}], 0, v{X}
    s_mov_b32 s{sC}, 0x3e0293ee
    s_mov_b32 s{sPR}, {WS_PART}
    s_cmp_eq_u32 s{sW}, 2
    s_cselect_b32 s{sPR+1}, s{sPR}, {WS_PART+8*PST}
    s_cselect_b32 s{sPR+2}, s{sPR}, {WS_PART+16*PST}
    s_cselect_b32 s{sPR+3}, s{sPR}, {WS_PART+24*PST}
    s_mul_i32 s{sPW}, s{sH}, {PST}
    s_add_u32 s{sPW}, s{sPW}, {WS_PART}
    s_add_u32 s{sPW}, s{sPW}, s{sOWN}
    s_lshl_b32 s{sKX}, s{sH}, 14
    s_add_u32 s{sTK}, s{sKX}, {WS_KV + (2<<19)}
    s_lshl_b32 s{sT0}, s{sW}, 12
    s_add_u32 s{sTK}, s{sTK}, s{sT0}
    s_add_u32 s{sKX}, s{sKX}, s{sOWN}
    s_add_u32 s{sKX}, s{sKX}, {WS_KV}
    s_add_u32 s{sVX}, s{sKX}, 8192
    s_lshl_b32 s{sPUB}, s{sR}, 10
    s_add_u32 s{sPUB}, s{sPUB}, {WS_PUB}''')
    mark(a, 1, sDBG, 20, 21)
    if DBG: a('s_memtime s[90:91]')
    if os.environ.get('NOWORK'): a('s_waitcnt vmcnt(0)\ns_branch L_end')
    a('s_barrier')
    a(f's_mov_b32 s{sSPIN}, 0')
    a.label('L_bar_loop')
    a(f''' buffer_load_dwordx4 v[20:23], off, s[{sDBG}:{sDBG+3}], 0 sc1
    s_waitcnt vmcnt(0)
    v_readfirstlane_b32 s{sT0}, v21
    v_readfirstlane_b32 s{sT1}, v22
    v_readfirstlane_b32 s{sT2}, v20
    s_add_u32 s{sSPIN}, s{sSPIN}, 1
    s_cmp_gt_u32 s{sSPIN}, {SPINMAX}
    s_cbranch_scc1 L_end
    s_cmp_lt_u32 s{sT0}, 32
    s_cbranch_scc1 L_bar_loop
    s_cmp_lt_u32 s{sT1}, 96
    s_cbranch_scc1 L_bar_loop
    s_mov_b32 s{sRDY}, 0
    s_mov_b32 s{sT0}, 2''')
    step11.rdy(a, '_i', globals())
    a.label('L_rdy_done_i')
    a(f''' v_lshlrev_b32 v20, 2, v{vL16}
    s_sub_u32 s{sT0}, s{sTK}, {2<<19}
    s_sub_u32 s{sT1}, s{sTK}, {1<<19}
    buffer_load_dword v21, v20, s[{sWS}:{sWS+3}], s{sT0} offen
    buffer_load_dword v22, v20, s[{sWS}:{sWS+3}], s{sT1} offen
    {TM1}
    s_mov_b32 s{sS}, 0
    s_mov_b32 s{sSPIN}, 0
    s_waitcnt lgkmcnt(0)
    s_mov_b32 s{sMEMr}, {OOB}
    s_mov_b32 s{sMEMw}, {WS_MEM}
    s_cmp_eq_u32 s{sW}, 3
    s_cbranch_scc1 L_step_n
    s_cmp_eq_u32 s{sW}, 2
    s_cbranch_scc1 L_step_q''')
    mark(a, 2, sDBG, 20, 21)
    slow = f's_cmp_lt_u32 s{sT2}, {1000 if os.environ.get("FORCESLOW") else 32}'
    a(slow + '\ns_cbranch_scc1 L_slow_r')
    step(a, 1, '')
    a('s_branch L_fin')
    a.label('L_slow_r')
    step(a, 1, 'sc1')
    a('s_branch L_fin')
    a.label('L_step_q')
    a(slow + '\ns_cbranch_scc1 L_slow_q')
    step(a, 2, '')
    a('s_branch L_fin')
    a.label('L_slow_q')
    step(a, 2, 'sc1')
    a('s_branch L_fin')
    a.label('L_step_n')
    a(f's_cmp_eq_u32 s{sRHO}, 127\ns_cselect_b32 s{sXM}, {Wk.D_PROG*4}, s{sWS+2}')
    a(slow + '\ns_cbranch_scc1 L_slow_n')
    step(a, 0, '')
    a('s_branch L_fin_n')
    a.label('L_slow_n')
    step(a, 0, 'sc1')
    a.label('L_fin_n')
    a(f'v_mov_b32 v20, 100\nbuffer_store_dword v20, off, s[{sDBG}:{sDBG+3}], s{sXM} sc1')
    a.label('L_fin')
    mark(a, 3, sDBG, 20, 21)
    a(f'buffer_store_dwordx4 {vr(PUB,4)}, v{vL16}, s[{sWS}:{sWS+3}], s{sPUB} offen sc1')
    if DBG: a(f''' s_memtime s[84:85]
    s_waitcnt lgkmcnt(0)
    s_cmp_lg_u32 s{sR}, 0
    s_cbranch_scc1 L_end
    s_sub_u32 s{sT0}, s{sTM+2}, s{sTM}
    s_sub_u32 s{sT1}, s84, s{sTM+2}
    v_mov_b32 v30, s{sT0}
    v_mov_b32 v31, s{sT1}
    v_mov_b32 v32, s{sSPIN}
    s_sub_u32 s90, s90, s{sTM}
    v_mov_b32 v33, s90
    v_mov_b32 v29, 16
    s_mov_b64 exec, 1
    buffer_store_dwordx4 v[30:33], v29, s[{sDBG}:{sDBG+3}], 0 offen
    s_waitcnt vmcnt(0)''')
    a('s_branch L_end')

def smf(a, d, A, B):
    kind, b = B
    a(f'v_smfmac_f32_16x16x64_bf16 {vr(d,4)}, {vr(A,4)}, {rstr(kind,b,8)}, v{vIDX}')

STAMPS=[12,14,16,18,20,22,24,26,28,30,80,82,84,86,88,90,92,94,96,98]
nst_=[0]
def stamp(a, name):
    if not PROBE: return
    if os.environ.get('FINE') and name in ('top','s5 done','k done','ak ok','pre B2','post B2','sr ok','v issued','pub ack','x','pp issue','part ok','end'): return
    k=nst_[0]; nst_[0]+=1
    a(f's_memtime s[{STAMPS[k]}:{STAMPS[k]+1}]')
    print('stamp',k,name)
def stamp_dump(a, sfx):
    if not PROBE: return
    a(f"""s_cmp_lg_u32 s{sS}, 40
    s_cbranch_scc1 L_nodump{sfx}
    s_waitcnt lgkmcnt(0)
    v_mov_b32 v60, 0""")
    for k in range(nst_[0]): a(f'v_writelane_b32 v60, s{STAMPS[k]}, {k}')
    a(f"""s_lshl_b32 s{sT0}, s{sR}, 8
    s_add_u32 s{sT0}, s{sT0}, {200*MiB}
    v_lshrrev_b32 v61, 2, v{vL16}
    buffer_store_dword v60, v61, s[{sWS}:{sWS+3}], s{sT0} offen""")
    a.label('L_nodump'+sfx)
    nst_[0] = 0

import step11
def step(a, red, sc):
    g = dict(globals()); g['SC'] = sc
    step11.step(a, red, g)
```

```python
import os
from asmdsl import *
MiB = 1 << 20
WS_KV, WS_QX, WS_PUB = 0, 32*MiB, 48*MiB
WS_PQ, WS_G, WS_KVP, WS_XP = 60*MiB, 64*MiB, 65*MiB, 72*MiB
PST = 9344
OOB = 0x40000000
D_TK0, D_BAR = 0, 1
D_INIT, D_BKV = 2, 3
D_KV, D_Q = 40, 25
D_PROG = 24
D_TK = 32
D_X = 8
sWS, sX, sWC, sDBG, sOUT, sMI = 8, 12, 16, 20, 24, 28
sH, sW, sI, sT0, sT1, sT2, sT3, sTEAM = 32, 33, 34, 35, 36, 37, 38, 39
sSEL0, sSEL1, sSEG, sEND, sDST, sSTR, sCOL, sCNT, sCI, sBUF = 40, 41, 42, 43, 44, 45, 46, 47, 48, 49
sU0, sU1, sBLK, sPH, sSPIN, sDSTEP = 50, 51, 52, 53, 54, 55
P = 64
def ptr(i): return P + 2*i
XROW = 1168
XBUF = 32*XROW

def wstamp(a, k):
    if not int(os.environ.get('WST', '0')): return
    a(f"""s_memrealtime s[96:97]
    s_waitcnt lgkmcnt(0)
    s_lshl_b32 s98, s{sI}, 6
    s_add_u32 s98, s98, {200*MiB + 4*k}
    v_mov_b32 v2, 0
    v_mov_b32 v3, s96
    buffer_store_dword v3, v2, s[{sWS}:{sWS+3}], s98 offen""")
def srd(a, s, lo, nbytes):
    a(f's_mov_b32 s{s}, s{lo}\ns_mov_b32 s{s+1}, s{lo+1}\ns_mov_b32 s{s+2}, {nbytes}\ns_mov_b32 s{s+3}, 0x00020000')

def signal(a, idx_sgpr_or_const, val, tag):
    a('s_waitcnt vmcnt(0)\ns_barrier')
    a(f's_cmp_lg_u32 s{sW}, 0\ns_cbranch_scc1 L_sig{tag}')
    a(f'v_mov_b32 v2, {idx_sgpr_or_const}\nv_mov_b32 v3, {val}\ns_mov_b64 exec, 1')
    a(f'buffer_atomic_add v3, v2, s[{sDBG}:{sDBG+3}], 0 offen\ns_mov_b64 exec, -1')
    a.label(f'L_sig{tag}')

vL16, vJ, vG = 0, 4, 5
vXA = 6
vRA = 16
vRC = 20
vVO, vSW, vSR = 56, 57, 58
WF = 64
AFB = 24
ACC = 40
XB = 36864
L_SCR = 3*XB
RDT = 208
sM0B, sRB = 56+2, 56+3

def lw_issue(a, kind):
    a(f's_mov_b32 s{sT0}, s{sCOL}\ns_lshl_b32 s{sT1}, s{sSTR}, 4')
    for n in range(36):
        d = vr(WF+4*n,4) if kind == 'v' else ar(4*n,4)
        a(f'buffer_load_dwordx4 {d}, v{vVO}, s[{sWC}:{sWC+3}], s{sT0} offen')
        if n < 35: a(f's_add_u32 s{sT0}, s{sT0}, s{sT1}')
def lw_finish(a):
    for kind in 'av':
        for n in range(9):
            a(f's_waitcnt vmcnt({min(63, 32-4*n + (36 if kind == "a" else 0))})')
            for i in range(4):
                d = vr(WF+16*n+4*i,4) if kind == 'v' else ar(16*n+4*i,4)
                a(f'ds_write_b128 v{vSW}, {d} offset:{i*1024}')
            for h in range(2):
                for i in range(8): a(f'ds_read_b32 v{RDT+8*h+i}, v{vSR} offset:{(32*h+i)*64}')
            a('s_waitcnt lgkmcnt(0)')
            for h in range(2):
                for t in range(2):
                    for p in range(4):
                        d = (2*n+h)*8 + t*4 + p
                        dv = WF+d if kind == 'v' else AFB+(d & 7)
                        a(f'v_perm_b32 v{dv}, v{RDT+8*h+2*p+1}, v{RDT+8*h+2*p}, s{sSEL1 if t else sSEL0}')
                        if kind == 'a': a(f'v_accvgpr_write_b32 a{d}, v{dv}')
vSE = 59
sCOL2 = 63
def lw_all2(a):
    wstamp(a, 6)
    vq = []
    def issue(u):
        kind, n = ('a', u) if u < 9 else ('v', u-9)
        srd_, col = (sWC, sCOL) if kind == 'a' else (sMI, sCOL2)
        for i in range(4):
            d = vr(WF+16*n+4*i,4) if kind == 'v' else ar(16*n+4*i,4)
            a(f'buffer_load_dwordx4 {d}, v{vVO}, s[{srd_}:{srd_+3}], s{col} offen')
            a(f's_add_u32 s{col}, s{col}, {(8 if i < 3 else 40)*8192}')
        vq.extend([u]*4)
    AHEAD = 10
    for u in range(AHEAD): issue(u)
    RB = [RDT, RDT+16]
    for k in range(4): a(f'v_add_u32 v{AFB+8+k}, {(k>>1)*16384+(k&1)*4096}, v{vSE}')
    def write(u):
        kind, n = ('a', u) if u < 9 else ('v', u-9)
        idx = max(i for i, t in enumerate(vq) if t == u)
        a(f's_waitcnt vmcnt({len(vq)-1-idx})'); del vq[:idx+1]
        for i in range(4):
            d = vr(WF+16*n+4*i,4) if kind == 'v' else ar(16*n+4*i,4)
            a(f'ds_write_b128 v{vSW}, {d} offset:{(u&1)*16384+i*1024}')
    def read(u):
        for h in range(2):
            for i in range(0, 8, 2):
                a(f'ds_read2_b32 {vr(RB[u&1]+8*h+i,2)}, v{AFB+8+(u&1)*2+h} offset0:{i*32} offset1:{i*32+32}')
    def perm(u):
        kind, n = ('a', u) if u < 9 else ('v', u-9)
        R = RB[u&1]
        for h in range(2):
            for t in range(2):
                for p in range(4):
                    d = (2*n+h)*8 + t*4 + p
                    dv = WF+d if kind == 'v' else AFB+(d & 7)
                    a(f'v_perm_b32 v{dv}, v{R+8*h+2*p+1}, v{R+8*h+2*p}, s{sSEL1 if t else sSEL0}')
                    if kind == 'a': a(f'v_accvgpr_write_b32 a{d}, v{dv}')
    write(0)
    for u in range(18):
        a('s_waitcnt lgkmcnt(0)\ns_barrier')
        read(u)
        if u+1 < 18: write(u+1)
        if u+AHEAD < 18: issue(u+AHEAD)
        if u >= 1: perm(u-1)
        if u == 0: wstamp(a, 0)
        if u == 8: wstamp(a, 1)
    a('s_waitcnt lgkmcnt(0)')
    perm(17)
def load_weights(a, dst_kind, dst, tag_):
    if tag_ in ('v', 'q1'): return
    if tag_ == 'k': a('s_branch L_lwf2'); return
    if tag_ == 'q0':
        a.label('L_lwf2'); lw_all2(a)
        a(f's_cmp_eq_u32 s{sPH}, 0\ns_cbranch_scc1 L_run0')
        return
    return load_weights1(a, dst_kind, dst, tag_)
def load_weights1(a, dst_kind, dst, tag_):
    lw_issue(a, dst_kind)
    if dst_kind == 'v': a('s_branch L_lwf' if tag_ != 'bk' else 's_nop 0')

def dma(a, i):
    return (f's_add_u32 m0, s{sM0B}, {i*4096}\ns_nop 0\n'
            f'buffer_load_dwordx4 v{vXA+i}, s[{sX}:{sX+3}], s{sBUF} offen lds')

def rowaddr(a, kind):
    X, Y, Z = 2, 3, AFB
    if kind == 'T':
        a(f'''v_lshrrev_b32 v{X}, 2, v{vJ}
        v_lshlrev_b32 v{X}, 3, v{X}
        v_bfe_u32 v{Y}, v{vJ}, 1, 1
        v_lshl_add_u32 v{X}, v{Y}, 2, v{X}
        v_and_b32 v{Y}, 1, v{vJ}
        v_add_u32 v{X}, v{X}, v{Y}''')
        d = 2
    else:
        a(f'''v_lshrrev_b32 v{X}, 2, v{vJ}
        v_lshlrev_b32 v{X}, 3, v{X}
        v_and_b32 v{Y}, 3, v{vJ}
        v_add_u32 v{X}, v{X}, v{Y}''')
        d = 4
    a(f'''v_mul_u32_u24 v{X}, 1152, v{X}
    v_lshrrev_b32 v{Y}, 1, v{vJ}
    v_xor_b32 v{Y}, v{Y}, v{vG}
    v_lshl_add_u32 v{vRA}, v{Y}, 4, v{X}
    v_xor_b32 v{Y}, 4, v{Y}
    v_lshl_add_u32 v{vRA+1}, v{Y}, 4, v{X}
    v_add_u32 v{vRA+2}, {d*1152}, v{vRA}
    v_add_u32 v{vRA+3}, {d*1152}, v{vRA+1}''')
    for i in range(9):
        a(f'''s_lshl_b32 s{sT0}, s{sW}, 6
        s_add_u32 s{sT0}, s{sT0}, {i*256}
        v_lshrrev_b32 v{X}, 4, v{vL16}
        v_add_u32 v{X}, s{sT0}, v{X}            ; p
        v_mul_u32_u24 v{Y}, 3641, v{X}
        v_lshrrev_b32 v{Y}, 18, v{Y}            ; row''')
        if kind == 'T': a(f'v_bfe_u32 v{Z}, v{Y}, 2, 3')
        else: a(f'v_lshrrev_b32 v{Z}, 3, v{Y}\nv_bfe_u32 v{Y}, v{Y}, 1, 1\nv_lshl_add_u32 v{Z}, v{Z}, 1, v{Y}')
        a(f'v_xor_b32 v{X}, v{X}, v{Z}\nv_lshlrev_b32 v{vXA+i}, 4, v{X}')

LOG2E = 0x3fb8aa3b
def phi_pair(a, x0, x1, t0, t1, dst):
    a(f'''v_cvt_pk_bf16_f32 v{t0}, v{x0}, v{x1}
    v_lshlrev_b32 v{x0}, 16, v{t0}
    v_and_b32 v{x1}, 0xffff0000, v{t0}
    v_mul_f32 v{t0}, s{sT3}, v{x0}
    v_mul_f32 v{t1}, s{sT3}, v{x1}
    v_exp_f32 v{t0}, v{t0}
    v_exp_f32 v{t1}, v{t1}
    v_cmp_lt_f32 vcc, 0, v{x0}
    v_add_f32 v{x0}, 1.0, v{x0}
    v_cndmask_b32 v{x0}, v{t0}, v{x0}, vcc
    v_cmp_lt_f32 vcc, 0, v{x1}
    v_add_f32 v{x1}, 1.0, v{x1}
    v_cndmask_b32 v{x1}, v{t1}, v{x1}, vcc
    v_add_f32 v{x0}, s{sT2}, v{x0}
    v_add_f32 v{x1}, s{sT2}, v{x1}
    v_cvt_pk_bf16_f32 v{dst}, v{x0}, v{x1}''')

sDST2, sPEND, sSTEP = 60, 61, 62
def gemm_loop(a, kind):
    W = f's[{sWS}:{sWS+3}]'
    L = 'L_g' + kind
    types = {'KV': 'TV', 'QQ': 'TT', 'BQ': 'PP', 'BKV': 'VV'}[kind]
    acc = {(T, t): (ACC + (T*2+t)*4 if t < 2 else 224 + (T*2+t-2)*4) for T in range(2) for t in range(4)}
    if kind == 'BKV':
        KVA = 160
        for i in range(16): a(f'v_accvgpr_write_b32 a{KVA+i}, 0')
        a(f'v_cmp_eq_u32 s[56:57], 9, v{vJ}')
    def wfrag(f, t):
        return vr(WF + f*8 + t*4, 4) if t < 2 else ar(f*8 + (t-2)*4, 4)
    nst = 0 if kind == 'BKV' else 4
    wstamp(a, 3)
    a(f'''s_barrier
    s_mul_i32 s{sBUF}, s{sSEG}, {XB}
    s_mul_i32 s{sEND}, s{sSTEP}, {XB}
    s_lshl_b32 s{sM0B}, s{sW}, 10
    s_mov_b32 s{sRB}, 0
    s_mov_b32 s{sCNT}, 0
    s_mov_b32 s{sPEND}, 0
    s_mov_b32 s{sT3}, {LOG2E}
    s_mov_b32 s{sT2}, 0x358637bd''')
    for k in range(2):
        for i in range(9): a(dma(a, i))
        a(f's_add_u32 s{sBUF}, s{sBUF}, s{sEND}\ns_add_u32 s{sM0B}, s{sM0B}, {XB}')
    a('s_waitcnt vmcnt(9)')
    wstamp(a, 4)
    a.label(f'{L}_top')
    a('s_barrier')
    for i in range(4): a(f'v_add_u32 v{vRC+i}, s{sRB}, v{vRA+i}')
    AB = [AFB, AFB+8, 240, 248]
    PD = 2
    def rd(f):
        for T in range(2):
            a(f'ds_read_b128 {vr(AB[f%4]+T*4,4)}, v{vRC+2*T+(f&1)} offset:{(f>>1)*128}')
    for f in range(PD): rd(f)
    if kind != 'BKV':
        a(f'''s_cmp_eq_u32 s{sPEND}, 0
        s_cbranch_scc1 {L}_np
        s_cmp_lg_u32 s{sW}, 0
        s_cbranch_scc1 {L}_np
        s_lshr_b32 s{sT0}, s{sPEND}, 8
        s_and_b32 s{sT1}, s{sPEND}, 0xff
        v_mov_b32 v2, s{sT0}
        v_mov_b32 v3, s{sT1}
        s_mov_b64 exec, 1
        buffer_atomic_add v3, v2, s[{sDBG}:{sDBG+3}], 0 offen
        s_mov_b64 exec, -1''')
        a.label(f'{L}_np')
        a(f's_mov_b32 s{sPEND}, 0')
    for f in range(18):
        if f+PD < 18: rd(f+PD)
        a(f's_waitcnt lgkmcnt({2*min(PD, 17-f)})')
        k = 0
        for T in range(2):
            for t in range(4):
                xa = vr(AB[f%4]+T*4, 4)
                A, B = (wfrag(f, t), xa) if types[t>>1] in 'TP' else (xa, wfrag(f, t))
                c = '0' if f == 0 else vr(acc[(T, t)], 4)
                a(f'v_mfma_f32_16x16x32_bf16 {vr(acc[(T,t)],4)}, {A}, {B}, {c}')
                k += 1
                if k == 1 and f % 2 == 0: a(dma(a, f//2))
    a(f'''s_add_u32 s{sBUF}, s{sBUF}, s{sEND}
    s_add_u32 s{sM0B}, s{sM0B}, {XB}
    s_sub_u32 s{sT0}, s{sM0B}, {3*XB}
    s_cmp_ge_u32 s{sM0B}, {3*XB}
    s_cselect_b32 s{sM0B}, s{sT0}, s{sM0B}
    s_add_u32 s{sRB}, s{sRB}, {XB}
    s_cmp_ge_u32 s{sRB}, {3*XB}
    s_cselect_b32 s{sRB}, 0, s{sRB}''')
    O = RDT
    if kind != 'BKV':
        a(f'''s_lshr_b32 s{sT0}, s{sSEG}, {2 if kind == 'KV' else 6}
        s_cmp_eq_u32 s{sT0}, s{sBLK}
        s_cbranch_scc1 {L}_same
        s_add_u32 s{sT1}, s{sBLK}, s{sCI}
        s_lshl_b32 s{sT1}, s{sT1}, 10
        s_or_b32 s{sPEND}, s{sT1}, s{sCNT}
        s_cmp_eq_u32 s{sCNT}, 0
        s_cselect_b32 s{sPEND}, 0, s{sPEND}
        s_mov_b32 s{sCNT}, 0
        s_mov_b32 s{sBLK}, s{sT0}''')
        a.label(f'{L}_same')
        a(f's_add_u32 s{sCNT}, s{sCNT}, 1')
        for hh in range(2):
            ty = types[hh]; t0 = 2*hh; dst = (sDST, sDST2)[hh]; Oh = O + 8*hh
            if ty == 'T' or ty == 'P':
                for T in range(2):
                    for r in range(4):
                        if ty == 'T': a(f'v_cvt_pk_bf16_f32 v{Oh+T*4+r}, v{acc[(T,t0)]+r}, v{acc[(T,t0+1)]+r}')
                        else: phi_pair(a, acc[(T,t0)]+r, acc[(T,t0+1)]+r, 2, 3, Oh+T*4+r)
                    a(f'buffer_store_dwordx4 {vr(Oh+T*4,4)}, v{vL16}, {W}, s{dst} offen offset:{T*1024} sc1')
            else:
                for t in range(2):
                    for T in range(2):
                        for p in range(2): a(f'v_cvt_pk_bf16_f32 v{Oh+t*4+2*p+T}, v{acc[(T,t0+t)]+2*p}, v{acc[(T,t0+t)]+2*p+1}')
                    a(f'buffer_store_dwordx4 {vr(Oh+t*4,4)}, v{vL16}, {W}, s{dst} offen offset:{t*1024} sc1')
        a(f's_add_u32 s{sDST}, s{sDST}, s{sDSTEP}\ns_add_u32 s{sDST2}, s{sDST2}, s{sDSTEP}')
    else:
        for t in range(2):
            for T in range(2):
                for h in range(2): phi_pair(a, acc[(T,t)]+2*h, acc[(T,t)]+2*h+1, 2, 3, O+t*4+T*2+h)
        for t in range(2, 4):
            for T in range(2):
                for h in range(2): a(f'v_cvt_pk_bf16_f32 v{O+t*4+T*2+h}, v{acc[(T,t)]+2*h}, v{acc[(T,t)]+2*h+1}')
        a('v_mov_b32 v2, 0x3f803f80')
        for i in range(4): a(f'v_cndmask_b32 v{O+8+i}, v{O+8+i}, v2, s[56:57]')
        for x in range(2):
            for y in range(2):
                d = ar(KVA + (x*2+y)*4, 4)
                a(f'v_mfma_f32_16x16x32_bf16 {d}, {vr(O+x*4,4)}, {vr(O+8+y*4,4)}, {d}')
    if kind == 'KV':
        a(f's_cmp_ge_u32 s{sSEG}, 4\ns_cbranch_scc1 {L}_ne')
        signal(a, D_KV*4, 1, 'eager')
        a(f's_mov_b32 s{sCNT}, 0')
        a.label(f'{L}_ne')
    a(f's_add_u32 s{sSEG}, s{sSEG}, s{sSTEP}')
    a(f's_waitcnt vmcnt({9+nst})')
    a(f's_cmp_lt_u32 s{sSEG}, 64\ns_cbranch_scc1 {L}_top')
    if kind == 'BKV':
        a('s_nop 7')
        for i in range(4):
            a(f'buffer_store_dwordx4 {ar(KVA+4*i,4)}, v{vL16}, {W}, s{sDST} offen offset:{i*1024} sc1')
        signal(a, D_BKV*4, 1, 'bkvf')
    else:
        a(f's_lshr_b32 s{sT0}, s{sPEND}, 8\ns_and_b32 s{sT1}, s{sPEND}, 0xff')
        signal(a, f's{sT0}', f's{sT1}', kind+'a')
        a(f's_add_u32 s{sT0}, s{sBLK}, s{sCI}\ns_lshl_b32 s{sT0}, s{sT0}, 2')
        signal(a, f's{sT0}', f's{sCNT}', kind+'b')

def worker_gemm(a):
    W = f's[{sWS}:{sWS+3}]'
    srd(a, sX, ptr(0), 2048*1152); srd(a, sMI, ptr(10), 1152)
    a(f'''s_mov_b32 s{sSEL0}, 0x05040100
    s_mov_b32 s{sSEL1}, 0x07060302
    v_and_b32 v{vJ}, 15, v0
    v_lshrrev_b32 v{vG}, 4, v0
    v_mov_b32 v1, v0
    v_lshlrev_b32 v{vL16}, 4, v0
    s_lshl_b32 s{sT0}, s{sW}, 12
    s_add_u32 s{sT0}, s{sT0}, {L_SCR}
    v_add_u32 v{vSW}, s{sT0}, v{vL16}
    v_lshlrev_b32 v{vSR}, 9, v{vG}
    v_lshl_add_u32 v{vSR}, v{vJ}, 2, v{vSR}
    v_add_u32 v{vSR}, s{sT0}, v{vSR}
    s_cmp_lt_u32 s{sI}, 128
    s_cbranch_scc1 L_noinit
    s_sub_u32 s{sT1}, s{sI}, 128
    s_lshl_b32 s{sT1}, s{sT1}, 2
    s_add_u32 s{sT1}, s{sT1}, s{sW}''')
    if int(os.environ.get('WPF', '1')):
        srd(a, sWC, ptr(5), 4096*1152); srd(a, sOUT, ptr(2), 576*8192)
        a(f'v_lshlrev_b32 v2, 3, v{vL16}\ns_mul_i32 s{sT0}, s{sT1}, 12288\ns_add_u32 s{sT2}, s{sT0}, 4096')
        for S in (sWC, sOUT):
            a(f'buffer_load_dword v250, v2, s[{S}:{S+3}], s{sT0} offen\nbuffer_load_dword v251, v2, s[{S}:{S+3}], s{sT2} offen')
    a('v_mov_b32 v24, -1\nv_mov_b32 v25, -1\nv_mov_b32 v26, -1\nv_mov_b32 v27, -1')
    a(f's_lshl_b32 s{sT0}, s{sT1}, 10\ns_add_u32 s{sT0}, s{sT0}, {WS_PUB}')
    for k in range(22):
        if k == 21: a(f's_cmp_ge_u32 s{sT1}, {8320-21*384}\ns_cbranch_scc1 L_pz_done')
        a(f'buffer_store_dwordx4 v[24:27], v{vL16}, {W}, s{sT0} offen sc1')
        a(f's_add_u32 s{sT0}, s{sT0}, {384*1024}')
    a.label('L_pz_done')
    a(f's_cmp_ge_u32 s{sT1}, 256\ns_cbranch_scc1 L_g_done')
    a(f'''v_lshrrev_b32 v2, 3, v1
    v_and_b32 v3, 7, v1
    v_lshlrev_b32 v3, 4, v3
    v_mul_u32_u24 v6, 1152, v2
    v_add_u32 v6, v6, v3
    s_mul_i32 s{sT0}, s{sT1}, {8*1152}''')
    for i in range(9):
        a(f'buffer_load_dwordx4 {vr(64+4*i,4)}, v6, s[{sX}:{sX+3}], s{sT0} offen offset:{i*128}')
        a(f'buffer_load_dwordx4 {vr(100+4*i,4)}, v3, s[{sMI}:{sMI+3}], 0 offen offset:{i*128}')
    a('v_mov_b32 v7, 0\nv_mov_b32 v8, 0\ns_waitcnt vmcnt(0)')
    for i in range(36):
        a(f'v_dot2_f32_bf16 v{7+(i&1)}, v{64+i}, v{100+i}, v{7+(i&1)}')
    a(f'''s_nop 3
    v_add_f32 v7, v7, v8
    s_nop 1
    v_add_f32_dpp v7, v7, v7 quad_perm:[1,0,3,2] row_mask:0xf bank_mask:0xf
    s_nop 1
    v_add_f32_dpp v7, v7, v7 quad_perm:[2,3,0,1] row_mask:0xf bank_mask:0xf
    s_nop 1
    v_add_f32_dpp v7, v7, v7 row_half_mirror row_mask:0xf bank_mask:0xf
    v_mul_f32 v7, 0xbfb8aa3b, v7
    v_exp_f32 v7, v7
    v_add_f32 v7, 1.0, v7
    v_rcp_f32 v7, v7
    v_lshlrev_b32 v2, 2, v2
    s_lshl_b32 s{sT0}, s{sT1}, 5
    s_add_u32 s{sT0}, s{sT0}, {WS_G}
    buffer_store_dword v7, v2, {W}, s{sT0} offen sc1''')
    a.label('L_g_done')
    wstamp(a, 1)
    signal(a, D_INIT*4, 1, 'init')
    a.label('L_noinit')
    wstamp(a, 2)
    if os.environ.get('FAKEW'):
        a(f's_and_b32 s{sT0}, s{sI}, 15\ns_lshl_b32 s{sT0}, s{sT0}, 2\ns_add_u32 s{sT0}, s{sT0}, {D_KV*4}')
        signal(a, f's{sT0}', 128, 'fake')
        a('s_waitcnt vmcnt(0)\ns_branch L_end')
    rowaddr(a, 'T')
    a(f'''s_mov_b32 s{sSTR}, 8192
    s_mov_b32 s{sWC+2}, {576*8192}
    s_mov_b32 s{sWC+3}, 0x00020000
    s_mov_b32 s{sBLK}, 0
    v_lshrrev_b32 v2, 3, v1
    v_lshlrev_b32 v{vVO}, 13, v2
    v_and_b32 v3, 7, v1
    v_lshl_add_u32 v{vVO}, v3, 4, v{vVO}
    v_lshlrev_b32 v{vSE}, 10, v{vG}
    v_lshl_add_u32 v{vSE}, v{vJ}, 2, v{vSE}
    s_and_b32 s{sT0}, s{sW}, 1
    s_lshl_b32 s{sT1}, s{sT0}, 6
    s_lshr_b32 s{sT2}, s{sW}, 1
    s_lshl_b32 s{sT3}, s{sT2}, 13
    s_add_u32 s{sT1}, s{sT1}, s{sT3}
    s_add_u32 s{sT1}, s{sT1}, {L_SCR}
    v_add_u32 v{vSE}, s{sT1}, v{vSE}
    s_lshl_b32 s{sU0}, s{sT0}, 18
    s_lshl_b32 s{sT2}, s{sT2}, 7
    s_add_u32 s{sU0}, s{sU0}, s{sT2}
    v_lshrrev_b32 v2, 2, v1
    v_and_b32 v3, 3, v1
    s_cmp_ge_u32 s{sI}, 176
    s_cbranch_scc1 L_job_b
    s_cmp_ge_u32 s{sI}, 128
    s_cbranch_scc1 L_job_q''')
    a(f'''s_lshr_b32 s{sH}, s{sI}, 2
    s_and_b32 s{sSEG}, s{sI}, 3
    s_mov_b32 s{sSTEP}, 4
    s_lshl_b32 s{sCOL}, s{sH}, 8
    s_add_u32 s{sCOL}, s{sCOL}, s{sU0}
    s_lshl_b32 s{sDST}, s{sSEG}, 19
    s_lshl_b32 s{sT0}, s{sH}, 14
    s_add_u32 s{sDST}, s{sDST}, s{sT0}
    s_lshl_b32 s{sT0}, s{sW}, 11
    s_add_u32 s{sDST}, s{sDST}, s{sT0}
    s_add_u32 s{sDST2}, s{sDST}, 8192
    s_mov_b32 s{sDSTEP}, {4<<19}
    s_mov_b32 s{sCI}, {D_KV}
    s_mov_b32 s{sWC}, s{ptr(4)}
    s_mov_b32 s{sWC+1}, s{ptr(4)+1}
    s_mov_b32 s{sCOL2}, s{sCOL}''')
    srd(a, sMI, ptr(3), 576*8192)
    load_weights(a, 'a', 0, 'v')
    a(f's_mov_b32 s{sPH}, 0')
    load_weights(a, 'v', WF, 'k')
    a.label('L_run0')
    gemm_loop(a, 'KV')
    a('s_branch L_gemm_done')
    a.label('L_job_q')
    a(f'''s_sub_u32 s{sT1}, s{sI}, 128
    s_mul_i32 s{sH}, s{sT1}, 43691
    s_lshr_b32 s{sH}, s{sH}, 17
    s_mul_i32 s{sSEG}, s{sH}, 3
    s_sub_u32 s{sSEG}, s{sT1}, s{sSEG}
    s_lshl_b32 s{sH}, s{sH}, 1
    s_mov_b32 s{sSTEP}, 3
    s_lshl_b32 s{sCOL}, s{sH}, 8
    s_add_u32 s{sCOL}, s{sCOL}, s{sU0}
    s_add_u32 s{sCOL}, s{sCOL}, 256
    s_lshl_b32 s{sDST}, s{sSEG}, 18
    s_lshl_b32 s{sT0}, s{sH}, 13
    s_add_u32 s{sDST}, s{sDST}, s{sT0}
    s_lshl_b32 s{sT0}, s{sW}, 11
    s_add_u32 s{sDST}, s{sDST}, s{sT0}
    s_add_u32 s{sDST}, s{sDST}, {WS_QX}
    s_add_u32 s{sDST2}, s{sDST}, 8192
    s_mov_b32 s{sDSTEP}, {3<<18}
    s_mov_b32 s{sCI}, {D_Q}
    s_mov_b32 s{sWC}, s{ptr(2)}
    s_mov_b32 s{sWC+1}, s{ptr(2)+1}''')
    load_weights(a, 'a', 0, 'q1')
    a(f's_sub_u32 s{sCOL2}, s{sCOL}, 256')
    srd(a, sMI, ptr(2), 576*8192)
    a(f's_mov_b32 s{sPH}, 1')
    load_weights(a, 'v', WF, 'q0')
    a.label('L_run1')
    gemm_loop(a, 'QQ')
    a('s_branch L_gemm_done')
    a.label('L_job_b')
    a(f'''s_mov_b32 s{sSTR}, 3456
    s_mov_b32 s{sWC}, s{ptr(8)}
    s_mov_b32 s{sWC+1}, s{ptr(8)+1}
    s_mov_b32 s{sWC+2}, {576*3456}
    v_mul_u32_u24 v{vVO}, 3456, v2
    v_lshl_add_u32 v{vVO}, v3, 4, v{vVO}
    s_mov_b32 s{sSTEP}, 4
    s_and_b32 s{sSEG}, s{sI}, 3
    s_cmp_ge_u32 s{sI}, 192
    s_cbranch_scc1 L_bkv
    s_sub_u32 s{sT1}, s{sI}, 176
    s_lshr_b32 s{sH}, s{sT1}, 2
    s_lshl_b32 s{sH}, s{sH}, 2
    s_add_u32 s{sH}, s{sH}, s{sW}
    s_lshl_b32 s{sH}, s{sH}, 1
    s_mul_i32 s{sCOL}, s{sH}, 36
    s_add_u32 s{sCOL}, s{sCOL}, 36
    s_lshl_b32 s{sDST}, s{sSEG}, 16
    s_lshl_b32 s{sT0}, s{sH}, 11
    s_add_u32 s{sDST}, s{sDST}, s{sT0}
    s_add_u32 s{sDST}, s{sDST}, {WS_PQ}
    s_add_u32 s{sDST2}, s{sDST}, 2048
    s_mov_b32 s{sDSTEP}, {4<<16}
    s_mov_b32 s{sCI}, {D_Q}''')
    load_weights(a, 'a', 0, 'bq1')
    a(f's_sub_u32 s{sCOL}, s{sCOL}, 36')
    a(f's_mov_b32 s{sPH}, 2')
    load_weights(a, 'v', WF, 'bq0')
    a.label('L_run2')
    gemm_loop(a, 'BQ')
    a('s_branch L_gemm_done')
    a.label('L_bkv')
    a(f'''s_sub_u32 s{sT1}, s{sI}, 192
    s_lshr_b32 s{sH}, s{sT1}, 2
    s_lshl_b32 s{sH}, s{sH}, 2
    s_add_u32 s{sH}, s{sH}, s{sW}
    s_lshl_b32 s{sDST}, s{sSEG}, 17
    s_lshl_b32 s{sT0}, s{sH}, 12
    s_add_u32 s{sDST}, s{sDST}, s{sT0}
    s_add_u32 s{sDST}, s{sDST}, {WS_KVP}
    s_mul_i32 s{sCOL}, s{sH}, 36
    s_add_u32 s{sCOL}, s{sCOL}, {1152*2}''')
    load_weights(a, 'a', 0, 'bv')
    a(f's_sub_u32 s{sCOL}, s{sCOL}, {576*2}')
    a(f's_mov_b32 s{sPH}, 3')
    load_weights(a, 'v', WF, 'bk')
    a.label('L_lwf')
    lw_finish(a)
    for k in (2,): a(f's_cmp_eq_u32 s{sPH}, {k}\ns_cbranch_scc1 L_run{k}')
    gemm_loop(a, 'BKV')
    a.label('L_gemm_done')
    wstamp(a, 5)
```

```python
import sys
from asmdsl import *
import worker as Wk
NAME = 'gated_mix__memory_aug_recurrent_mem_tr__linear_attn_block__prompt'
def prologue(a):
    a.raw('; @launch grid=(256,1,1) block=(256,1,1) lds=163840')
    a.raw('.amdgcn_target "amdgcn-amd-amdhsa--gfx950"\n.text\n.globl %s_kernel\n.p2align 8\n.type %s_kernel,@function' % (NAME, NAME))
    a.label(NAME + '_kernel')
    a('s_cmp_ge_u32 s2, 256\ns_cbranch_scc1 L_end')
    a('''s_load_dwordx16 s[64:79], s[0:1], 0
    s_load_dwordx8 s[80:87], s[0:1], 64
    s_load_dwordx4 s[88:91], s[0:1], 96
    s_getreg_b32 s3, hwreg(HW_REG_XCC_ID)
    s_and_b32 s3, s3, 7
    v_lshrrev_b32 v1, 6, v0
    v_and_b32 v0, 63, v0
    s_waitcnt lgkmcnt(0)''')
def epilogue(a):
    a.label('L_end')
    a('s_endpgm')
    a.raw(f'''.section .rodata,"a"
.p2align 6
.amdhsa_kernel {NAME}_kernel
  .amdhsa_next_free_vgpr 512
  .amdhsa_next_free_sgpr 102
  .amdhsa_accum_offset 256
  .amdhsa_group_segment_fixed_size 0
  .amdhsa_kernarg_size 112
  .amdhsa_user_sgpr_count 2
  .amdhsa_user_sgpr_kernarg_segment_ptr 1
  .amdhsa_system_sgpr_workgroup_id_x 1
.end_amdhsa_kernel''')
def roles(a):
    import os
    W = Wk
    fx = os.environ.get('FX')
    if fx == 'wg': a('s_lshr_b32 s3, s2, 5')
    if fx == 'uneven': a('s_min_u32 s3, s3, 5')
    if fx == 'uneven2': a('s_max_u32 s3, s3, 2')
    W.srd(a, 4, W.ptr(12), 256)
    a(f'''v_readfirstlane_b32 s93, v1
    s_lshl_b32 s94, s3, 2
    s_add_u32 s94, s94, {W.D_TK*4}
    s_cmp_eq_u32 s3, 0
    s_cselect_b32 s94, 0, s94
    v_mov_b32 v11, 1
    v_mov_b32 v12, 0
    s_cmp_lg_u32 s93, 0
    s_cbranch_scc1 L_wtk
    s_mov_b64 exec, 1
    buffer_atomic_add v11, off, s[4:7], s94 sc0
    s_waitcnt vmcnt(0)
    ds_write_b32 v12, v11
    s_waitcnt lgkmcnt(0)
    s_mov_b64 exec, -1''')
    a.label('L_wtk')
    if int(os.environ.get('CPF', '0')):
        a(f'''s_cmp_eq_u32 s93, 0
        s_cbranch_scc1 L_cpf
        s_getpc_b64 s[8:9]
        s_lshr_b32 s10, s2, 3
        s_and_b32 s10, s10, 3
        s_mul_i32 s10, s10, 3
        s_add_u32 s10, s10, s93
        s_sub_u32 s10, s10, 1
        s_lshl_b32 s10, s10, 13
        s_min_u32 s10, s10, CODE_SPAN
        s_add_u32 s8, s8, s10
        s_addc_u32 s9, s9, 0
        v_lshlrev_b32 v14, 7, v0
        v_mov_b32 v15, s9
        v_add_co_u32 v14, vcc, s8, v14
        v_addc_co_u32 v15, vcc, 0, v15, vcc
        global_load_dword v255, v[14:15], off''')
        if int(os.environ.get('SPEC', '0')):
            a('s_cmp_lg_u32 s3, 0\ns_cbranch_scc1 L_cpf')
            W.srd(a, 8, W.ptr(5), 4096*1152)
            a(f'''s_lshr_b32 s12, s2, 3
            s_mul_i32 s12, s12, 3
            s_add_u32 s12, s12, s93
            s_sub_u32 s12, s12, 1
            s_mul_i32 s12, s12, 49152
            v_lshlrev_b32 v14, 7, v0''')
            for i in range(6):
                a(f'buffer_load_dword v255, v14, s[8:11], s12 offen\ns_add_u32 s12, s12, 8192')
        a.label('L_cpf')
    a(f'''s_barrier
    ds_read_b32 v11, v12
    s_waitcnt lgkmcnt(0)
    v_readfirstlane_b32 s92, v11
    s_nop 3
    s_barrier
    s_cmp_lt_u32 s92, 32
    s_cbranch_scc1 L_role_ok
    v_lshlrev_b32 v10, 2, v0
    v_add_u32 v10, {W.D_TK*4}, v10
    v_cmp_eq_u32 vcc, 0, v0
    v_cndmask_b32 v10, v10, v12, vcc
    s_mov_b32 s95, 0''')
    a.label('L_ovf')
    a('buffer_load_dword v11, v10, s[4:7], 0 offen sc1\ns_waitcnt vmcnt(0)\ns_mov_b32 s94, 0')
    for x in range(8): a(f'v_readlane_b32 s{8+x}, v11, {x}')
    for x in range(8): a(f's_add_u32 s94, s94, s{8+x}')
    a('''s_add_u32 s95, s95, 1
    s_cmp_gt_u32 s95, 300000
    s_cbranch_scc1 L_end
    s_sleep 8
    s_cmp_lt_u32 s94, 256
    s_cbranch_scc1 L_ovf
    s_sub_u32 s92, s92, 32''')
    for x in range(7):
        a(f'''s_max_u32 s94, s{8+x}, 32
        s_sub_u32 s94, s94, 32
        s_cmp_gt_u32 s3, {x}
        s_cselect_b32 s94, s94, 0
        s_add_u32 s92, s92, s94''')
    for x in range(8):
        a(f'''s_min_u32 s94, s{8+x}, 32
        s_sub_u32 s95, 32, s94
        s_mov_b32 s3, {x}
        s_cmp_lt_u32 s92, s95
        s_cbranch_scc1 L_vac
        s_sub_u32 s92, s92, s95''')
    a('s_branch L_end')
    a.label('L_vac')
    a('s_add_u32 s92, s92, s94')
    a.label('L_role_ok')
def worker_entry(a):
    W = Wk
    W.srd(a, W.sDBG, W.ptr(12), 256); W.srd(a, W.sWS, W.ptr(13), 256<<20)
    a(f'''s_mov_b32 s{W.sW}, s93
    s_sub_u32 s{W.sTEAM}, s3, 1
    s_lshl_b32 s{W.sI}, s{W.sTEAM}, 5
    s_add_u32 s{W.sI}, s{W.sI}, s92''')
if __name__ == '__main__':
    a = Asm()
    prologue(a)
    roles(a)
    a('s_cmp_eq_u32 s3, 0\ns_cbranch_scc1 L_end')
    a('s_memrealtime s[94:95]')
    worker_entry(a)
    Wk.worker_gemm(a)
    a(f'''s_memrealtime s[96:97]
    s_waitcnt lgkmcnt(0)
    s_sub_u32 s96, s96, s94
    v_mov_b32 v2, 20
    v_mov_b32 v3, s96
    s_mov_b64 exec, 1
    buffer_atomic_umax v3, v2, s[{Wk.sDBG}:{Wk.sDBG+3}], 0 offen
    s_waitcnt vmcnt(0)''')
    epilogue(a)
    open(sys.argv[1], 'w').write(a.text())
```

```python
from asmdsl import *
from worker import *
import worker as Wk
vIDX = 1
(vQG, vKW, vAK, vOW, vOA, vOX, vPS9, vRED, vOUT, vGA, vGB, vZA) = range(6, 18)
MSK = 18
KVT = 22
ZT = 30
SEL = 34
ONES = 38
TMP = 42
KF, VF, BQ, AK, VM, OAC = 64, 96, 128, 160, 192, 224
L_KS = 0
L_O = 2048
sC, sEVm, sHF0, sHF1, sKVo, sQo, sPQo, sPUBo, sXPo, sRHO, sPW = 56, 58, 60, 62, 40+0, 41, 43, 44, 45, 46, 47
sXB, sXM, sEP, sN, sPRG = 93, 94, 95, 57, 48
import os
NRG = int(os.environ.get('NRG', '2'))
NU = 64*4//NRG
sU, sRG, sQ1 = 49, 50, 51
QS = int(os.environ.get('QS', '64'))
def decode(a):
    a(f'''s_lshr_b32 s{sSEG}, s{sU}, 1
    s_and_b32 s{sRG}, s{sU}, 1
    s_lshl_b32 s{sRG}, s{sRG}, 1
    s_sub_u32 s{sT0}, s{sU}, {2*QS}
    s_lshr_b32 s{sT1}, s{sT0}, 2
    s_add_u32 s{sT1}, s{sT1}, {QS}
    s_and_b32 s{sT0}, s{sT0}, 3
    s_cmp_ge_u32 s{sU}, {2*QS}
    s_cselect_b32 s{sSEG}, s{sT1}, s{sSEG}
    s_cselect_b32 s{sRG}, s{sT0}, s{sRG}
    s_cselect_b32 s{sQ1}, 1, 0''')

vOA2, vOX2 = 4, 5
def smf(a, d, A, B):
    a(f'v_smfmac_f32_16x16x64_bf16 {vr(d,4)}, {vr(A,4)}, {B}, v{vIDX}')

def wait_cnt(a, byteoff, shift, mask, target, tag):
    a(f'v_mov_b32 v2, {byteoff}')
    a.label(f'L_wc{tag}')
    a(f'''buffer_load_dword v3, v2, s[{sDBG}:{sDBG+3}], 0 offen sc1
    s_waitcnt vmcnt(0)
    v_readfirstlane_b32 s{sT0}, v3
    s_add_u32 s{sSPIN}, s{sSPIN}, 1
    s_lshr_b32 s{sT0}, s{sT0}, {shift}
    s_and_b32 s{sT0}, s{sT0}, {mask}
    s_cmp_ge_u32 s{sT0}, {target}
    s_cbranch_scc1 L_wd{tag}
    s_cmp_gt_u32 s{sSPIN}, 300000
    s_cbranch_scc1 L_wd{tag}
    s_sleep 4
    s_branch L_wc{tag}''')
    a.label(f'L_wd{tag}')

def xs_pass(a, SC):
    W = f's[{sWS}:{sWS+3}]'
    X, Y, Z, RW = 2, 3, TMP, TMP+1
    a(f's_mov_b32 s{sH}, s92\ns_mov_b32 s{sSPIN}, 0')
    srd(a, sOUT, ptr(11), 2048*1152)
    srd(a, sWC, ptr(5), 4096*1152)
    srd(a, sMI, ptr(9), 576*1152)
    VO, V8 = TMP+2, TMP+3
    a(f'''v_mul_u32_u24 v{Z}, {4*1152}, v{vG}
    v_lshl_add_u32 v{VO}, v{vJ}, 4, v{Z}
    s_lshl_b32 s{sT0}, s{sW}, 8
    v_add_u32 v{VO}, s{sT0}, v{VO}
    v_lshl_add_u32 v{V8}, v{vJ}, 1, v{Z}
    s_lshl_b32 s{sT0}, s{sW}, 5
    s_add_u32 s{sT0}, s{sT0}, 1024
    v_add_u32 v{V8}, s{sT0}, v{V8}
    s_mul_i32 s{sT1}, s{sH}, 147456
    v_mov_b32 v{X}, {OOB}
    v_cmp_eq_u32 vcc, 0, v{vG}
    v_cndmask_b32 v{VO+2}, v{X}, v{VO}, vcc
    v_cndmask_b32 v{V8+2}, v{X}, v{V8}, vcc
    s_mul_i32 s{sT3}, s{sH}, {18*1152}''')
    B0 = 64
    for rho in range(4):
        for x in range(4):
            kh, p0 = x >> 1, x & 1
            a(f's_add_u32 s{sT2}, s{sT1}, {(32*rho+16*kh+2*p0)*1152}')
            a(f'buffer_load_dwordx4 {vr(B0+rho*32+x*8,4)}, v{VO}, s[{sWC}:{sWC+3}], s{sT2} offen')
            a(f'buffer_load_dwordx4 {vr(B0+rho*32+x*8+4,4)}, v{VO}, s[{sWC}:{sWC+3}], s{sT2} offen offset:1152')
    a('s_waitcnt vmcnt(0)')
    for sg in range(2):
        for b in range(8):
            kh, p0, hf = b >> 2, (b >> 1) & 1, b & 1
            a(f's_add_u32 s{sT2}, s{sT1}, {(32*(sg+2*hf)+16*kh+2*p0)*1152}')
            a(f'buffer_load_ushort v{192+sg*16+2*b}, v{V8}, s[{sWC}:{sWC+3}], s{sT2} offen')
            a(f'buffer_load_ushort v{193+sg*16+2*b}, v{V8}, s[{sWC}:{sWC+3}], s{sT2} offen offset:1152')
    for x in range(3):
        kh, p0 = x >> 1, x & 1
        a(f's_add_u32 s{sT2}, s{sT3}, {(16*kh+2*p0)*1152}')
        o = 2 if kh else 0
        a(f'buffer_load_dwordx4 {vr(224+x*8,4)}, v{VO+o}, s[{sMI}:{sMI+3}], s{sT2} offen')
        a(f'buffer_load_dwordx4 {vr(228+x*8,4)}, v{VO+o}, s[{sMI}:{sMI+3}], s{sT2} offen offset:1152')
        a(f'buffer_load_ushort v{248+2*x}, v{V8+o}, s[{sMI}:{sMI+3}], s{sT2} offen')
        a(f'buffer_load_ushort v{249+2*x}, v{V8+o}, s[{sMI}:{sMI+3}], s{sT2} offen offset:1152')
    for rho in range(4):
        for c in range(4):
            for x in range(4):
                kh, p0 = x >> 1, x & 1
                for hf in range(2):
                    a(f'v_perm_b32 v{X}, v{B0+rho*32+x*8+4+c}, v{B0+rho*32+x*8+c}, s{sSEL1 if hf else sSEL0}')
                    a(f'v_accvgpr_write_b32 a{(c*5+rho)*8+4*kh+2*p0+hf}, v{X}')
    a('s_waitcnt vmcnt(0)')
    for sg in range(2):
        for b in range(8):
            a(f'v_lshl_or_b32 v{X}, v{193+sg*16+2*b}, 16, v{192+sg*16+2*b}\nv_accvgpr_write_b32 a{160+sg*8+b}, v{X}')
    for c in range(4):
        for x in range(4):
            kh, p0 = x >> 1, x & 1
            for hf in range(2):
                d = (c*5+4)*8+4*kh+2*p0+hf
                if x == 3: a(f'v_accvgpr_write_b32 a{d}, 0')
                else:
                    a(f'v_perm_b32 v{X}, v{228+x*8+c}, v{224+x*8+c}, s{sSEL1 if hf else sSEL0}')
                    a(f'v_accvgpr_write_b32 a{d}, v{X}')
    for b in range(8):
        x, hf = b >> 1, b & 1
        if hf or x == 3: a(f'v_accvgpr_write_b32 a{176+b}, 0')
        else: a(f'v_lshl_or_b32 v{X}, v{249+2*x}, 16, v{248+2*x}\nv_accvgpr_write_b32 a{176+b}, v{X}')
    a(f'''v_and_b32 v{X}, 2, v{vJ}
    v_mov_b32 v{vIDX}, 0x00444444
    v_mov_b32 v{Y}, 0x0049EEEE
    v_cmp_ne_u32 vcc, 0, v{X}
    v_cndmask_b32 v{vIDX}, v{vIDX}, v{Y}, vcc
    s_mov_b64 s[{sHF1}:{sHF1+1}], vcc
    s_not_b64 s[{sHF0}:{sHF0+1}], vcc
    v_lshrrev_b32 v{X}, 2, v{vJ}
    v_and_b32 v{Y}, 1, v{vJ}
    v_lshl_add_u32 v{RW}, v{X}, 1, v{Y}           ; row(j) 0..7
    v_cmp_eq_u32 s[{sEVm}:{sEVm+1}], 0, v{Y}
    s_mov_b32 s{sC}, 0x3e0293ee
    s_lshl_b32 s{sRHO}, s{sW}, 5
    s_add_u32 s{sRHO}, s{sRHO}, s{sH}''')
    a(f'''v_lshrrev_b32 v{X}, 2, v{RW}
    v_and_b32 v{Y}, 1, v{RW}
    v_lshl_add_u32 v{X}, v{X}, 1, v{Y}
    s_lshl_b32 s{sT0}, s{sW}, 2
    v_add_u32 v{X}, s{sT0}, v{X}
    v_lshl_add_u32 v{X}, v{vG}, 4, v{X}
    v_lshlrev_b32 v{X}, 4, v{X}
    v_bfe_u32 v{Y}, v{RW}, 1, 1
    v_lshl_add_u32 v{vQG}, v{Y}, 10, v{X}
    v_lshlrev_b32 v{X}, 7, v{vG}
    v_lshl_add_u32 v{X}, v{vJ}, 2, v{X}
    s_lshl_b32 s{sT0}, s{sW}, 9
    v_add_u32 v{vKW}, s{sT0}, v{X}
    v_lshrrev_b32 v{X}, 2, v{vJ}
    v_lshlrev_b32 v{X}, 7, v{X}
    v_lshl_add_u32 v{vAK}, v{vG}, 4, v{X}
    v_lshl_add_u32 v{X}, v{vG}, 3, v{RW}
    v_lshlrev_b32 v{X}, 4, v{X}
    v_add_u32 v{vOA}, {L_O}, v{X}
    v_and_b32 v{Y}, 2, v{vJ}
    v_lshl_add_u32 v{vOX}, v{Y}, 9, v{vOA}
    ; OW = L_O + w*2560 + ((j>>2)*8 + 2g)*16 + (j&3)*4
    v_lshrrev_b32 v{X}, 2, v{vJ}
    v_lshlrev_b32 v{X}, 3, v{X}
    v_lshl_add_u32 v{X}, v{vG}, 1, v{X}
    v_lshlrev_b32 v{X}, 4, v{X}
    v_and_b32 v{Y}, 3, v{vJ}
    v_lshl_add_u32 v{X}, v{Y}, 2, v{X}
    s_mul_i32 s{sT0}, s{sW}, 2560
    s_add_u32 s{sT0}, s{sT0}, {L_O}
    v_add_u32 v{vOW}, s{sT0}, v{X}
    ; PS9
    v_lshrrev_b32 v{X}, 2, v{vJ}
    v_lshlrev_b32 v{X}, 1, v{X}
    v_lshl_add_u32 v{X}, v{vG}, 3, v{X}
    v_and_b32 v{Y}, 1, v{vJ}
    v_add_u32 v{X}, v{X}, v{Y}
    v_lshlrev_b32 v{X}, 3, v{X}
    v_and_b32 v{Y}, 2, v{vJ}
    v_lshl_add_u32 v{X}, v{Y}, 1, v{X}
    s_mul_i32 s{sT0}, s{sW}, 1792
    s_sub_u32 s{sT0}, 8192, s{sT0}
    v_add_u32 v{vPS9}, s{sT0}, v{X}
    ; RED
    v_lshrrev_b32 v{X}, 3, v{vJ}
    v_lshl_add_u32 v{X}, v{X}, 2, v{vG}
    v_mul_u32_u24 v{X}, {PST}, v{X}
    v_and_b32 v{Y}, 7, v{vJ}
    v_lshl_add_u32 v{Y}, v{Y}, 4, v{X}
    s_lshl_b32 s{sT0}, s{sRHO}, 7
    v_add_u32 v{vRED}, s{sT0}, v{Y}
    s_lshl_b32 s{sT0}, s{sW}, 5
    v_lshlrev_b32 v{X}, 3, v{vG}
    v_add_u32 v{vGA}, s{sT0}, v{X}
    v_lshlrev_b32 v{X}, 2, v{RW}
    v_add_u32 v{vGB}, s{sT0}, v{X}
    v_lshlrev_b32 v{X}, 8, v{vG}
    v_add_u32 v{vZA}, {9*16}, v{X}
    ; SEL
    v_mov_b32 v{X}, 0x3f80
    v_mov_b32 v{Y}, 0x3f800000
    v_cndmask_b32 v{X}, v{Y}, v{X}, s[{sEVm}:{sEVm+1}]
    v_lshrrev_b32 v{Y}, 2, v{vJ}
    v_cmp_eq_u32 vcc, 0, v{Y}
    v_cndmask_b32 v{SEL}, 0, v{X}, vcc
    v_cmp_eq_u32 vcc, 1, v{Y}
    v_cndmask_b32 v{SEL+1}, 0, v{X}, vcc
    v_mov_b32 v{SEL+2}, v{SEL}
    v_mov_b32 v{SEL+3}, v{SEL+1}''')
    for i in range(4): a(f'v_mov_b32 v{ONES+i}, 0x3f803f80')
    a(f'''v_and_b32 v{X}, 2, v{vJ}
    v_lshl_add_u32 v{X}, v{vG}, 3, v{X}
    s_lshl_b32 s{sT0}, s{sW}, 3
    v_add_u32 v{Y}, s{sT0}, v{RW}
    v_mov_b32 v{TMP+4}, 0xf149f2ca''')
    for r in range(4):
        a(f'v_add_u32 v{TMP+5}, {4*(r>>1)+(r&1)}, v{X}\nv_cmp_le_u32 vcc, v{TMP+5}, v{Y}\nv_cndmask_b32 v{MSK+r}, v{TMP+4}, 0, vcc')
    O, Q, T1, Q2, R2, H2, RR = TMP+4, TMP+5, TMP+6, TMP+7, TMP+8, TMP+9, TMP+10
    a(f'''s_lshl_b32 s{sT0}, s{sRHO}, 7
    v_and_b32 v{X}, 7, v{vJ}
    v_lshlrev_b32 v{X}, 4, v{X}
    v_and_b32 v{Y}, 1, v{vG}
    v_lshl_add_u32 v{X}, v{Y}, 3, v{X}
    v_add_u32 v{O}, s{sT0}, v{X}
    v_bfe_u32 v{X}, v{O}, 8, 2
    v_bfe_u32 v{Y}, v{O}, 3, 1
    v_lshl_add_u32 v{RR}, v{X}, 1, v{Y}
    v_lshrrev_b32 v{Q}, 11, v{O}
    v_lshlrev_b32 v{Q}, 4, v{Q}
    v_bfe_u32 v{X}, v{O}, 4, 4
    v_add_u32 v{Q}, v{Q}, v{X}
    v_bfe_u32 v{T1}, v{O}, 10, 1
    v_bfe_u32 v{X}, v{O}, 8, 2
    v_bfe_u32 v{Y}, v{O}, 5, 1
    v_lshl_add_u32 v{Q2}, v{X}, 1, v{Y}
    v_add_u32 v{Q2}, 64, v{Q2}
    v_bfe_u32 v{X}, v{O}, 6, 2
    v_bfe_u32 v{Y}, v{O}, 3, 1
    v_lshl_add_u32 v{R2}, v{X}, 1, v{Y}
    v_bfe_u32 v{H2}, v{O}, 4, 1
    v_cmp_le_u32 vcc, 0x2000, v{O}
    v_cndmask_b32 v{Q}, v{Q}, v{Q2}, vcc
    v_cndmask_b32 v{RR}, v{RR}, v{R2}, vcc
    v_cndmask_b32 v{T1}, v{T1}, v{H2}, vcc
    v_mul_u32_u24 v{vOUT}, 1152, v{RR}
    v_lshl_add_u32 v{vOUT}, v{Q}, 4, v{vOUT}
    v_lshl_add_u32 v{vOUT}, v{T1}, 3, v{vOUT}
    v_cmp_gt_u32 s[96:97], 8, v{vJ}
    v_cmp_gt_u32 s[98:99], 2, v{vG}
    s_and_b64 vcc, s[96:97], s[98:99]
    v_mov_b32 v{X}, {OOB}
    v_cndmask_b32 v{vOUT}, v{X}, v{vOUT}, vcc''')
    for i in range(0, 32, 2): a(f'v_mov_b64 {vr(VM+i,2)}, 0\nv_mov_b64 {vr(BQ+i,2)}, 0')
    TB = 2*4*32*PST
    a(f'''s_mul_i32 s{sXB}, s{sTEAM}, {TB}
    s_add_u32 s{sXB}, s{sXB}, {WS_XP}
    s_cmp_ge_u32 s{sRHO}, 64
    s_cselect_b32 s{sXM}, 1, 0
    v_mov_b64 {vr(TMP,2)}, -1
    v_mov_b64 {vr(TMP+2,2)}, -1
    s_cmp_ge_u32 s{sRHO}, 72
    s_cbranch_scc1 L_xinv
    s_mov_b32 s{sT1}, s{sXB}''')
    for i in range(32):
        a(f'buffer_store_dwordx4 {vr(TMP,4)}, v{vRED}, {W}, s{sT1} offen sc1\ns_add_u32 s{sT1}, s{sT1}, {8*PST}')
    a.label('L_xinv')
    a(f's_lshl_b32 s{sT2}, s{sTEAM}, 2\ns_add_u32 s{sT2}, s{sT2}, {D_X*4}')
    signal(a, f's{sT2}', 1, 'xt')
    a(f'''v_lshrrev_b32 v{X}, 4, v{vL16}
    v_mov_b32 v{TMP}, 0
    v_lshrrev_b32 v{Y}, 3, v{X}
    v_mov_b32 v{TMP+1}, 128
    v_cmp_eq_u32 vcc, 5, v{Y}
    v_cndmask_b32 v{TMP}, v{TMP}, v{TMP+1}, vcc
    v_cmp_eq_u32 vcc, 6, v{Y}
    v_cndmask_b32 v{TMP}, v{TMP}, v{TMP+1}, vcc
    v_mov_b32 v{TMP+1}, 1280
    v_cmp_eq_u32 vcc, {D_Q}, v{X}
    v_cndmask_b32 v{TMP}, v{TMP}, v{TMP+1}, vcc
    v_mov_b32 v{TMP+1}, 96
    v_cmp_eq_u32 vcc, {D_INIT}, v{X}
    v_cndmask_b32 v{TMP}, v{TMP}, v{TMP+1}, vcc
    v_mov_b32 v{TMP+1}, 32
    v_cmp_eq_u32 vcc, {D_BKV}, v{X}
    v_cndmask_b32 v{TMP}, v{TMP}, v{TMP+1}, vcc
    s_add_u32 s{sT2}, s{sTEAM}, {D_X}
    v_cmp_eq_u32 vcc, s{sT2}, v{X}
    v_cndmask_b32 v{TMP}, v{TMP}, v{TMP+1}, vcc
    v_lshlrev_b32 v{X}, 2, v{X}
    s_cmp_lg_u32 s{sW}, 0
    s_cbranch_scc1 L_xw_done''')
    a.label('L_xw')
    a(f'''buffer_load_dword v{Y}, v{X}, s[{sDBG}:{sDBG+3}], 0 offen sc1
    s_add_u32 s{sSPIN}, s{sSPIN}, 1
    s_waitcnt vmcnt(0)
    v_cmp_lt_u32 vcc, v{Y}, v{TMP}
    s_cbranch_vccz L_xw_done
    s_cmp_gt_u32 s{sSPIN}, 300000
    s_cbranch_scc1 L_xw_done
    s_sleep 32
    s_branch L_xw''')
    a.label('L_xw_done')
    a('s_barrier')
    a(f's_lshl_b32 s{sT1}, s{sH}, 12\ns_add_u32 s{sT1}, s{sT1}, {WS_KVP}')
    for p in range(4):
        for ab in range(4):
            a(f'buffer_load_dwordx4 {vr(KF+p*16+ab*4,4)}, v{vL16}, {W}, s{sT1} offen offset:{ab*1024} sc1')
        for x in range(2):
            a(f'buffer_load_dwordx4 {vr(AK+p*8+x*4,4)}, v{vZA}, {W}, s{sT1} offen offset:{x*2048} sc1')
        a(f's_add_u32 s{sT1}, s{sT1}, {1<<17}')
    a('s_waitcnt vmcnt(0)')
    for p in range(1, 4):
        for i in range(16): a(f'v_add_f32 v{KF+i}, v{KF+i}, v{KF+p*16+i}')
        for i in range(8): a(f'v_add_f32 v{AK+i}, v{AK+i}, v{AK+p*8+i}')
    for r in range(4):
        a(f'v_lshlrev_b32 v{X}, 2, v{vG}\nv_add_u32 v{X}, {r}, v{X}\nv_cmp_gt_u32 vcc, 9, v{X}')
        for b in range(2):
            a(f'v_cvt_pk_bf16_f32 v{Y}, v{KF+b*4+r}, v{KF+8+b*4+r}\nv_cndmask_b32 v{KVT+b*4+r}, 0, v{Y}, vcc')
        a(f'v_cvt_pk_bf16_f32 v{Y}, v{AK+r}, v{AK+4+r}\nv_cndmask_b32 v{ZT+r}, 0, v{Y}, vcc')
    SH = {4: 0, 2: 1, 1: 2}[NRG]
    a(f's_mov_b32 s{sU}, s{sTEAM}')
    decode(a)
    mark(a, 5, sDBG)
    a(f'''s_add_u32 s{sT1}, s{sTEAM}, {D_TK+1}
    s_lshl_b32 s{sT1}, s{sT1}, 2
    buffer_load_dword v{X}, off, s[{sDBG}:{sDBG+3}], s{sT1} sc1
    s_waitcnt vmcnt(0)
    v_readfirstlane_b32 s{sT1}, v{X}
    s_nop 3
    s_cmp_lt_u32 s{sT1}, {1000 if os.environ.get("FORCESLOW") else 32}
    s_cbranch_scc1 L_xslow''')
    xs_loop(a, '')
    a('s_branch L_xall')
    a.label('L_xslow')
    xs_loop(a, 'sc1')
    a.label('L_xall')

class Sub:
    def __init__(self, a, sfx): self.a = a; self.sfx = sfx
    def __call__(self, t): self.a(t.replace('@@', self.sfx))
    def label(self, n): self.a.label(n.replace('@@', self.sfx))
def xs_loop(a0, SC):
    SH2 = {4: 0, 2: 1, 1: 2}[NRG]
    a = Sub(a0, '_'+SC)
    W = f's[{sWS}:{sWS+3}]'
    X, Y, Z, RW = 2, 3, TMP, TMP+1
    PQ, GA, GB, PB = TMP, TMP+4, TMP+6, TMP+8
    def offs(seg):
        a(f'''s_lshl_b32 s{sT0}, s{seg}, 5
        s_add_u32 s{sT0}, s{sT0}, s{sH}
        s_lshl_b32 s{sKVo}, s{sT0}, 14
        s_lshl_b32 s{sQo}, s{sT0}, 13
        s_add_u32 s{sQo}, s{sQo}, {WS_QX}
        s_lshl_b32 s{sPQo}, s{sT0}, 11
        s_add_u32 s{sPQo}, s{sPQo}, {WS_PQ}
        s_lshl_b32 s{sT3}, s{seg}, 7
        s_add_u32 s{sT3}, s{sT3}, {WS_G}''')
    def loads():
        for i in range(16):
            if i % 4 == 0 and i: a(f's_add_u32 s{sKVo}, s{sKVo}, 4096')
            a(f'buffer_load_dwordx4 {vr(KF+4*i,4)}, v{vL16}, {W}, s{sKVo} offen offset:{(i%4)*1024} sc1')
        for hf in range(2):
            a(f's_mov_b64 exec, s[{(sHF0,sHF1)[hf]}:{(sHF0,sHF1)[hf]+1}]')
            for kk in range(4):
                if kk == 2: a(f's_add_u32 s{sT1}, s{sQo}, 4096')
                a(f'buffer_load_dwordx4 {vr(BQ+(kk*2+hf)*4,4)}, v{vQG}, {W}, s{sQo if kk<2 else sT1} offen offset:{(kk&1)*2048} sc1')
        a(f'''s_mov_b64 exec, -1
        buffer_load_dwordx4 {vr(PQ,4)}, v{vQG}, {W}, s{sPQo} offen sc1
        buffer_load_dwordx2 {vr(GA,2)}, v{vGA}, {W}, s{sT3} offen sc1
        buffer_load_dword v{GB}, v{vGB}, {W}, s{sT3} offen sc1''')
    offs(sSEG); loads()
    a(f's_mov_b32 s{sN}, 0\ns_mov_b32 s{sPRG}, 0')
    a.label('L_xs@@')
    a(f'''s_lshl_b32 s{sT0}, s{sSEG}, 5
    s_add_u32 s{sT0}, s{sT0}, s{sH}
    s_lshl_b32 s{sPUBo}, s{sT0}, 12
    s_add_u32 s{sPUBo}, s{sPUBo}, {WS_PUB}
    s_and_b32 s{sT0}, s{sN}, 1
    s_mul_i32 s{sXPo}, s{sT0}, {4*32*PST}
    s_add_u32 s{sXPo}, s{sXPo}, s{sXB}
    s_bfe_u32 s{sEP}, s{sN}, 0x10001
    s_mul_i32 s{sPW}, s{sH}, {PST}
    s_add_u32 s{sPW}, s{sPW}, s{sXPo}
    s_lshl_b32 s{sT1}, s{sW}, 11
    s_add_u32 s{sPW}, s{sPW}, s{sT1}
    s_lshl_b32 s{sT1}, s{sW}, 10
    s_add_u32 s{sT1}, s{sT1}, s{sPUBo}
    s_add_u32 s{sT2}, s{sPUBo}, {1<<17}
    s_mul_i32 s{sT0}, s{sRG}, 2560
    v_add_u32 v{vOA2}, s{sT0}, v{vOA}
    v_add_u32 v{vOX2}, s{sT0}, v{vOX}
    s_waitcnt vmcnt(0)''')
    S0, S1 = TMP+10, TMP+14
    for kk in range(4):
        for hf in range(2):
            c = vr(MSK,4) if kk+hf == 0 else vr(S0,4)
            a(f'v_mfma_f32_16x16x32_bf16 {vr(S0,4)}, {vr(KF+(kk*2+hf)*4,4)}, {vr(BQ+(kk*2+hf)*4,4)}, {c}')
    N0, N1, DN = OAC, OAC+4, OAC+8
    a(f'''v_mfma_f32_16x16x32_bf16 {vr(N0,4)}, {vr(KVT,4)}, {vr(PQ,4)}, 0
    v_mfma_f32_16x16x32_bf16 {vr(N1,4)}, {vr(KVT+4,4)}, {vr(PQ,4)}, 0
    v_mfma_f32_16x16x32_bf16 {vr(DN,4)}, {vr(ZT,4)}, {vr(PQ,4)}, 0
    v_sub_f32 v{GB}, 1.0, v{GB}
    v_add_f32 v{DN}, 0x358637bd, v{DN}
    v_rcp_f32 v{DN}, v{DN}
    v_mul_f32 v{DN}, v{DN}, v{GB}''')
    for r in range(4):
        a(f'v_mul_f32 v{N0+r}, v{N0+r}, v{DN}\nv_mul_f32 v{N1+r}, v{N1+r}, v{DN}\nv_cvt_pk_bf16_f32 v{PQ+r}, v{N0+r}, v{N1+r}')
    for i in range(0, 32, 2): a(f'v_mov_b64 {vr(OAC+i,2)}, 0')
    a(f's_add_u32 s{sT3}, s{sSEG}, {int(os.environ.get("GATE","0"))}\ns_cmp_le_u32 s{sT3}, s{sPRG}\ns_cbranch_scc1 L_xp@@')
    a.label('L_xg@@')
    a(f'''buffer_load_dword v{X}, off, s[{sDBG}:{sDBG+3}], 0 offset:{D_PROG*4} sc1
    s_add_u32 s{sSPIN}, s{sSPIN}, 1
    s_waitcnt vmcnt(0)
    v_readfirstlane_b32 s{sPRG}, v{X}
    s_cmp_gt_u32 s{sSPIN}, 300000
    s_cbranch_scc1 L_xp@@
    s_cmp_le_u32 s{sT3}, s{sPRG}
    s_cbranch_scc1 L_xp@@
    s_sleep {int(os.environ.get('XSL','4'))}
    s_branch L_xg@@''')
    a.label('L_xp@@')
    a(f'buffer_load_dwordx2 {vr(PB,2)}, v{vL16}, {W}, s{sT1} offen sc1')
    for w2 in range(4):
        for tv in range(2):
            a(f'buffer_load_dword v{VM+(w2*2+tv)*4}, v{vL16}, {W}, s{sT2} offen offset:{w2*1024+8+tv*4} sc1')
    a(f'''s_add_u32 s{sSPIN}, s{sSPIN}, 1
    s_waitcnt vmcnt(0)
    v_max3_u32 v{X}, v{PB}, v{PB+1}, v{VM}
    v_max3_u32 v{X}, v{X}, v{VM+4}, v{VM+8}
    v_max3_u32 v{X}, v{X}, v{VM+12}, v{VM+16}
    v_max3_u32 v{X}, v{X}, v{VM+20}, v{VM+24}
    v_max_u32 v{X}, v{X}, v{VM+28}
    v_cmp_eq_u32 vcc, -1, v{X}
    s_cbranch_vccz L_xp_ok@@
    s_cmp_gt_u32 s{sSPIN}, 300000
    s_cbranch_scc1 L_xp_ok@@
    s_sleep 1
    s_branch L_xp@@''')
    a.label('L_xp_ok@@')
    a(f'ds_write2_b32 v{vKW}, v{PB}, v{PB+1} offset0:0 offset1:16')
    a('s_waitcnt lgkmcnt(0)\ns_barrier')
    for kk in range(4):
        for hf in range(2):
            a(f'ds_read_b128 {vr(AK+(kk*2+hf)*4,4)}, v{vAK} offset:{L_KS+kk*512+hf*64}')
    a(f's_mul_i32 s{sT0}, s{sW}, 2560\nv_add_u32 v{X}, s{sT0}, v{vOA}\nds_write_b128 v{X}, {vr(PQ,4)} offset:2048')
    for kk in range(4):
        for hf in range(2):
            a(f's_waitcnt lgkmcnt({8-(kk*2+hf)})')
            c = '0' if kk+hf == 0 else vr(S1,4)
            a(f'v_mfma_f32_16x16x32_bf16 {vr(S1,4)}, {vr(AK+(kk*2+hf)*4,4)}, {vr(BQ+(kk*2+hf)*4,4)}, {c}')
    Mx, M2 = X, Y
    PA = TMP+18
    a(f'''v_max3_f32 v{Mx}, v{S0}, v{S0+1}, v{S0+2}
    v_max3_f32 v{Mx}, v{Mx}, v{S0+3}, v{S1}
    v_max_f32_dpp v{Mx}, v{Mx}, v{Mx} quad_perm:[2,3,0,1] row_mask:0xf bank_mask:0xf
    v_mov_b32 v{M2}, v{Mx}
    v_permlane16_swap_b32 v{M2}, v{Mx}
    v_max_f32 v{Mx}, v{Mx}, v{M2}
    v_mov_b32 v{M2}, v{Mx}
    v_permlane32_swap_b32 v{M2}, v{Mx}
    v_max_f32 v{Mx}, v{Mx}, v{M2}
    v_mul_f32 v{Mx}, s{sC}, v{Mx}''')
    for xx in (S0, S0+1, S0+2, S0+3, S1): a(f'v_fma_f32 v{xx}, v{xx}, s{sC}, -v{Mx}')
    for xx in (S0, S0+1, S0+2, S0+3, S1): a(f'v_exp_f32 v{xx}, v{xx}')
    LS = S1
    a(f'''v_mov_b32 v{PA+3}, 0
    v_cvt_pk_bf16_f32 v{PA}, v{S0}, v{S0+1}
    v_cvt_pk_bf16_f32 v{PA+1}, v{S0+2}, v{S0+3}
    v_cvt_pk_bf16_f32 v{PA+2}, v{S1}, v{PA+3}
    v_mfma_f32_16x16x32_bf16 {vr(LS,4)}, {vr(PA,4)}, {vr(ONES,4)}, 0''')
    for t in range(8):
        a(f'v_smfmac_f32_16x16x32_bf16 {vr(OAC+4*t,4)}, {vr(PA,2)}, {vr(VF+4*t,4)}, v{vIDX}')
    for t in range(8):
        a(f'v_smfmac_f32_16x16x32_bf16 {vr(OAC+4*t,4)}, {vr(PA+2,2)}, {vr(VM+4*t,4)}, v{vIDX} abid:2')
    a(f'''v_add_f32 v{LS}, v{LS}, v{LS+2}
    v_add_f32 v{LS+1}, v{LS+1}, v{LS+3}
    v_rcp_f32 v{LS}, v{LS}
    v_rcp_f32 v{LS+1}, v{LS+1}
    v_mul_f32 v{LS}, v{LS}, v{GA}
    v_mul_f32 v{LS+1}, v{LS+1}, v{GA+1}''')
    for w2 in range(4):
        A, B = OAC+8*w2, OAC+8*w2+4
        for r in range(2):
            a(f'''v_add_f32 v{A+r}, v{A+r}, v{A+r+2}
            v_add_f32 v{B+r}, v{B+r}, v{B+r+2}
            v_mul_f32 v{A+r}, v{A+r}, v{LS+r}
            v_mul_f32 v{B+r}, v{B+r}, v{LS+r}
            v_cvt_pk_bf16_f32 v{A+2+r}, v{A+r}, v{B+r}''')
        a(f'ds_write2_b32 v{vOW}, v{A+2}, v{A+3} offset0:{w2*128} offset1:{w2*128+4}' if w2 < 2 else
          f'ds_write_b32 v{vOW}, v{A+2} offset:{w2*512}\nds_write_b32 v{vOW}, v{A+3} offset:{w2*512+16}')
    a('s_waitcnt lgkmcnt(0)\ns_barrier')
    EV = f's[{sEVm}:{sEVm+1}]'
    def tag(r): return f'v_and_or_b32 v{r}, v{r}, -2, s{sEP}'
    OAB = [184, 212]
    def oread(rg):
        OA = OAB[rg & 1]
        for i in range(5): a(f'ds_read_b128 {ar(OA+4*i,4)}, v{vOA2} offset:{rg*2560+i*512}')
        for i in range(2): a(f'ds_read_b128 {ar(OA+20+4*i,4)}, v{vOX2} offset:{rg*2560+i*512}')
    def smfa(d, A, B): a(f'v_smfmac_f32_16x16x64_bf16 {vr(d,4)}, {ar(A,4)}, {B}, v{vIDX}')
    oread(0)
    for rg in range(NRG):
        OA = OAB[rg & 1]
        AC = OAC if rg & 1 else AK
        for i in range(0, 20, 2): a(f'v_mov_b64 {vr(AC+i,2)}, 0')
        a('s_waitcnt lgkmcnt(0)')
        if rg < NRG-1: oread(rg+1)
        X8 = AC+16
        smfa(X8, OA+20, ar(160,8)); smfa(X8, OA+24, ar(168,8)); smfa(X8, OA+16, ar(176,8))
        for c in range(4):
            for rho in range(5): smfa(AC+4*c, OA+4*rho, ar((c*5+rho)*8, 8))
        a(f'''v_add_f32 v{X8}, v{X8}, v{X8+2}
        v_add_f32 v{X8+1}, v{X8+1}, v{X8+3}
        v_cndmask_b32 v{X8+2}, v{X8}, v{X8+1}, {EV}
        v_mov_b32_dpp v{X8+3}, v{X8+2} quad_perm:[1,0,3,2] row_mask:0xf bank_mask:0xf
        v_cndmask_b32 v{X8}, v{X8+3}, v{X8}, {EV}
        v_cndmask_b32 v{X8+1}, v{X8+1}, v{X8+3}, {EV}
        v_cvt_pk_bf16_f32 v{X8}, v{X8}, v{X8+1}
        {tag(X8)}
        buffer_store_dword v{X8}, v{vPS9}, {W}, s{sPW} offen {SC}''')
        for hh in range(2):
            A, B = AC+8*hh, AC+8*hh+4
            a(f'''v_cvt_pk_bf16_f32 v{A}, v{A}, v{A+2}
            v_cvt_pk_bf16_f32 v{A+2}, v{A+1}, v{A+3}
            v_cvt_pk_bf16_f32 v{A+1}, v{B}, v{B+2}
            v_cvt_pk_bf16_f32 v{A+3}, v{B+1}, v{B+3}
            {tag(A)}
            {tag(A+2)}
            buffer_store_dwordx4 {vr(A,4)}, v{vL16}, {W}, s{sPW} offen offset:{hh*1024} {SC}''')
        a(f's_add_u32 s{sPW}, s{sPW}, {32*PST}')
        if rg == 0: a(f's_cmp_eq_u32 s{sQ1}, 1\ns_cbranch_scc1 L_xq1@@')
    a.label('L_xq1@@')
    a(f's_waitcnt lgkmcnt(0)\ns_cmp_ge_u32 s{sRHO}, 72\ns_cbranch_scc1 L_xs_next@@')
    RB = [AK, AK+16, OAC, OAC+16]
    DD = [TMP+6, TMP+10, TMP+14, TMP+18]; TT = TMP+4
    a(f's_lshl_b32 s{sT1}, s{sSEG}, 2\ns_add_u32 s{sT1}, s{sT1}, s{sRG}\ns_mul_i32 s{sT1}, s{sT1}, {8*1152}')
    a.label('L_xr@@')
    a(f's_mov_b32 s{sT2}, s{sXPo}')
    for rg in range(NRG):
        for i in range(4):
            a(f'buffer_load_dwordx4 {vr(RB[rg]+4*i,4)}, v{vRED}, {W}, s{sT2} offen sc1')
            a(f's_add_u32 s{sT2}, s{sT2}, {8*PST}')
        if rg == 0: a(f's_cmp_eq_u32 s{sQ1}, 1\ns_cselect_b32 s{sT2}, s{sXPo}, s{sT2}')
    for rg in range(NRG): a(f'v_mov_b64 {vr(DD[rg],2)}, 0\nv_mov_b64 {vr(DD[rg]+2,2)}, 0')
    a(f'v_mov_b64 {vr(TT,2)}, 0\ns_add_u32 s{sSPIN}, s{sSPIN}, 1')
    for rg in range(NRG):
        a(f's_waitcnt vmcnt({4*(NRG-1)-4*rg})')
        smf(a, DD[rg], SEL, vr(RB[rg], 8)); smf(a, DD[rg], SEL, vr(RB[rg]+8, 8))
        for i in range(16): a(f'v_bitop3_b32 v{TT+(i&1)}, v{TT+(i&1)}, v{RB[rg]+i}, s{sEP} bitop3:0xf6')
    a(f'''v_and_or_b32 v{TT}, v{TT+1}, s{sXM}, v{TT}
    v_and_b32 v{TT}, 1, v{TT}
    v_cmp_ne_u32 vcc, 0, v{TT}
    s_cbranch_vccz L_xr_ok@@
    s_cmp_gt_u32 s{sSPIN}, 300000
    s_cbranch_scc0 L_xr@@''')
    a.label('L_xr_ok@@')
    for rg in range(NRG):
        D = DD[rg]
        for i in range(4): a(f'v_add_f32_dpp v{D+i}, v{D+i}, v{D+i} row_ror:8 row_mask:0xf bank_mask:0xf')
        a(f'''v_cvt_pk_bf16_f32 v{D}, v{D}, v{D+1}
        v_cvt_pk_bf16_f32 v{D+1}, v{D+2}, v{D+3}
        buffer_store_dwordx2 {vr(D,2)}, v{vOUT}, s[{sOUT}:{sOUT+3}], s{sT1} offen
        s_add_u32 s{sT1}, s{sT1}, {8*1152}''')
        if rg == 0: a(f's_cmp_eq_u32 s{sQ1}, 1\ns_cbranch_scc1 L_xs_next@@')
    a.label('L_xs_next@@')
    a(f's_add_u32 s{sU}, s{sU}, 7')
    decode(a)
    a(f's_add_u32 s{sN}, s{sN}, 1\ns_cmp_ge_u32 s{sSEG}, 64\ns_cbranch_scc1 L_xs_end@@')
    offs(sSEG); loads()
    a('s_branch L_xs@@')
    a.label('L_xs_end@@')
```
